```python
import torch

def _softmax(x, axis=-1):
    return torch.softmax(x, dim=axis)
def _gelu(x):
    return torch.nn.functional.gelu(x, approximate="tanh")
def _silu(x):
    return torch.nn.functional.silu(x)
def _sigmoid(x):
    return torch.sigmoid(x)
def _layernorm(x, axis=-1, eps=1e-5):
    m = x.mean(dim=axis, keepdim=True)
    v = x.var(dim=axis, keepdim=True, unbiased=False)
    return (x - m) / torch.sqrt(v + eps)
def _scatter_add(tgt, idx, src, axis=0):
    return tgt.clone().index_add_(axis, idx, src)
def _segment_sum(src, seg, n):
    out = torch.zeros((n,) + src.shape[1:], dtype=src.dtype)
    return out.index_add_(0, seg, src)
def _pad(x, pw):
    flat = tuple(v for pair in reversed(pw) for v in pair)
    return torch.nn.functional.pad(x, flat)

kernel_name = 'gather_scatter__hybrid_graph_tf_graphgps__graph'

def setup_inputs():

    _w = (lambda a: (lambda t: t.to(torch.bfloat16) if t.is_floating_point() else t)(torch.as_tensor(a)))
    N, deg, D = 10000, 64, 64
    E = N * deg
    src = (lambda lo, hi, *s: torch.randint(lo, hi, s))(0, N, E).to(torch.int64)
    dst = (lambda lo, hi, *s: torch.randint(lo, hi, s))(0, N, E).to(torch.int64)
    deg_cnt = torch.bincount(dst, minlength=N).to(float) + 1.0
    sc = 1.0 / float(D) ** 0.5
    return {
        "x": _w((lambda *s: torch.randn(*s, dtype=torch.bfloat16) * 0.05)(N, D)),
        "src": _w(src),
        "dst": _w(dst),
        "deg_inv": _w((1.0 / deg_cnt).to(float)),
        "w_msg": _w((lambda *s: torch.randn(*s, dtype=torch.bfloat16) * 0.4)(D, D) * sc),
        "wq": _w((lambda *s: torch.randn(*s, dtype=torch.bfloat16) * 1.6)(D, D) * sc),
        "wk": _w((lambda *s: torch.randn(*s, dtype=torch.bfloat16) * 1.6)(D, D) * sc),
        "wv": _w((lambda *s: torch.randn(*s, dtype=torch.bfloat16) * 0.2)(D, D) * sc),
        "w_out": _w((lambda *s: torch.randn(*s, dtype=torch.bfloat16) * 0.2)(D, D) * sc),
    }

def reference(x, src, dst, deg_inv, w_msg, wq, wk, wv, w_out):
    N, D = x.shape[0], x.shape[1]
    h = _layernorm(x, axis=-1)
    m_e = torch.einsum('nd,de->ne', h, w_msg)
    h_local = _segment_sum(m_e[src], dst, N) * deg_inv[:, None]
    q = torch.einsum('nd,de->ne', h, wq)
    k = torch.einsum('nd,de->ne', h, wk)
    v = torch.einsum('nd,de->ne', h, wv)
    logits = torch.einsum('id,jd->ij', q, k) / (float(D) ** 0.5)
    attn = _softmax(logits, axis=-1)
    h_global = torch.einsum('ij,jd->id', attn, v)
    y = torch.einsum('nd,de->ne', h_local + h_global, w_out)
    return x + y
```

```python
N = 10000
E = 640000
NCH = 125
CH = 5120
NQT = 313
WS_G = 0x000000
WS_H = 0x140000
WS_Q = 0x280000
WS_A = 0x3C0000
WS_E = 0x500000
WS_T = 0x780000
WS_W = 0x800000
WS_P = 0x810000
PSTRIDE = 315 * 8192
LOG2E = 1.4426950408889634

import struct
def f2u(x):
    return struct.unpack("<I", struct.pack("<f", x))[0]

class Asm:
    def __init__(self):
        self.L = []
    def __call__(self, s):
        for ln in s.split("\n"):
            ln = ln.strip()
            if ln:
                self.L.append(ln if ln.endswith(":") or ln.startswith(".") else "    " + ln)
    def many(self, lst):
        for s in lst:
            self(s)
    def text(self):
        return "\n".join(self.L) + "\n"

def vr(a, n=1):
    return f"v{a}" if n == 1 else f"v[{a}:{a+n-1}]"
def sr(a, n=1):
    return f"s{a}" if n == 1 else f"s[{a}:{a+n-1}]"

def srd(A, d, base, off, nbytes, stride=0):
    if off:
        A(f"s_add_u32 s{d}, s{base}, {off:#x}")
        A(f"s_addc_u32 s{d+1}, s{base+1}, 0")
    else:
        A(f"s_mov_b32 s{d}, s{base}")
        A(f"s_mov_b32 s{d+1}, s{base+1}")
    if stride:
        A(f"s_or_b32 s{d+1}, s{d+1}, {stride << 16:#x}")
    A(f"s_mov_b32 s{d+2}, {nbytes:#x}")
    A(f"s_mov_b32 s{d+3}, 0x20000")

def interleave(main, side, start=0, every=1):
    out = []
    si = 0
    for i, m in enumerate(main):
        out.append(m)
        if i >= start and (i - start) % every == 0 and si < len(side):
            out.append(side[si]); si += 1
    out += side[si:]
    return out

def kernel_begin(A, name):
    A(".p2align 8")
    A(f".globl {name}")
    A(f".type {name},@function")
    A(f"{name}:")

def descriptor(name, vgpr, sgpr, accum=None):
    if accum is None:
        accum = (vgpr + 3) // 4 * 4
    return f""".p2align 6
.amdhsa_kernel {name}
  .amdhsa_next_free_vgpr {vgpr}
  .amdhsa_next_free_sgpr {sgpr}
  .amdhsa_accum_offset {accum}
  .amdhsa_group_segment_fixed_size 0
  .amdhsa_kernarg_size 96
  .amdhsa_user_sgpr_count 2
  .amdhsa_user_sgpr_kernarg_segment_ptr 1
  .amdhsa_system_sgpr_workgroup_id_x 1
.end_amdhsa_kernel
"""
```

```python
from common import *

K1_LNWG = 79
K1_GRID = NCH + K1_LNWG
K1_LDS = 4096 + CH * 4 + 64

def xhalf_sum(A, x, t0, t1):
    A(f"v_mov_b32 v{t0}, v{x}")
    A(f"v_mov_b32 v{t1}, v{x}")
    A("s_nop 1")
    A(f"v_permlane32_swap_b32 v{t0}, v{t1}")
    A("s_nop 1")
    A(f"v_add_f32 v{x}, v{t0}, v{t1}")

def bfround(A, x):
    A(f"v_cvt_pk_bf16_f32 v{x}, v{x}, v{x}")
    A(f"v_lshlrev_b32 v{x}, 16, v{x}")

def gen_ln(A):
    A("s_load_dwordx2 s[4:5], s[0:1], 0")
    A("s_load_dwordx4 s[8:11], s[0:1], 40")
    A("s_load_dwordx2 s[6:7], s[0:1], 88")
    A("v_lshrrev_b32 v1, 6, v0")
    A("v_and_b32 v2, 63, v0")
    A("v_readfirstlane_b32 s3, v1")
    A(f"s_sub_u32 s12, s2, {NCH}")
    A("s_cmp_ge_u32 s3, 4")
    A("s_cbranch_scc1 K1_END")
    A("s_lshl_b32 s12, s12, 2")
    A("s_add_u32 s12, s12, s3")
    A(f"s_cmp_ge_u32 s12, {NQT}")
    A("s_cbranch_scc1 K1_END")
    A("v_and_b32 v3, 31, v2")
    A("v_lshrrev_b32 v4, 5, v2")
    A("s_lshl_b32 s13, s12, 12")
    A("v_lshlrev_b32 v5, 7, v3")
    A("v_lshl_add_u32 v5, v4, 4, v5")
    A("v_and_b32 v6, 0x13, v3")
    A("v_and_b32 v7, 4, v3")
    A("v_lshl_or_b32 v6, v7, 1, v6")
    A("v_and_b32 v7, 8, v3")
    A("v_lshrrev_b32 v7, 1, v7")
    A("v_or_b32 v6, v6, v7")
    A("v_lshlrev_b32 v6, 7, v6")
    A("v_lshl_add_u32 v6, v4, 4, v6")
    A("s_waitcnt lgkmcnt(0)")
    srd(A, 16, 4, 0, N * 128)
    srd(A, 20, 8, 0, 8192)
    srd(A, 24, 10, 0, 8192)
    X = 16
    WQ = 32
    WK = 64
    F = 96
    M = 128
    HB = 192
    HH = 208
    MT = 32
    QT = 64
    for j in range(4):
        A(f"buffer_load_dwordx4 {vr(X+4*j,4)}, v5, s[16:19], s13 offen offset:{32*j}")
    A("s_movk_i32 s14, 0x1000")
    for a in range(2):
        so = "0" if a == 0 else "s14"
        for j in range(4):
            A(f"buffer_load_dwordx4 {vr(WQ+16*a+4*j,4)}, v6, s[20:23], {so} offen offset:{32*j}")
        for j in range(4):
            A(f"buffer_load_dwordx4 {vr(WK+16*a+4*j,4)}, v6, s[24:27], {so} offen offset:{32*j}")
    srd(A, 28, 6, WS_G, N * 128)
    srd(A, 32, 6, WS_H, N * 128)
    srd(A, 36, 6, WS_Q, NQT * 4096)
    A("v_and_b32 v7, 2, v3")
    A("v_lshlrev_b32 v7, 1, v7")
    A("v_bfe_u32 v8, v3, 2, 2")
    A("v_or_b32 v7, v7, v8")
    A("v_lshlrev_b32 v7, 4, v7")
    A("v_xor_b32 v8, v5, v7")
    A("v_lshlrev_b32 v9, 4, v2")
    A("v_cmp_eq_u32 s[40:41], 1, v4")
    A("s_mov_b32 s15, 0xffff0000")
    A("s_waitcnt vmcnt(16)")
    for i in range(16):
        A(f"v_lshlrev_b32 v{F+2*i}, 16, v{X+i}")
        A(f"v_and_b32 v{F+2*i+1}, s15, v{X+i}")
    A(f"v_pk_add_f32 v[10:11], {vr(F,2)}, {vr(F+2,2)}")
    A(f"v_pk_add_f32 v[12:13], {vr(F+4,2)}, {vr(F+6,2)}")
    for i in range(4, 16, 2):
        A(f"v_pk_add_f32 v[10:11], v[10:11], {vr(F+2*i,2)}")
        A(f"v_pk_add_f32 v[12:13], v[12:13], {vr(F+2*i+2,2)}")
    A("v_pk_add_f32 v[10:11], v[10:11], v[12:13]")
    A("v_add_f32 v10, v10, v11")
    xhalf_sum(A, 10, 12, 13)
    A(f"v_mul_f32 v10, {f2u(-1.0/64):#x}, v10")
    A("v_mov_b32 v11, v10")
    for i in range(16):
        A(f"v_pk_add_f32 {vr(F+2*i,2)}, {vr(F+2*i,2)}, v[10:11]")
    A(f"v_pk_mul_f32 v[10:11], {vr(F,2)}, {vr(F,2)}")
    A(f"v_pk_mul_f32 v[12:13], {vr(F+2,2)}, {vr(F+2,2)}")
    for i in range(2, 16, 2):
        A(f"v_pk_fma_f32 v[10:11], {vr(F+2*i,2)}, {vr(F+2*i,2)}, v[10:11]")
        A(f"v_pk_fma_f32 v[12:13], {vr(F+2*i+2,2)}, {vr(F+2*i+2,2)}, v[12:13]")
    A("v_pk_add_f32 v[10:11], v[10:11], v[12:13]")
    A("v_add_f32 v10, v10, v11")
    xhalf_sum(A, 10, 12, 13)
    A(f"v_mul_f32 v10, {f2u(1.0/64):#x}, v10")
    bfround(A, 10)
    A(f"v_add_f32 v10, {f2u(1e-5):#x}, v10")
    bfround(A, 10)
    A("v_sqrt_f32 v10, v10")
    A("s_nop 0")
    bfround(A, 10)
    A("v_rcp_f32 v10, v10")
    A("s_nop 0")
    A("v_mov_b32 v11, v10")
    A("s_waitcnt vmcnt(0)")
    mf = []
    for a in range(2):
        for b in range(2):
            d = M + 32*b + 16*a
            for j in range(4):
                c = "0" if j == 0 else vr(d, 16)
                mf.append(f"v_mfma_f32_32x32x16_bf16 {vr(d,16)}, {vr(WQ+16*a+4*j,4)}, {vr(WK+16*b+4*j,4)}, {c}")
    va = []
    for i in range(16):
        va.append(f"v_pk_mul_f32 {vr(F+2*i,2)}, {vr(F+2*i,2)}, v[10:11]")
    for i in range(16):
        va.append(f"v_cvt_pk_bf16_f32 v{HB+i}, v{F+2*i}, v{F+2*i+1}")
    va.append(f"v_and_b32 v12, 0xffff, v{HB+15}")
    va.append("v_or_b32 v12, 0x3f800000, v12")
    va.append(f"v_mov_b32 v224, v{HB+12}")
    va.append(f"v_mov_b32 v225, v{HB+13}")
    va.append(f"v_mov_b32 v226, v{HB+14}")
    va.append(f"v_cndmask_b32 v227, v{HB+15}, v12, s[40:41]")
    for j in range(4):
        if j:
            va.append(f"v_xor_b32 v{12+j}, {32*j}, v8")
        src = vr(HB+4*j, 4) if j < 3 else "v[224:227]"
        va.append(f"buffer_store_dwordx4 {src}, v{8 if j == 0 else 12+j}, s[28:31], s13 offen")
    for i in range(16):
        va.append(f"v_cvt_pk_f16_f32 v{HH+i}, v{F+2*i}, v{F+2*i+1}")
    for j in range(4):
        va.append(f"buffer_store_dwordx4 {vr(HH+4*j,4)}, v5, s[32:35], s13 offen offset:{32*j}")
    A.many(interleave(va, mf, 0, 4))
    A("s_nop 7")
    A("s_nop 7")
    for b in range(2):
        for j in range(4):
            s = M + 32*b + 16*(j >> 1) + 8*(j & 1)
            for k in range(4):
                A(f"v_cvt_pk_bf16_f32 v{MT+16*b+4*j+k}, v{s+2*k}, v{s+2*k+1}")
    A("s_nop 1")
    for b in range(2):
        for j in range(4):
            c = "0" if j == 0 else vr(QT+16*b, 16)
            A(f"v_mfma_f32_32x32x16_bf16 {vr(QT+16*b,16)}, {vr(MT+16*b+4*j,4)}, {vr(HB+4*j,4)}, {c}")
    A("s_nop 7")
    A("s_nop 7")
    A(f"v_pk_mul_f32 v[10:11], {vr(QT,2)}, {vr(QT,2)}")
    A(f"v_pk_mul_f32 v[12:13], {vr(QT+2,2)}, {vr(QT+2,2)}")
    for i in range(2, 16, 2):
        A(f"v_pk_fma_f32 v[10:11], {vr(QT+2*i,2)}, {vr(QT+2*i,2)}, v[10:11]")
        A(f"v_pk_fma_f32 v[12:13], {vr(QT+2*i+2,2)}, {vr(QT+2*i+2,2)}, v[12:13]")
    A("v_pk_add_f32 v[10:11], v[10:11], v[12:13]")
    A("v_add_f32 v10, v10, v11")
    xhalf_sum(A, 10, 12, 13)
    A("v_sqrt_f32 v10, v10")
    A(f"v_mov_b32 v12, v{QT+31}")
    A(f"v_mov_b32 v13, v{QT+31}")
    A(f"s_mov_b32 s42, {f2u(LOG2E/8):#x}")
    A(f"s_mov_b32 s43, {f2u(LOG2E/8):#x}")
    A("v_permlane32_swap_b32 v12, v13")
    A(f"v_mul_f32 v10, {f2u(-LOG2E):#x}, v10")
    A(f"v_add_f32 v10, {f2u(64.0):#x}, v10")
    A(f"v_mul_f32 v12, {f2u(-LOG2E/8):#x}, v13")
    A("v_mov_b32 v13, v12")
    for i in range(16):
        A(f"v_pk_fma_f32 {vr(QT+2*i,2)}, {vr(QT+2*i,2)}, s[42:43], v[12:13]")
    A(f"v_cndmask_b32 v{QT+31}, v{QT+31}, v10, s[40:41]")
    for i in range(16):
        A(f"v_cvt_pk_bf16_f32 v{X+i}, v{QT+2*i}, v{QT+2*i+1}")
    for j in range(4):
        A(f"buffer_store_dwordx4 {vr(X+4*j,4)}, v9, s[36:39], s13 offen offset:{1024*j}")
    A("s_endpgm")

def gen_sort(A):
    A("K1_SORT:")
    A("s_load_dwordx4 s[4:7], s[0:1], 8")
    A("s_load_dwordx2 s[8:9], s[0:1], 88")
    A("v_lshlrev_b32 v1, 4, v0")
    A("v_lshlrev_b32 v2, 3, v0")
    A("v_mov_b32 v4, 0")
    A("v_mov_b32 v5, 0")
    A("ds_write_b64 v2, v[4:5]")
    A(f"s_mul_i32 s3, s2, {CH*4}")
    A("s_add_u32 s10, s3, 0x2000")
    A("s_add_u32 s11, s3, 0x4000")
    A("s_waitcnt lgkmcnt(0)")
    srd(A, 12, 6, 0, E * 4)
    srd(A, 16, 4, 0, E * 4)
    D = 8; S = 20; R = 32; B = 44
    A(f"buffer_load_dwordx4 {vr(D,4)}, v1, s[12:15], s3 offen")
    A(f"buffer_load_dwordx4 {vr(D+4,4)}, v1, s[12:15], s10 offen")
    A(f"buffer_load_dwordx2 {vr(D+8,2)}, v2, s[12:15], s11 offen")
    A(f"buffer_load_dwordx4 {vr(S,4)}, v1, s[16:19], s3 offen")
    A(f"buffer_load_dwordx4 {vr(S+4,4)}, v1, s[16:19], s10 offen")
    A(f"buffer_load_dwordx2 {vr(S+8,2)}, v2, s[16:19], s11 offen")
    srd(A, 20, 8, WS_E, E * 4)
    srd(A, 24, 8, WS_T, NCH * 4096)
    A("v_mov_b32 v6, 1")
    A("s_mov_b32 s28, 52429")
    A("s_barrier")
    A("s_waitcnt vmcnt(3)")
    for i in range(10):
        A(f"v_mul_u32_u24 v{B+i}, s28, v{D+i}")
        A(f"v_lshrrev_b32 v{B+i}, 19, v{B+i}")
        A(f"v_mad_i32_i24 v{D+i}, v{B+i}, -10, v{D+i}")
        A(f"v_lshlrev_b32 v{B+i}, 2, v{B+i}")
        A(f"ds_add_rtn_u32 v{R+i}, v{B+i}, v6")
    A("s_waitcnt vmcnt(0)")
    for i in range(10):
        A(f"v_lshl_or_b32 v{S+i}, v{D+i}, 18, v{S+i}")
    A("s_waitcnt lgkmcnt(0)")
    A("s_barrier")
    A("ds_read_b64 v[4:5], v2")
    A("v_lshrrev_b32 v3, 6, v0")
    A("v_lshlrev_b32 v7, 2, v3")
    A("s_waitcnt lgkmcnt(0)")
    A("v_add_u32 v56, v4, v5")
    A("v_mov_b32 v57, v56")
    for sh in (1, 2, 4, 8):
        A("s_nop 1")
        A(f"v_add_u32_dpp v57, v57, v57 row_shr:{sh} row_mask:0xf bank_mask:0xf bound_ctrl:0")
    A("s_nop 1")
    A("v_add_u32_dpp v57, v57, v57 row_bcast:15 row_mask:0xa bank_mask:0xf")
    A("s_nop 1")
    A("v_add_u32_dpp v57, v57, v57 row_bcast:31 row_mask:0xc bank_mask:0xf")
    A("s_nop 0")
    A("v_readlane_b32 s29, v57, 63")
    A("s_nop 3")
    A("v_mov_b32 v58, s29")
    WSUM = 4096 + CH * 4
    A(f"ds_write_b32 v7, v58 offset:{WSUM}")
    A("v_mov_b32 v59, 0")
    A("s_waitcnt lgkmcnt(0)")
    A("s_barrier")
    A(f"ds_read_b128 v[60:63], v59 offset:{WSUM}")
    A(f"ds_read_b128 v[64:67], v59 offset:{WSUM+16}")
    A("v_sub_u32 v57, v57, v56")
    A("s_waitcnt lgkmcnt(0)")
    for k in range(7):
        A(f"v_cmp_lt_u32 vcc, {k}, v3")
        A("s_nop 1")
        A(f"v_cndmask_b32 v58, 0, v{60+k}, vcc")
        A("v_add_u32 v57, v57, v58")
    A("v_add_u32 v58, v57, v4")
    A("v_lshl_or_b32 v60, v4, 16, v57")
    A("v_lshl_or_b32 v61, v5, 16, v58")
    A("s_lshl_b32 s29, s2, 12")
    A("buffer_store_dwordx2 v[60:61], v2, s[24:27], s29 offen")
    A("v_lshlrev_b32 v62, 2, v57")
    A("v_lshlrev_b32 v63, 2, v58")
    A("ds_write_b64 v2, v[62:63]")
    A("s_waitcnt lgkmcnt(0)")
    A("s_barrier")
    for i in range(10):
        A(f"ds_read_b32 v{D+i}, v{B+i}")
    for i in range(10):
        A(f"s_waitcnt lgkmcnt({9})" if i == 0 else f"s_waitcnt lgkmcnt(9)")
        A(f"v_lshl_add_u32 v{D+i}, v{R+i}, 2, v{D+i}")
        A(f"ds_write_b32 v{D+i}, v{S+i} offset:4096")
    A("s_waitcnt lgkmcnt(0)")
    A("s_barrier")
    A(f"ds_read_b128 v[8:11], v1 offset:4096")
    A(f"ds_read_b128 v[12:15], v1 offset:{4096+8192}")
    A(f"ds_read_b64 v[16:17], v2 offset:{4096+16384}")
    A("s_waitcnt lgkmcnt(2)")
    A("buffer_store_dwordx4 v[8:11], v1, s[20:23], s3 offen")
    A("s_waitcnt lgkmcnt(1)")
    A("buffer_store_dwordx4 v[12:15], v1, s[20:23], s10 offen")
    A("s_waitcnt lgkmcnt(0)")
    A("buffer_store_dwordx2 v[16:17], v2, s[20:23], s11 offen")
    A("K1_END:")
    A("s_endpgm")

def gen_k1(A):
    kernel_begin(A, "k1_kernel")
    A(f"s_cmp_ge_u32 s2, {K1_GRID}")
    A("s_cbranch_scc1 K1_END")
    A(f"s_cmp_lt_u32 s2, {NCH}")
    A("s_cbranch_scc1 K1_SORT")
    gen_ln(A)
    gen_sort(A)
    return dict(name="k1_kernel", grid=K1_GRID, block=512, lds=K1_LDS, vgpr=228, sgpr=48)
```

```python
from common import *

K2_NWG = 252
K2_GRID = 253
K2_LDS = 163840
T3_REG = 24576
T2_BASE = 4 * T3_REG
T2_REG = 16384
NT = 20

KA = 2; VA = 6; IDX = 10; DV = 11
S0 = 16; KF = 48; VF = 64; O = 80; Q3 = 176; Q2 = 196

def frag_addrs(A, lane, sbase, t0, t1):
    A(f"v_and_b32 v{t0}, 2, v{lane}")
    A(f"v_lshlrev_b32 v{t0}, 1, v{t0}")
    A(f"v_bfe_u32 v{t1}, v{lane}, 2, 2")
    A(f"v_or_b32 v{t0}, v{t0}, v{t1}")
    A(f"v_lshrrev_b32 v{t1}, 5, v{lane}")
    A(f"v_xor_b32 v{t0}, v{t0}, v{t1}")
    A(f"v_and_b32 v{t1}, 31, v{lane}")
    A(f"v_lshlrev_b32 v{t1}, 7, v{t1}")
    A(f"v_lshl_add_u32 v{t0}, v{t0}, 4, v{t1}")
    A(f"v_add_u32 v{KA}, s{sbase}, v{t0}")
    for j in range(1, 4):
        A(f"v_xor_b32 v{KA+j}, {32*j}, v{KA}")
    A(f"v_lshrrev_b32 v{t0}, 5, v{lane}")
    A(f"v_bfe_u32 v{t1}, v{lane}, 2, 2")
    A(f"v_lshl_add_u32 v{VA}, v{t0}, 3, v{t1}")
    A(f"v_lshlrev_b32 v{VA}, 7, v{VA}")
    A(f"v_bfe_u32 v{t1}, v{lane}, 4, 1")
    A(f"v_xor_b32 v{t0}, v{t0}, v{t1}")
    A(f"v_lshl_add_u32 v{VA}, v{t0}, 5, v{VA}")
    A(f"v_bfe_u32 v{t0}, v{lane}, 3, 1")
    A(f"v_lshl_add_u32 v{VA}, v{t0}, 6, v{VA}")
    A(f"v_and_b32 v{t0}, 3, v{lane}")
    A(f"v_lshl_add_u32 v{VA}, v{t0}, 3, v{VA}")
    A(f"v_add_u32 v{VA}, s{sbase}, v{VA}")
    A(f"v_xor_b32 v{VA+1}, 16, v{VA}")
    A(f"v_add_u32 v{VA+1}, 0x200, v{VA+1}")
    A(f"v_xor_b32 v{VA+2}, 64, v{VA}")
    A(f"v_xor_b32 v{VA+3}, 64, v{VA+1}")
    A(f"v_mov_b32 v{IDX}, 0xdddddddd")

def dma(slot, srdG=8, sbase=36, soff=37):
    L = [f"s_add_u32 m0, s{sbase}, {slot*4096:#x}" if slot else f"s_mov_b32 m0, s{sbase}"]
    ld = [f"buffer_load_dwordx4 v{DV}, s[{srdG}:{srdG+3}], s{soff} offen offset:{1024*i} lds" for i in range(4)]
    return L, ld, [f"s_add_u32 s{soff}, s{soff}, 0x1000"]

def dma_now(A, slot):
    a, b, c = dma(slot)
    A.many(a); A("s_nop 0"); A.many(b); A.many(c)

def kread(j, slot):
    return f"ds_read_b128 {vr(KF+4*j,4)}, v{KA+j} offset:{slot*4096}"
def vread(ks, dh, slot):
    d = VF + 4*(2*ks + dh)
    return [f"ds_read_b64_tr_b16 {vr(d+2*i,2)}, v{VA+2*dh+i} offset:{slot*4096+2048*ks}" for i in range(2)]
def qk(sb, j, q):
    s = S0 + 16*sb
    c = "0" if j == 0 else vr(s, 16)
    return f"v_mfma_f32_32x32x16_bf16 {vr(s,16)}, {vr(KF+4*j,4)}, {vr(q+4*j,4)}, {c}"
def pv(sb, t, ks, dh):
    o = O + 32*t + 16*dh
    return f"v_smfmac_f32_32x32x32_bf16 {vr(o,16)}, {vr(VF+4*(2*ks+dh),4)}, {vr(S0+16*sb+8*ks,8)}, v{IDX}"

def gen_attn(A, T, Q, name):
    for j in range(4):
        A(kread(j, 0))
    A.many(vread(0, 0, 0))
    for r in list(range(O, O + 32*T)) + list(range(S0+16, S0+32)) + list(range(VF+4, VF+16)):
        A(f"v_mov_b32 v{r}, 0")
    A(f"s_mov_b32 s38, {NT//4}")
    A("s_waitcnt lgkmcnt(2)")
    for j in range(4):
        A(qk(0, j, Q))
    A("s_nop 7")
    A(".p2align 6")
    A(f"{name}_LOOP:")
    U = 4*T
    for u in range(U):
        k, t = divmod(u, T)
        tp = (u - 1) % T; tn = (u + 1) % T
        sb = u & 1; so = sb ^ 1
        M = [pv(so, tp, 0, 1), pv(so, tp, 1, 0), pv(so, tp, 1, 1)] + [qk(so, j, Q + 16*tn) for j in range(4)] + [pv(sb, t, 0, 0)]
        pre = [[] for _ in range(8)]
        post = [[] for _ in range(8)]
        if t == 0:
            post[0] += vread(0, 1, k); post[1] += vread(1, 0, k); post[2] += vread(1, 1, k)
            pre[7].append(f"s_waitcnt lgkmcnt({6 if T > 2 else 10})")
        if t == 1:
            pre[0].append("s_waitcnt vmcnt(8) lgkmcnt(0)" if T == 3 else "s_waitcnt lgkmcnt(4)")
            a, b, c = dma(k)
            pre[0] += a
            post[0] += b[0:1]; post[1] += b[1:2]; post[2] += b[2:4]
            pre[3] += c
        if t == T - 2:
            if T == 2:
                pre[3].append("s_waitcnt vmcnt(8)")
            for j in range(4):
                post[3+j].append(kread(j, (k + 1) % 4))
        if t == T - 1:
            pre[3].append("s_waitcnt lgkmcnt(0)")
            post[7] += vread(0, 0, (k + 1) % 4)
        if u == U - 1:
            pre[6].append("s_sub_u32 s38, s38, 1")
            pre[7].append("s_cmp_lg_u32 s38, 0")
        for g in range(8):
            A.many(pre[g]); A(M[g]); A.many(post[g])
            s = S0 + 16*sb + 2*g
            A(f"v_exp_f32 v{s}, v{s}")
            A(f"v_exp_f32 v{s+1}, v{s+1}")
    A(f"s_cbranch_scc1 {name}_LOOP")
    sb = (U - 1) & 1
    A(pv(sb, T-1, 0, 1)); A("s_nop 0"); A(pv(sb, T-1, 1, 0)); A(pv(sb, T-1, 1, 1))
    A("s_waitcnt vmcnt(0) lgkmcnt(0)")
    A(f"v_add_u32 v12, s36, v{DV}")
    order = list(range(8*(T-1))) + ["nop"] + list(range(8*(T-1), 8*T))
    for q in order:
        if q == "nop":
            if T == 2: A("s_nop 3")
            continue
        A(f"ds_write_b128 v12, {vr(O+4*q,4)} offset:{1024*q}")
    A("s_branch K2_EPI")

def gen_gather(A):
    LB = 3*4096
    T0, T1 = 12, 13
    C0, C1 = 14, 15
    EN = 76; PS = 108
    AC = 16; PR = 56; BUF = 76
    DI = 228
    AD0, AD1 = 233, 234
    LBV = 235
    TWO = 236
    AO = 237
    t0, t1, t2, t3 = 238, 239, 240, 241
    srd(A, 20, 4, WS_T, NCH * 4096)
    srd(A, 24, 4, WS_E, E * 4)
    A("s_lshl_b32 s43, s42, 2")
    A("s_add_u32 s53, s43, 0x40000")
    A(f"v_lshlrev_b32 v{t0}, 12, v0")
    A(f"buffer_load_dword v{T0}, v{t0}, s[20:23], s43 offen")
    A(f"buffer_load_dword v{T1}, v{t0}, s[20:23], s53 offen")
    srd(A, 28, 4, WS_H, N, stride=128)
    srd(A, 32, 4, WS_A, N * 128)
    srd(A, 60, 6, 0, N * 2)
    A(f"s_add_u32 s48, s36, {LB}")
    A(f"v_add_u32 v{t0}, s48, v{DV}")
    for r in range(4):
        A(f"v_mov_b32 v{AC+r}, -1")
    for i in range(3):
        A(f"ds_write_b128 v{t0}, {vr(AC,4)} offset:{64+1024*i}")
    A(f"v_mov_b32 v{LBV}, s48")
    A(f"v_and_b32 v{t1}, 15, v0")
    A(f"v_lshl_add_u32 v{t2}, v{t1}, 2, v{LBV}")
    A(f"v_lshl_add_u32 v{t3}, v{t1}, 8, v{LBV}")
    A(f"v_add_u32 v{t3}, 64, v{t3}")
    A(f"ds_write_b32 v{t2}, v{t3}")
    A(f"v_mov_b32 v{TWO}, 2")
    A("s_mul_i32 s49, s42, 20")
    A(f"v_bfe_u32 v{t0}, v0, 3, 1")
    A(f"v_lshlrev_b32 v{t1}, 1, v{t0}")
    for p in range(5):
        A(f"v_mov_b32 v{DI+p}, 0")
    for p in range(5):
        A(f"buffer_load_short_d16_hi v{DI+p}, v{t1}, s[60:63], s49 offen offset:{4*p}")
    A(f"v_lshlrev_b32 v{AO}, 7, v{t0}")
    A(f"v_and_b32 v{t0}, 7, v0")
    A(f"v_lshl_add_u32 v{AO}, v{t0}, 4, v{AO}")
    A(f"v_lshlrev_b32 v{PR+1}, 4, v{t0}")
    A(f"v_bfe_u32 v{t0}, v0, 4, 1")
    A(f"v_lshl_add_u32 v{AO}, v{t0}, 3, v{AO}")
    A(f"v_lshrrev_b32 v{t0}, 5, v0")
    A(f"v_lshl_add_u32 v{AO}, v{t0}, 2, v{AO}")
    A("s_mul_i32 s50, s42, 1280")
    for i in range(1, 10):
        A(f"v_mov_b32 v{PR+2*i+1}, v{PR+1}")
    A(f"v_mul_u32_u24 v{t0}, {CH}, v0")
    A(f"s_mov_b32 s51, {64*CH*4}")
    A("s_waitcnt vmcnt(5)")
    A(f"v_lshrrev_b32 v{C0}, 16, v{T0}")
    A(f"v_lshrrev_b32 v{C1}, 16, v{T1}")
    A(f"v_add_u32_sdwa v{AD0}, v{T0}, v{t0} dst_sel:DWORD dst_unused:UNUSED_PAD src0_sel:WORD_0 src1_sel:DWORD")
    A(f"v_add_u32_sdwa v{AD1}, v{T1}, v{t0} dst_sel:DWORD dst_unused:UNUSED_PAD src0_sel:WORD_0 src1_sel:DWORD")
    A(f"v_lshlrev_b32 v{AD0}, 2, v{AD0}")
    A(f"v_lshlrev_b32 v{AD1}, 2, v{AD1}")
    A(f"v_add_u32 v{t0}, v{C0}, v{C1}")
    A("G_ROUND:")
    for s, (ad, c, so) in enumerate(((AD0, C0, "0"), (AD1, C1, "s51"))):
        for g in range(4):
            A(f"v_cmpx_lt_i32 vcc, {4*g}, v{c}")
            A(f"buffer_load_dwordx4 {vr(EN+16*s+4*g,4)}, v{ad}, s[24:27], {so} offen offset:{16*g}")
        A("s_mov_b64 exec, -1")
    A("s_nop 1")
    for sh in (1, 2, 4, 8):
        A("s_nop 1")
        A(f"v_add_u32_dpp v{t0}, v{t0}, v{t0} row_shr:{sh} row_mask:0xf bank_mask:0xf bound_ctrl:0")
    A("s_nop 1")
    A(f"v_add_u32_dpp v{t0}, v{t0}, v{t0} row_bcast:15 row_mask:0xa bank_mask:0xf")
    A("s_nop 1")
    A(f"v_add_u32_dpp v{t0}, v{t0}, v{t0} row_bcast:31 row_mask:0xc bank_mask:0xf")
    A("s_nop 0")
    A(f"v_readlane_b32 s52, v{t0}, 63")
    A(f"v_mov_b32 v{t0}, 0")
    A("s_cmp_gt_u32 s52, 860")
    A("s_cbranch_scc1 G_SLOW")
    for s, c in enumerate((C0, C1)):
        for k in range(16):
            if k % 4 == 0:
                A(f"s_waitcnt vmcnt({7 - 4*s - k//4})")
            A(f"v_cmpx_lt_i32 vcc, {k}, v{c}")
            if k >= 8 and k % 2 == 0:
                A(f"s_cbranch_execz G_A{s}")
            A(f"v_add_u32_sdwa v{t1}, v{EN+16*s+k}, v{LBV} dst_sel:DWORD dst_unused:UNUSED_PAD src0_sel:WORD_1 src1_sel:DWORD")
            A(f"ds_add_rtn_u32 v{PS+16*s+k}, v{t1}, v{TWO}")
        A(f"G_A{s}:")
        A("s_mov_b64 exec, -1")
    A("s_waitcnt vmcnt(0) lgkmcnt(0)")
    for s, c in enumerate((C0, C1)):
        for k in range(16):
            A(f"v_cmpx_lt_i32 vcc, {k}, v{c}")
            if k >= 8 and k % 2 == 0:
                A(f"s_cbranch_execz G_W{s}")
            A(f"ds_write_b16 v{PS+16*s+k}, v{EN+16*s+k}")
        A(f"G_W{s}:")
        A("s_mov_b64 exec, -1")
    A(f"v_max_i32 v{t1}, v{C0}, v{C1}")
    A(f"v_cmp_lt_i32 vcc, 16, v{t1}")
    A(f"v_subrev_u32 v{C0}, 16, v{C0}")
    A(f"v_subrev_u32 v{C1}, 16, v{C1}")
    A(f"v_add_u32 v{AD0}, 64, v{AD0}")
    A(f"v_add_u32 v{AD1}, 64, v{AD1}")
    A("s_waitcnt lgkmcnt(0)")
    A("s_cbranch_vccnz G_ROUND")
    A(f"ds_read_b32 v{t1}, v{t2}")
    A(f"v_lshrrev_b32 v{t0}, 3, v0")
    A(f"v_lshl_add_u32 v{LBV}, v{t0}, 1, v{LBV}")
    for i in range(10):
        A(f"ds_read_u16 v{PR+2*i}, v{LBV} offset:{64+256*i}")
    for r in range(40):
        A(f"v_mov_b32 v{AC+r}, 0")
    A("s_waitcnt lgkmcnt(10)")
    A(f"v_sub_u32 v{t1}, v{t1}, v{t3}")
    for sh in (1, 2, 4, 8):
        A("s_nop 1")
        A(f"v_max_u32_dpp v{t1}, v{t1}, v{t1} row_shr:{sh} row_mask:0xf bank_mask:0xf bound_ctrl:0")
    A("s_nop 0")
    A(f"v_readlane_b32 s52, v{t1}, 15")
    A("s_cmp_gt_u32 s52, 256")
    A("s_cbranch_scc1 G_SLOW")
    A("s_add_u32 s52, s52, 15")
    A("s_lshr_b32 s52, s52, 4")
    A("s_max_u32 s52, s52, 1")
    def loads(b, it_off):
        for i in range(10):
            A(f"s_waitcnt lgkmcnt(9)")
            A(f"buffer_load_dwordx4 {vr(BUF+40*b+4*i,4)}, {vr(PR+2*i,2)}, s[28:31], 0 idxen offen")
            A(f"ds_read_u16 v{PR+2*i}, v{LBV} offset:{64+256*i+16*it_off}")
    loads(0, 1)
    loads(1, 2)
    A("G_LOOP:")
    for j in range(3):
        A("s_cmp_gt_u32 s52, 2")
        A(f"s_cbranch_scc1 G_L{j}")
        A("s_waitcnt vmcnt(0)")
        A(f"s_branch G_C{j}")
        A(f"G_L{j}:")
        A("s_waitcnt lgkmcnt(0)")
        for i in range(10):
            A(f"buffer_load_dwordx4 {vr(BUF+40*((j+2)%3)+4*i,4)}, {vr(PR+2*i,2)}, s[28:31], 0 idxen offen")
            A(f"ds_read_u16 v{PR+2*i}, v{LBV} offset:{64+256*i+16*(3+j)}")
        A("s_waitcnt vmcnt(20)")
        A(f"G_C{j}:")
        for r in range(40):
            A(f"v_pk_add_f16 v{AC+r}, v{AC+r}, v{BUF+40*j+r}")
        A("s_sub_u32 s52, s52, 1")
        A("s_cmp_eq_u32 s52, 0")
        A("s_cbranch_scc1 G_RED")
    A(f"v_add_u32 v{LBV}, 48, v{LBV}")
    A("s_branch G_LOOP")
    A("G_RED:")
    for i in range(10):
        A(f"v_permlane32_swap_b32 v{AC+4*i}, v{AC+4*i+1}")
        A(f"v_permlane32_swap_b32 v{AC+4*i+2}, v{AC+4*i+3}")
    for i in range(10):
        A(f"v_pk_add_f16 v{AC+4*i}, v{AC+4*i}, v{AC+4*i+1}")
        A(f"v_pk_add_f16 v{AC+4*i+2}, v{AC+4*i+2}, v{AC+4*i+3}")
    for i in range(10):
        A(f"v_permlane16_swap_b32 v{AC+4*i}, v{AC+4*i+2}")
    for i in range(10):
        A(f"v_pk_add_f16 v{AC+4*i}, v{AC+4*i}, v{AC+4*i+2}")
    for p in range(5):
        x, y, t = AC+8*p, AC+8*p+4, AC+8*p+1
        A(f"v_mov_b32_dpp v{t}, v{x} row_ror:8 row_mask:0xf bank_mask:0x3")
    for p in range(5):
        x, y, t = AC+8*p, AC+8*p+4, AC+8*p+1
        A(f"v_mov_b32_dpp v{t}, v{y} row_ror:8 row_mask:0xf bank_mask:0xc")
        A(f"v_mov_b32_dpp v{x}, v{y} quad_perm:[0,1,2,3] row_mask:0xf bank_mask:0xc")
    for p in range(5):
        x, t = AC+8*p, AC+8*p+1
        A(f"v_pk_add_f16 v{x}, v{x}, v{t}")
    for p in range(5):
        x = AC+8*p
        A(f"v_fma_mix_f32 v{x+2}, v{x}, v{DI+p}, 0 op_sel:[0,0,0] op_sel_hi:[1,0,0]")
        A(f"v_fma_mix_f32 v{x+3}, v{x}, v{DI+p}, 0 op_sel:[1,0,0] op_sel_hi:[1,0,0]")
    A("G_FIN:")
    for p in range(5):
        x = AC+8*p
        A(f"v_cvt_pk_bf16_f32 v{x}, v{x+2}, v{x+3}")
        A(f"buffer_store_dword v{x}, v{AO}, s[32:35], s50 offen offset:{256*p}")
    A("s_waitcnt lgkmcnt(0)")
    A("s_branch K2_T2")
    A("G_SLOW:")
    A("s_waitcnt vmcnt(0) lgkmcnt(0)")
    A(f"v_add_u32 v{t0}, s48, v{DV}")
    for r in range(4):
        A(f"v_mov_b32 v{AC+r}, 0")
    for i in range(3):
        A(f"ds_write_b128 v{t0}, {vr(AC,4)} offset:{1024*i}")
    A(f"v_lshrrev_b32 v{t0}, 3, v0")
    A(f"v_lshlrev_b32 v{t1}, 2, v{t0}")
    A(f"v_lshlrev_b32 v{t2}, 1, v{PR+1}")
    A(f"v_add_u32 v{t2}, s48, v{t2}")
    A("s_mov_b32 s52, 0")
    A("G_SC:")
    A("s_cmp_lg_u32 s52, 64")
    A("s_cbranch_scc1 G_SC1")
    A(f"v_mov_b32 v{T0}, v{T1}")
    A("G_SC1:")
    A("s_and_b32 s53, s52, 63")
    A("s_nop 3")
    A(f"v_readlane_b32 s54, v{T0}, s53")
    A(f"s_mul_i32 s55, s52, {CH}")
    A("s_and_b32 s56, s54, 0xffff")
    A("s_add_u32 s55, s55, s56")
    A("s_lshl_b32 s55, s55, 2")
    A("s_lshr_b32 s54, s54, 16")
    A("G_SI:")
    A("s_cmp_lt_i32 s54, 1")
    A("s_cbranch_scc1 G_SN")
    A(f"v_cmpx_gt_i32 vcc, s54, v{t0}")
    A(f"buffer_load_dword v{t3}, v{t1}, s[24:27], s55 offen")
    A("s_waitcnt vmcnt(0)")
    A(f"v_and_b32 v{PR}, 0xffff, v{t3}")
    A(f"v_lshrrev_b32 v{t3}, 16, v{t3}")
    A(f"buffer_load_dwordx4 {vr(BUF,4)}, {vr(PR,2)}, s[28:31], 0 idxen offen")
    A(f"v_lshl_add_u32 v{t3}, v{t3}, 6, v{t2}")
    A("s_waitcnt vmcnt(0)")
    for r in range(4):
        A(f"v_cvt_f32_f16 v{BUF+4+2*r}, v{BUF+r}")
        A(f"v_cvt_f32_f16_sdwa v{BUF+5+2*r}, v{BUF+r} dst_sel:DWORD dst_unused:UNUSED_PAD src0_sel:WORD_1")
    for r in range(8):
        A(f"ds_add_f32 v{t3}, v{BUF+4+r} offset:{4*r}")
    A("s_waitcnt lgkmcnt(0)")
    A("s_mov_b64 exec, -1")
    A("s_sub_u32 s54, s54, 8")
    A("s_add_u32 s55, s55, 32")
    A("s_branch G_SI")
    A("G_SN:")
    A("s_add_u32 s52, s52, 1")
    A(f"s_cmp_lt_u32 s52, {NCH}")
    A("s_cbranch_scc1 G_SC")
    A(f"v_lshl_add_u32 v{t0}, v{AO}, 1, s48")
    for p in range(5):
        A(f"ds_read_b64 {vr(AC+8*p+2,2)}, v{t0} offset:{512*p}")
    A("s_waitcnt lgkmcnt(0)")
    for p in range(5):
        x = AC+8*p
        A(f"v_mul_f32 v{x+2}, v{x+2}, v{DI+p}")
        A(f"v_mul_f32 v{x+3}, v{x+3}, v{DI+p}")
    A("s_branch G_FIN")

def gen_wprep(A):
    A("K2_WPREP:")
    A("s_load_dwordx2 s[8:9], s[0:1], 32")
    A("s_load_dwordx4 s[12:15], s[0:1], 56")
    A("v_and_b32 v1, 31, v0")
    A("v_lshrrev_b32 v2, 5, v0")
    A("v_and_b32 v3, 0x13, v1")
    A("v_and_b32 v4, 4, v1")
    A("v_lshl_or_b32 v3, v4, 1, v3")
    A("v_and_b32 v4, 8, v1")
    A("v_lshrrev_b32 v4, 1, v4")
    A("v_or_b32 v3, v3, v4")
    A("s_lshr_b32 s36, s3, 2")
    A("s_bfe_u32 s37, s3, 0x10001")
    A("s_and_b32 s38, s3, 1")
    A("s_cmp_eq_u32 s36, 0")
    A("s_cselect_b64 vcc, -1, 0")
    A("s_movk_i32 s39, 8064")
    A("s_cselect_b32 s39, 0x10000, s39")
    A("v_cndmask_b32 v4, v1, v3, vcc")
    A("v_lshlrev_b32 v4, 7, v4")
    A("v_lshl_add_u32 v4, v2, 4, v4")
    A("v_lshlrev_b32 v5, 4, v2")
    A("s_lshl_b32 s40, s37, 12")
    A("v_lshlrev_b32 v6, 10, v2")
    A("v_lshl_add_u32 v6, v3, 1, v6")
    A("s_lshl_b32 s41, s38, 6")
    A("s_add_u32 s42, s41, 0x1000")
    A("v_lshlrev_b32 v7, 4, v0")
    A("s_waitcnt lgkmcnt(0)")
    A("s_cmp_eq_u32 s36, 0")
    A("s_cselect_b32 s16, s8, s12")
    A("s_cselect_b32 s17, s9, s13")
    A("s_mov_b32 s18, 8192")
    A("s_mov_b32 s19, 0x20000")
    srd(A, 20, 14, 0, 8192)
    srd(A, 24, 4, WS_W, 16384)
    AF, A2, BF, D = 16, 32, 48, 64
    for j in range(4):
        A(f"buffer_load_dwordx4 {vr(AF+4*j,4)}, v4, s[16:19], s40 offen offset:{32*j}")
        A(f"buffer_load_dwordx4 {vr(A2+4*j,4)}, v5, s[16:19], s39 offen offset:{32*j}")
    for hi in range(2):
        for j in range(4):
            for k in range(4):
                jj = 2*k + hi
                A(f"buffer_load_ushort v{BF+4*j+k+32*hi}, v6, s[20:23], {'s41' if j < 2 else 's42'} offen offset:{(16*(j&1)+jj)*128}")
    A("s_waitcnt vmcnt(0)")
    for r in range(16):
        A(f"v_lshl_or_b32 v{BF+r}, v{BF+32+r}, 16, v{BF+r}")
    for r in range(16):
        A(f"v_xor_b32 v{A2+r}, 0x80008000, v{A2+r}")
    A("s_nop 1")
    for j in range(4):
        A(f"v_mfma_f32_32x32x16_bf16 {vr(D,16)}, {vr(AF+4*j,4)}, {vr(BF+4*j,4)}, {'0' if j == 0 else vr(D,16)}")
    for j in range(4):
        A(f"v_mfma_f32_32x32x16_bf16 {vr(D,16)}, {vr(A2+4*j,4)}, {vr(BF+4*j,4)}, {vr(D,16)}")
    A("s_lshl_b32 s43, s36, 13")
    A("s_lshl_b32 s44, s38, 12")
    A("s_add_u32 s43, s43, s44")
    A("s_lshl_b32 s44, s37, 11")
    A("s_add_u32 s43, s43, s44")
    A("s_nop 7")
    A("s_nop 7")
    for r in range(8):
        A(f"v_cvt_pk_bf16_f32 v{AF+r}, v{D+2*r}, v{D+2*r+1}")
    A(f"buffer_store_dwordx4 {vr(AF,4)}, v7, s[24:27], s43 offen")
    A(f"buffer_store_dwordx4 {vr(AF+4,4)}, v7, s[24:27], s43 offen offset:1024")
    A("s_endpgm")

def gen_k2(A):
    kernel_begin(A, "k2_kernel")
    A(f"s_cmp_ge_u32 s2, {K2_GRID}")
    A("s_cbranch_scc1 K2_END")
    A("s_load_dwordx2 s[4:5], s[0:1], 88")
    A("s_load_dwordx2 s[6:7], s[0:1], 24")
    A("v_lshrrev_b32 v1, 6, v0")
    A("v_and_b32 v0, 63, v0")
    A("v_readfirstlane_b32 s3, v1")
    A(f"s_cmp_eq_u32 s2, {K2_NWG}")
    A("s_cbranch_scc1 K2_WPREP")
    A(f"v_lshlrev_b32 v{DV}, 4, v0")
    A("s_and_b32 s39, s3, 3")
    A("s_lshr_b32 s40, s2, 2")
    A("s_mul_i32 s40, s40, 5")
    A("s_and_b32 s41, s2, 3")
    A("s_lshl_b32 s37, s41, 2")
    A("s_add_u32 s37, s37, s39")
    A(f"s_mul_i32 s37, s37, {NT*4096}")
    A(f"s_add_u32 s10, s37, {NT*4096}")
    A(f"s_min_u32 s10, s10, {N*128}")
    A("s_mov_b32 s11, 0x20000")
    A(f"s_mul_i32 s36, s39, {T3_REG}")
    A(f"s_mul_i32 s42, s39, {T2_REG}")
    A(f"s_add_u32 s42, s42, {T2_BASE}")
    A("s_lshl_b32 s43, s40, 12")
    A("s_cmp_ge_u32 s3, 4")
    A("s_cselect_b32 s36, s42, s36")
    A("s_waitcnt lgkmcnt(0)")
    A("s_mov_b32 s8, s4")
    A("s_mov_b32 s9, s5")
    srd(A, 12, 4, WS_Q, NQT * 4096)
    A("s_cmp_ge_u32 s3, 4")
    A("s_cbranch_scc1 K2_G")
    dma_now(A, 0)
    for t in range(3):
        for j in range(4):
            A(f"buffer_load_dwordx4 {vr(Q3+16*t+4*j,4)}, v{DV}, s[12:15], s43 offen offset:{1024*j}")
        if t < 2:
            A("s_add_u32 s43, s43, 0x1000")
    for s in range(1, 4):
        dma_now(A, s)
    frag_addrs(A, 0, 36, 12, 13)
    A("s_waitcnt vmcnt(12)")
    gen_attn(A, 3, Q3, "K2A")
    A("K2_G:")
    A("s_add_u32 s43, s43, 0x3000")
    for t in range(2):
        for j in range(4):
            A(f"buffer_load_dwordx4 {vr(Q2+16*t+4*j,4)}, v{DV}, s[12:15], s43 offen offset:{1024*j}")
        if t < 1:
            A("s_add_u32 s43, s43, 0x1000")
    for s in range(3):
        dma_now(A, s)
    A("s_lshl_b32 s42, s2, 2")
    A("s_add_u32 s42, s42, s39")
    A("s_cmp_lt_u32 s42, 1000")
    A("s_cbranch_scc1 K2_GG")
    A("s_waitcnt vmcnt(0)")
    A("s_branch K2_T2")
    A("K2_GG:")
    gen_gather(A)
    A("K2_T2:")
    dma_now(A, 3)
    frag_addrs(A, 0, 36, 12, 13)
    gen_attn(A, 2, Q2, "K2B")
    A("K2_EPI:")
    srd(A, 16, 4, WS_P, 4 * PSTRIDE)
    A("s_lshl_b32 s42, s3, 10")
    A(f"v_add_u32 v12, s42, v{DV}")
    A("v_add_u32 v13, 0x10000, v12")
    A("v_add_u32 v14, 0x20000, v12")
    A(f"s_mul_i32 s43, s41, {PSTRIDE}")
    A("s_lshl_b32 s44, s40, 13")
    A("s_add_u32 s43, s43, s44")
    A("s_waitcnt lgkmcnt(0)")
    A("s_barrier")
    R = 16
    for t in range(5):
        for v in range(4):
            off = v*T3_REG + t*8192 if t < 3 else T2_BASE + v*T2_REG + (t-3)*8192
            A(f"ds_read_b128 {vr(R+16*t+4*v,4)}, v{12+(off>>16)} offset:{off & 0xffff}")
        if t == 2:
            pass
    for t in range(5):
        A(f"s_waitcnt lgkmcnt({min(15, 16-4*t)})" if t else "s_waitcnt lgkmcnt(15)")
        b = R + 16*t
        A(f"v_pk_add_f32 {vr(b,2)}, {vr(b,2)}, {vr(b+4,2)}")
        A(f"v_pk_add_f32 {vr(b+2,2)}, {vr(b+2,2)}, {vr(b+6,2)}")
        A(f"v_pk_add_f32 {vr(b+8,2)}, {vr(b+8,2)}, {vr(b+12,2)}")
        A(f"v_pk_add_f32 {vr(b+10,2)}, {vr(b+10,2)}, {vr(b+14,2)}")
        A(f"v_pk_add_f32 {vr(b,2)}, {vr(b,2)}, {vr(b+8,2)}")
        A(f"v_pk_add_f32 {vr(b+2,2)}, {vr(b+2,2)}, {vr(b+10,2)}")
        A(f"buffer_store_dwordx4 {vr(b,4)}, v12, s[16:19], s43 offen")
        if t < 4:
            A("s_add_u32 s43, s43, 0x2000")
    A("K2_END:")
    A("s_endpgm")
    gen_wprep(A)
    return dict(name="k2_kernel", grid=K2_GRID, block=512, lds=K2_LDS, vgpr=256, sgpr=64)
```

```python
from common import *
import k2
from k2 import KA, VA, IDX, DV, S0, KF, VF, O, frag_addrs, kread, vread, qk, pv

K3_LDS = 32768 + 1024

def gen_k3(A):
    kernel_begin(A, "k3_kernel")
    A(f"s_cmp_ge_u32 s2, {NQT}")
    A("s_cbranch_scc1 K3_END")
    A("s_load_dwordx2 s[4:5], s[0:1], 88")
    A("s_load_dwordx2 s[6:7], s[0:1], 0")
    A("s_load_dwordx2 s[34:35], s[0:1], 72")
    A("v_lshrrev_b32 v1, 6, v0")
    A("v_and_b32 v0, 63, v0")
    A("v_readfirstlane_b32 s3, v1")
    A(f"v_lshlrev_b32 v{DV}, 4, v0")
    PO, LO, XO, WO = 128, 129, 130, 131
    PR = 132
    LR = 164
    AF = 168; XF = 172; WF = 176
    D = 192
    A(f"v_lshl_add_u32 v{PO}, v1, 11, v{DV}")
    A(f"v_lshl_add_u32 v{WO}, v1, 10, v{DV}")
    A(f"v_or_b32 v{LO}, 0x200, v{DV}")
    A(f"v_add_u32 v{LO}, {7*1024+12}, v{LO}")
    A("v_and_b32 v12, 31, v0")
    A("v_lshrrev_b32 v13, 5, v0")
    A(f"v_lshlrev_b32 v{XO}, 7, v12")
    A(f"v_lshl_add_u32 v{XO}, v1, 5, v{XO}")
    A(f"v_lshl_add_u32 v{XO}, v13, 4, v{XO}")
    A("s_lshl_b32 s40, s2, 13")
    A(f"s_add_u32 s41, s40, {PSTRIDE}")
    A(f"s_add_u32 s42, s40, {2*PSTRIDE}")
    A(f"s_add_u32 s43, s40, {3*PSTRIDE}")
    A("s_lshl_b32 s44, s2, 12")
    A("s_lshl_b32 s48, s2, 5")
    A("v_add_u32 v12, s48, v12")
    A("s_movk_i32 s45, 0x1000")
    A("s_movk_i32 s46, 0x2000")
    A("s_movk_i32 s47, 0x3000")
    A("s_waitcnt lgkmcnt(0)")
    srd(A, 16, 4, WS_P, 4 * PSTRIDE)
    for s in range(4):
        A(f"buffer_load_dword v{LR+s}, v{LO}, s[16:19], s{40+s} offen")
    for s in range(4):
        A(f"buffer_load_dwordx4 {vr(PR+8*s,4)}, v{PO}, s[16:19], s{40+s} offen")
        A(f"buffer_load_dwordx4 {vr(PR+8*s+4,4)}, v{PO}, s[16:19], s{40+s} offen offset:1024")
    srd(A, 20, 4, WS_W, 16384)
    srd(A, 24, 4, WS_A, N * 128)
    srd(A, 28, 6, 0, N * 128)
    for i in range(4):
        A(f"buffer_load_dwordx4 {vr(WF+4*i,4)}, v{WO}, s[20:23], {'0' if i == 0 else 's%d' % (44+i)} offen")
    A(f"buffer_load_dwordx4 {vr(AF,4)}, v{XO}, s[24:27], s44 offen")
    A(f"buffer_load_dwordx4 {vr(XF,4)}, v{XO}, s[28:31], s44 offen")
    srd(A, 52, 34, 0, N * 128)
    A(f"v_cmp_gt_u32 vcc, {N}, v12")
    A("s_mov_b64 s[50:51], vcc")
    A("s_waitcnt vmcnt(14)")
    A(f"v_add_f32 v{LR}, v{LR}, v{LR+1}")
    A(f"v_add_f32 v{LR+2}, v{LR+2}, v{LR+3}")
    A(f"v_add_f32 v{LR}, v{LR}, v{LR+2}")
    A(f"v_cmp_nle_f32 vcc, {f2u(2.0**-64):#x}, v{LR}")
    A("s_and_b64 s[48:49], vcc, s[50:51]")
    A(f"v_cmp_nge_f32 vcc, {f2u(2.0**100):#x}, v{LR}")
    A("s_and_b64 vcc, vcc, s[50:51]")
    A("s_or_b64 vcc, vcc, s[48:49]")
    A("s_cbranch_scc1 K3_FB")
    A("K3_COMMON:")
    A(f"v_rcp_f32 v{LR}, v{LR}")
    A("s_waitcnt vmcnt(6)")
    for i in range(4):
        A(f"v_pk_add_f32 {vr(PR+2*i,2)}, {vr(PR+2*i,2)}, {vr(PR+8+2*i,2)}")
        A(f"v_pk_add_f32 {vr(PR+16+2*i,2)}, {vr(PR+16+2*i,2)}, {vr(PR+24+2*i,2)}")
    A(f"v_mov_b32 v{LR+1}, v{LR}")
    for i in range(4):
        A(f"v_pk_add_f32 {vr(PR+2*i,2)}, {vr(PR+2*i,2)}, {vr(PR+16+2*i,2)}")
    for i in range(4):
        A(f"v_pk_mul_f32 {vr(PR+2*i,2)}, {vr(PR+2*i,2)}, {vr(LR,2)}")
    for i in range(4):
        A(f"v_cvt_pk_bf16_f32 v{PR+8+i}, v{PR+2*i}, v{PR+2*i+1}")
    A("s_waitcnt vmcnt(1)")
    A(f"v_mfma_f32_32x32x16_bf16 {vr(D,16)}, {vr(WF,4)}, {vr(AF,4)}, 0")
    A(f"v_mfma_f32_32x32x16_bf16 {vr(D+16,16)}, {vr(WF+4,4)}, {vr(AF,4)}, 0")
    A(f"v_mfma_f32_32x32x16_bf16 {vr(D,16)}, {vr(WF+8,4)}, {vr(PR+8,4)}, {vr(D,16)}")
    A(f"v_mfma_f32_32x32x16_bf16 {vr(D+16,16)}, {vr(WF+12,4)}, {vr(PR+8,4)}, {vr(D+16,16)}")
    A(f"v_lshl_add_u32 v12, v1, 13, v{DV}")
    A("s_mov_b32 s48, 0xffff0000")
    A("s_nop 9")
    for q in range(8):
        A(f"ds_write_b128 v12, {vr(D+4*q,4)} offset:{1024*q}")
    A("s_waitcnt vmcnt(0)")
    for i in range(4):
        A(f"v_lshlrev_b32 v{WF+2*i}, 16, v{XF+i}")
        A(f"v_and_b32 v{WF+2*i+1}, s48, v{XF+i}")
    A("s_waitcnt lgkmcnt(0)")
    A("s_barrier")
    for s in range(4):
        A(f"ds_read_b128 {vr(PR+8*s,4)}, v{PO} offset:{8192*s}")
        A(f"ds_read_b128 {vr(PR+8*s+4,4)}, v{PO} offset:{8192*s+1024}")
    A("s_waitcnt lgkmcnt(4)")
    for i in range(4):
        A(f"v_pk_add_f32 {vr(PR+2*i,2)}, {vr(PR+2*i,2)}, {vr(PR+8+2*i,2)}")
    A("s_waitcnt lgkmcnt(0)")
    for i in range(4):
        A(f"v_pk_add_f32 {vr(PR+16+2*i,2)}, {vr(PR+16+2*i,2)}, {vr(PR+24+2*i,2)}")
    for i in range(4):
        A(f"v_pk_add_f32 {vr(PR+2*i,2)}, {vr(PR+2*i,2)}, {vr(PR+16+2*i,2)}")
    for i in range(4):
        A(f"v_cvt_pk_bf16_f32 v{PR+8+i}, v{PR+2*i}, v{PR+2*i+1}")
    for i in range(4):
        A(f"v_lshlrev_b32 v{PR+2*i}, 16, v{PR+8+i}")
        A(f"v_and_b32 v{PR+2*i+1}, s48, v{PR+8+i}")
    for i in range(4):
        A(f"v_pk_add_f32 {vr(PR+2*i,2)}, {vr(PR+2*i,2)}, {vr(WF+2*i,2)}")
    for i in range(4):
        A(f"v_cvt_pk_bf16_f32 v{PR+8+i}, v{PR+2*i}, v{PR+2*i+1}")
    A(f"buffer_store_dwordx4 {vr(PR+8,4)}, v{XO}, s[52:55], s44 offen")
    A("K3_END:")
    A("s_endpgm")
    Q = 112; MX = 14; CI = S0 + 16
    A("K3_FB:")
    srd(A, 8, 4, WS_G, N * 128)
    srd(A, 12, 4, WS_Q, NQT * 4096)
    for j in range(4):
        A(f"buffer_load_dwordx4 {vr(Q+4*j,4)}, v{DV}, s[12:15], s44 offen offset:{1024*j}")
    A("s_lshl_b32 s36, s3, 12")
    frag_addrs(A, 0, 36, 12, 13)
    A("s_mov_b32 m0, s36")
    A(f"v_mov_b32 v{MX}, 0xff800000")
    A("v_cmp_lt_u32 vcc, 31, v0")
    A("s_waitcnt vmcnt(0)")
    A(f"v_and_b32 v12, 0xffff, v{Q+15}")
    A(f"v_cndmask_b32 v{Q+15}, v{Q+15}, v12, vcc")
    for ps in range(2):
        A("s_lshl_b32 s37, s3, 12")
        A(f"K3_P{ps}:")
        for i in range(4):
            A(f"buffer_load_dwordx4 v{DV}, s[8:11], s37 offen offset:{1024*i} lds")
        A("s_waitcnt vmcnt(0)")
        for j in range(4):
            A(kread(j, 0))
        if ps:
            for ks in range(2):
                for dh in range(2):
                    A.many(vread(ks, dh, 0))
        A("s_waitcnt lgkmcnt(0)")
        for j in range(4):
            c = ("0" if ps == 0 else vr(CI, 16)) if j == 0 else vr(S0, 16)
            A(f"v_mfma_f32_32x32x16_bf16 {vr(S0,16)}, {vr(KF+4*j,4)}, {vr(Q+4*j,4)}, {c}")
        A("s_nop 7")
        A("s_nop 7")
        A(f"s_cmp_eq_u32 s37, {(NQT-1)*4096}")
        for ks in range(2):
            if ks:
                A(f"s_cbranch_scc1 K3_S{ps}")
            if ps == 0:
                for r in range(4):
                    A(f"v_max3_f32 v{MX}, v{MX}, v{S0+8*ks+2*r}, v{S0+8*ks+2*r+1}")
            else:
                for r in range(8):
                    A(f"v_exp_f32 v{S0+8*ks+r}, v{S0+8*ks+r}")
                A("s_nop 2")
                A(pv(0, 0, ks, 0)); A(pv(0, 0, ks, 1))
        A(f"K3_S{ps}:")
        A("s_add_u32 s37, s37, 0x4000")
        A(f"s_cmp_lt_u32 s37, {NQT*4096}")
        A(f"s_cbranch_scc1 K3_P{ps}")
        if ps == 0:
            A(f"v_mov_b32 v12, v{MX}")
            A(f"v_mov_b32 v13, v{MX}")
            A("v_lshlrev_b32 v15, 2, v0")
            A("s_nop 0")
            A("v_permlane32_swap_b32 v12, v13")
            A("s_nop 1")
            A(f"v_max_f32 v{MX}, v12, v13")
            A("v_lshl_add_u32 v12, v1, 8, v15")
            A(f"ds_write_b32 v12, v{MX} offset:32768")
            A("s_waitcnt lgkmcnt(0)")
            A("s_barrier")
            for s in range(4):
                A(f"ds_read_b32 v{CI+s}, v15 offset:{32768+256*s}")
            A("s_waitcnt lgkmcnt(0)")
            A(f"v_max3_f32 v{MX}, v{CI}, v{CI+1}, v{CI+2}")
            A(f"v_max_f32 v{MX}, v{MX}, v{CI+3}")
            for r in range(16):
                A(f"v_sub_f32 v{CI+r}, 0, v{MX}")
            for r in range(32):
                A(f"v_mov_b32 v{O+r}, 0")
    A("s_nop 7")
    A("s_nop 7")
    A("s_barrier")
    A(f"v_lshl_add_u32 v12, v1, 13, v{DV}")
    for q in range(8):
        A(f"ds_write_b128 v12, {vr(O+4*q,4)} offset:{1024*q}")
    A("s_waitcnt lgkmcnt(0)")
    A("s_barrier")
    for s in range(4):
        A(f"ds_read_b128 {vr(PR+8*s,4)}, v{PO} offset:{8192*s}")
        A(f"ds_read_b128 {vr(PR+8*s+4,4)}, v{PO} offset:{8192*s+1024}")
        A(f"ds_read_b32 v{LR+s}, v{LO} offset:{8192*s}")
    A("s_waitcnt lgkmcnt(0)")
    A("s_barrier")
    A(f"v_add_f32 v{LR}, v{LR}, v{LR+1}")
    A(f"v_add_f32 v{LR+2}, v{LR+2}, v{LR+3}")
    A(f"v_add_f32 v{LR}, v{LR}, v{LR+2}")
    A("s_branch K3_COMMON")
    return dict(name="k3_kernel", grid=NQT, block=256, lds=K3_LDS, vgpr=224, sgpr=64)
```

```python
import sys, os
sys.path.insert(0, os.path.dirname(os.path.abspath(__file__)))
from common import *
import k1, k2, k3
NAME = "gather_scatter__hybrid_graph_tf_graphgps__graph"
def build(out):
    ref = open(f"cdna_kernels/{NAME}.s.ref").read().split("\n")
    hdr = [l for l in ref if l.startswith(";") and "@launch" not in l and "Override" not in l and "Harness parses" not in l]
    A = Asm()
    ks = [k1.gen_k1(A), k2.gen_k2(A), k3.gen_k3(A)]
    txt = "\n".join(hdr) + "\n"
    for k in ks:
        txt += f"; @launch kernel={k['name']} grid=({k['grid']},1,1) block=({k['block']},1,1) lds={k['lds']}\n"
    txt += '.amdgcn_target "amdgcn-amd-amdhsa--gfx950"\n.text\n' + A.text()
    txt += '.section .rodata,"a"\n'
    for k in ks:
        txt += descriptor(k['name'], k['vgpr'], k['sgpr'])
    open(out, "w").write(txt)
if __name__ == "__main__":
    build(sys.argv[1] if len(sys.argv) > 1 else f"cdna_kernels/{NAME}.s")
```

```python
N = 10000
E = 640000
NCH = 125
CH = 5120
NQT = 313
WS_G = 0x000000
WS_H = 0x140000
WS_Q = 0x280000
WS_A = 0x3C0000
WS_E = 0x500000
WS_T = 0x780000
WS_W = 0x800000
WS_P = 0x810000
PSTRIDE = 315 * 8192
LOG2E = 1.4426950408889634

import struct
import os
PROF = int(os.environ.get('PROF', '0'))
def f2u(x):
    return struct.unpack("<I", struct.pack("<f", x))[0]

class Asm:
    def __init__(self):
        self.L = []
    def __call__(self, s):
        for ln in s.split("\n"):
            ln = ln.strip()
            if ln:
                self.L.append(ln if ln.endswith(":") or ln.startswith(".") else "    " + ln)
    def many(self, lst):
        for s in lst:
            self(s)
    def text(self):
        return "\n".join(self.L) + "\n"

def vr(a, n=1):
    return f"v{a}" if n == 1 else f"v[{a}:{a+n-1}]"
def sr(a, n=1):
    return f"s{a}" if n == 1 else f"s[{a}:{a+n-1}]"

def srd(A, d, base, off, nbytes, stride=0):
    if off:
        A(f"s_add_u32 s{d}, s{base}, {off:#x}")
        A(f"s_addc_u32 s{d+1}, s{base+1}, 0")
    else:
        A(f"s_mov_b32 s{d}, s{base}")
        A(f"s_mov_b32 s{d+1}, s{base+1}")
    if stride:
        A(f"s_or_b32 s{d+1}, s{d+1}, {stride << 16:#x}")
    A(f"s_mov_b32 s{d+2}, {nbytes:#x}")
    A(f"s_mov_b32 s{d+3}, 0x20000")

def interleave(main, side, start=0, every=1):
    out = []
    si = 0
    for i, m in enumerate(main):
        out.append(m)
        if i >= start and (i - start) % every == 0 and si < len(side):
            out.append(side[si]); si += 1
    out += side[si:]
    return out

def kernel_begin(A, name):
    A(".p2align 8")
    A(f".globl {name}")
    A(f".type {name},@function")
    A(f"{name}:")

def descriptor(name, vgpr, sgpr, accum=None):
    if PROF:
        vgpr, sgpr = 256, 96
    if accum is None:
        accum = (vgpr + 3) // 4 * 4
    return f""".p2align 6
.amdhsa_kernel {name}
  .amdhsa_next_free_vgpr {vgpr}
  .amdhsa_next_free_sgpr {sgpr}
  .amdhsa_accum_offset {accum}
  .amdhsa_group_segment_fixed_size 0
  .amdhsa_kernarg_size 96
  .amdhsa_user_sgpr_count 2
  .amdhsa_user_sgpr_kernarg_segment_ptr 1
  .amdhsa_system_sgpr_workgroup_id_x 1
.end_amdhsa_kernel
"""

import os
PROF = int(os.environ.get("PROF", "0"))
WS_DBG = 0x1800000
def stamp(A, i):
    if PROF:
        A("s_waitcnt lgkmcnt(0)")
        A(f"s_memrealtime s[{64+2*i}:{65+2*i}]")
        A(f"s_memtime s[92:93]")
        A("s_waitcnt lgkmcnt(0)")
        A(f"s_mov_b32 s{65+2*i}, s92")
def stamp_init(A):
    if PROF:
        for i in range(8):
            A(f"s_mov_b32 s{64+2*i}, 0")
        stamp(A, 0)
def stamp_dump(A, kid, ws, wave, nw):
    if PROF:
        stamp(A, 7)
        srd(A, 84, ws, WS_DBG + kid * 0x80000, 0x80000)
        A(f"s_mul_i32 s88, s2, {nw}")
        A(f"s_add_u32 s88, s88, s{wave}")
        A("s_lshl_b32 s88, s88, 7")
        A("s_getreg_b32 s89, hwreg(HW_REG_HW_ID)")
        A("s_getreg_b32 s90, hwreg(HW_REG_XCC_ID)")
        A("s_mov_b64 exec, 1")
        A("v_mov_b32 v250, 0")
        for i in range(8):
            A(f"v_mov_b32 v{240+i}, s{64+2*i}")
        A("v_mov_b32 v248, s89")
        A("v_mov_b32 v249, s90")
        A("buffer_store_dwordx4 v[240:243], v250, s[84:87], s88 offen")
        A("buffer_store_dwordx4 v[244:247], v250, s[84:87], s88 offen offset:16")
        A("buffer_store_dwordx2 v[248:249], v250, s[84:87], s88 offen offset:32")
        for i in range(8):
            A(f"v_mov_b32 v{232+i}, s{65+2*i}")
        A("buffer_store_dwordx4 v[232:235], v250, s[84:87], s88 offen offset:64")
        A("buffer_store_dwordx4 v[236:239], v250, s[84:87], s88 offen offset:80")
```

```python
from common import *

K1_LNWG = 79
K1_GRID = NCH + K1_LNWG
K1_LDS = 4096 + CH * 4 + 64

def xhalf_sum(A, x, t0, t1):
    A(f"v_mov_b32 v{t0}, v{x}")
    A(f"v_mov_b32 v{t1}, v{x}")
    A("s_nop 1")
    A(f"v_permlane32_swap_b32 v{t0}, v{t1}")
    A("s_nop 1")
    A(f"v_add_f32 v{x}, v{t0}, v{t1}")

def bfround(A, x):
    A(f"v_cvt_pk_bf16_f32 v{x}, v{x}, v{x}")
    A(f"v_lshlrev_b32 v{x}, 16, v{x}")

def gen_ln(A):
    A("s_load_dwordx2 s[4:5], s[0:1], 0")
    A("s_load_dwordx4 s[8:11], s[0:1], 40")
    A("s_load_dwordx2 s[6:7], s[0:1], 88")
    A("v_lshrrev_b32 v1, 6, v0")
    A("v_and_b32 v2, 63, v0")
    A("v_readfirstlane_b32 s3, v1")
    A(f"s_sub_u32 s12, s2, {NCH}")
    A("s_cmp_ge_u32 s3, 4")
    A("s_cbranch_scc1 K1_END")
    A("s_lshl_b32 s12, s12, 2")
    A("s_add_u32 s12, s12, s3")
    A(f"s_cmp_ge_u32 s12, {NQT}")
    A("s_cbranch_scc1 K1_END")
    stamp_init(A)
    A("v_and_b32 v3, 31, v2")
    A("v_lshrrev_b32 v4, 5, v2")
    A("s_lshl_b32 s13, s12, 12")
    A("v_lshlrev_b32 v5, 7, v3")
    A("v_lshl_add_u32 v5, v4, 4, v5")
    A("v_and_b32 v6, 0x13, v3")
    A("v_and_b32 v7, 4, v3")
    A("v_lshl_or_b32 v6, v7, 1, v6")
    A("v_and_b32 v7, 8, v3")
    A("v_lshrrev_b32 v7, 1, v7")
    A("v_or_b32 v6, v6, v7")
    A("v_lshlrev_b32 v6, 7, v6")
    A("v_lshl_add_u32 v6, v4, 4, v6")
    A("s_waitcnt lgkmcnt(0)")
    srd(A, 16, 4, 0, N * 128)
    srd(A, 20, 8, 0, 8192)
    srd(A, 24, 10, 0, 8192)
    X = 16
    WQ = 32
    WK = 64
    F = 96
    M = 128
    HB = 192
    HH = 208
    MT = 32
    QT = 64
    for j in range(4):
        A(f"buffer_load_dwordx4 {vr(X+4*j,4)}, v5, s[16:19], s13 offen offset:{32*j}")
    A("s_movk_i32 s14, 0x1000")
    for a in range(2):
        so = "0" if a == 0 else "s14"
        for j in range(4):
            A(f"buffer_load_dwordx4 {vr(WQ+16*a+4*j,4)}, v6, s[20:23], {so} offen offset:{32*j}")
        for j in range(4):
            A(f"buffer_load_dwordx4 {vr(WK+16*a+4*j,4)}, v6, s[24:27], {so} offen offset:{32*j}")
    srd(A, 28, 6, WS_G, N * 128)
    srd(A, 32, 6, WS_H, N * 128)
    srd(A, 36, 6, WS_Q, NQT * 4096)
    A("v_and_b32 v7, 2, v3")
    A("v_lshlrev_b32 v7, 1, v7")
    A("v_bfe_u32 v8, v3, 2, 2")
    A("v_or_b32 v7, v7, v8")
    A("v_lshlrev_b32 v7, 4, v7")
    A("v_xor_b32 v8, v5, v7")
    A("v_lshlrev_b32 v9, 4, v2")
    A("v_cmp_eq_u32 s[40:41], 1, v4")
    A("s_mov_b32 s15, 0xffff0000")
    A("s_waitcnt vmcnt(16)")
    stamp(A, 1)
    for i in range(16):
        A(f"v_lshlrev_b32 v{F+2*i}, 16, v{X+i}")
        A(f"v_and_b32 v{F+2*i+1}, s15, v{X+i}")
    A(f"v_pk_add_f32 v[10:11], {vr(F,2)}, {vr(F+2,2)}")
    A(f"v_pk_add_f32 v[12:13], {vr(F+4,2)}, {vr(F+6,2)}")
    for i in range(4, 16, 2):
        A(f"v_pk_add_f32 v[10:11], v[10:11], {vr(F+2*i,2)}")
        A(f"v_pk_add_f32 v[12:13], v[12:13], {vr(F+2*i+2,2)}")
    A("v_pk_add_f32 v[10:11], v[10:11], v[12:13]")
    A("v_add_f32 v10, v10, v11")
    xhalf_sum(A, 10, 12, 13)
    A(f"v_mul_f32 v10, {f2u(-1.0/64):#x}, v10")
    A("v_mov_b32 v11, v10")
    for i in range(16):
        A(f"v_pk_add_f32 {vr(F+2*i,2)}, {vr(F+2*i,2)}, v[10:11]")
    A(f"v_pk_mul_f32 v[10:11], {vr(F,2)}, {vr(F,2)}")
    A(f"v_pk_mul_f32 v[12:13], {vr(F+2,2)}, {vr(F+2,2)}")
    for i in range(2, 16, 2):
        A(f"v_pk_fma_f32 v[10:11], {vr(F+2*i,2)}, {vr(F+2*i,2)}, v[10:11]")
        A(f"v_pk_fma_f32 v[12:13], {vr(F+2*i+2,2)}, {vr(F+2*i+2,2)}, v[12:13]")
    A("v_pk_add_f32 v[10:11], v[10:11], v[12:13]")
    A("v_add_f32 v10, v10, v11")
    xhalf_sum(A, 10, 12, 13)
    A(f"v_mul_f32 v10, {f2u(1.0/64):#x}, v10")
    bfround(A, 10)
    A(f"v_add_f32 v10, {f2u(1e-5):#x}, v10")
    bfround(A, 10)
    A("v_sqrt_f32 v10, v10")
    A("s_nop 0")
    bfround(A, 10)
    A("v_rcp_f32 v10, v10")
    A("s_nop 0")
    A("v_mov_b32 v11, v10")
    A("s_waitcnt vmcnt(0)")
    stamp(A, 2)
    mf = []
    for a in range(2):
        for b in range(2):
            d = M + 32*b + 16*a
            for j in range(4):
                c = "0" if j == 0 else vr(d, 16)
                mf.append(f"v_mfma_f32_32x32x16_bf16 {vr(d,16)}, {vr(WQ+16*a+4*j,4)}, {vr(WK+16*b+4*j,4)}, {c}")
    va = []
    for i in range(16):
        va.append(f"v_pk_mul_f32 {vr(F+2*i,2)}, {vr(F+2*i,2)}, v[10:11]")
    for i in range(16):
        va.append(f"v_cvt_pk_bf16_f32 v{HB+i}, v{F+2*i}, v{F+2*i+1}")
    va.append(f"v_and_b32 v12, 0xffff, v{HB+15}")
    va.append("v_or_b32 v12, 0x3f800000, v12")
    va.append(f"v_mov_b32 v224, v{HB+12}")
    va.append(f"v_mov_b32 v225, v{HB+13}")
    va.append(f"v_mov_b32 v226, v{HB+14}")
    va.append(f"v_cndmask_b32 v227, v{HB+15}, v12, s[40:41]")
    for j in range(4):
        if j:
            va.append(f"v_xor_b32 v{12+j}, {32*j}, v8")
        src = vr(HB+4*j, 4) if j < 3 else "v[224:227]"
        va.append(f"buffer_store_dwordx4 {src}, v{8 if j == 0 else 12+j}, s[28:31], s13 offen")
    for i in range(16):
        va.append(f"v_cvt_pk_f16_f32 v{HH+i}, v{F+2*i}, v{F+2*i+1}")
    for j in range(4):
        va.append(f"buffer_store_dwordx4 {vr(HH+4*j,4)}, v5, s[32:35], s13 offen offset:{32*j}")
    A.many(interleave(va, mf, 0, 4))
    A("s_nop 7")
    A("s_nop 7")
    for b in range(2):
        for j in range(4):
            s = M + 32*b + 16*(j >> 1) + 8*(j & 1)
            for k in range(4):
                A(f"v_cvt_pk_bf16_f32 v{MT+16*b+4*j+k}, v{s+2*k}, v{s+2*k+1}")
    A("s_nop 1")
    for b in range(2):
        for j in range(4):
            c = "0" if j == 0 else vr(QT+16*b, 16)
            A(f"v_mfma_f32_32x32x16_bf16 {vr(QT+16*b,16)}, {vr(MT+16*b+4*j,4)}, {vr(HB+4*j,4)}, {c}")
    A("s_nop 7")
    A("s_nop 7")
    A(f"v_pk_mul_f32 v[10:11], {vr(QT,2)}, {vr(QT,2)}")
    A(f"v_pk_mul_f32 v[12:13], {vr(QT+2,2)}, {vr(QT+2,2)}")
    for i in range(2, 16, 2):
        A(f"v_pk_fma_f32 v[10:11], {vr(QT+2*i,2)}, {vr(QT+2*i,2)}, v[10:11]")
        A(f"v_pk_fma_f32 v[12:13], {vr(QT+2*i+2,2)}, {vr(QT+2*i+2,2)}, v[12:13]")
    A("v_pk_add_f32 v[10:11], v[10:11], v[12:13]")
    A("v_add_f32 v10, v10, v11")
    xhalf_sum(A, 10, 12, 13)
    A("v_sqrt_f32 v10, v10")
    A(f"v_mov_b32 v12, v{QT+31}")
    A(f"v_mov_b32 v13, v{QT+31}")
    A(f"s_mov_b32 s42, {f2u(LOG2E/8):#x}")
    A(f"s_mov_b32 s43, {f2u(LOG2E/8):#x}")
    A("v_permlane32_swap_b32 v12, v13")
    A(f"v_mul_f32 v10, {f2u(-LOG2E):#x}, v10")
    A(f"v_add_f32 v10, {f2u(64.0):#x}, v10")
    A(f"v_mul_f32 v12, {f2u(-LOG2E/8):#x}, v13")
    A("v_mov_b32 v13, v12")
    for i in range(16):
        A(f"v_pk_fma_f32 {vr(QT+2*i,2)}, {vr(QT+2*i,2)}, s[42:43], v[12:13]")
    A(f"v_cndmask_b32 v{QT+31}, v{QT+31}, v10, s[40:41]")
    for i in range(16):
        A(f"v_cvt_pk_bf16_f32 v{X+i}, v{QT+2*i}, v{QT+2*i+1}")
    for j in range(4):
        A(f"buffer_store_dwordx4 {vr(X+4*j,4)}, v9, s[36:39], s13 offen offset:{1024*j}")
    stamp_dump(A, 0, 6, 3, 8)
    A("s_endpgm")

def gen_sort(A):
    A("K1_SORT:")
    stamp_init(A)
    A("s_load_dwordx4 s[4:7], s[0:1], 8")
    A("s_load_dwordx2 s[8:9], s[0:1], 88")
    A("v_lshlrev_b32 v1, 4, v0")
    A("v_lshlrev_b32 v2, 3, v0")
    A("v_mov_b32 v4, 0")
    A("v_mov_b32 v5, 0")
    A("ds_write_b64 v2, v[4:5]")
    A(f"s_mul_i32 s3, s2, {CH*4}")
    A("s_add_u32 s10, s3, 0x2000")
    A("s_add_u32 s11, s3, 0x4000")
    A("s_waitcnt lgkmcnt(0)")
    srd(A, 12, 6, 0, E * 4)
    srd(A, 16, 4, 0, E * 4)
    D = 8; S = 20; R = 32; B = 44
    A(f"buffer_load_dwordx4 {vr(D,4)}, v1, s[12:15], s3 offen")
    A(f"buffer_load_dwordx4 {vr(D+4,4)}, v1, s[12:15], s10 offen")
    A(f"buffer_load_dwordx2 {vr(D+8,2)}, v2, s[12:15], s11 offen")
    A(f"buffer_load_dwordx4 {vr(S,4)}, v1, s[16:19], s3 offen")
    A(f"buffer_load_dwordx4 {vr(S+4,4)}, v1, s[16:19], s10 offen")
    A(f"buffer_load_dwordx2 {vr(S+8,2)}, v2, s[16:19], s11 offen")
    srd(A, 20, 8, WS_E, E * 4)
    srd(A, 24, 8, WS_T, NCH * 4096)
    A("v_mov_b32 v6, 1")
    A("s_mov_b32 s28, 52429")
    A("s_barrier")
    A("s_waitcnt vmcnt(3)")
    stamp(A, 1)
    for i in range(10):
        A(f"v_mul_u32_u24 v{B+i}, s28, v{D+i}")
        A(f"v_lshrrev_b32 v{B+i}, 19, v{B+i}")
        A(f"v_mad_i32_i24 v{D+i}, v{B+i}, -10, v{D+i}")
        A(f"v_lshlrev_b32 v{B+i}, 2, v{B+i}")
        A(f"ds_add_rtn_u32 v{R+i}, v{B+i}, v6")
    A("s_waitcnt vmcnt(0)")
    for i in range(10):
        A(f"v_lshl_or_b32 v{S+i}, v{D+i}, 18, v{S+i}")
    A("s_waitcnt lgkmcnt(0)")
    A("s_barrier")
    stamp(A, 2)
    A("ds_read_b64 v[4:5], v2")
    A("v_lshrrev_b32 v3, 6, v0")
    A("v_lshlrev_b32 v7, 2, v3")
    A("s_waitcnt lgkmcnt(0)")
    A("v_add_u32 v56, v4, v5")
    A("v_mov_b32 v57, v56")
    for sh in (1, 2, 4, 8):
        A("s_nop 1")
        A(f"v_add_u32_dpp v57, v57, v57 row_shr:{sh} row_mask:0xf bank_mask:0xf bound_ctrl:0")
    A("s_nop 1")
    A("v_add_u32_dpp v57, v57, v57 row_bcast:15 row_mask:0xa bank_mask:0xf")
    A("s_nop 1")
    A("v_add_u32_dpp v57, v57, v57 row_bcast:31 row_mask:0xc bank_mask:0xf")
    A("s_nop 0")
    A("v_readlane_b32 s29, v57, 63")
    A("s_nop 3")
    A("v_mov_b32 v58, s29")
    WSUM = 4096 + CH * 4
    A(f"ds_write_b32 v7, v58 offset:{WSUM}")
    A("v_mov_b32 v59, 0")
    A("s_waitcnt lgkmcnt(0)")
    A("s_barrier")
    A(f"ds_read_b128 v[60:63], v59 offset:{WSUM}")
    A(f"ds_read_b128 v[64:67], v59 offset:{WSUM+16}")
    A("v_sub_u32 v57, v57, v56")
    A("s_waitcnt lgkmcnt(0)")
    for k in range(7):
        A(f"v_cmp_lt_u32 vcc, {k}, v3")
        A("s_nop 1")
        A(f"v_cndmask_b32 v58, 0, v{60+k}, vcc")
        A("v_add_u32 v57, v57, v58")
    A("v_add_u32 v58, v57, v4")
    A("v_lshl_or_b32 v60, v4, 16, v57")
    A("v_lshl_or_b32 v61, v5, 16, v58")
    A("s_lshl_b32 s29, s2, 12")
    A("buffer_store_dwordx2 v[60:61], v2, s[24:27], s29 offen")
    A("v_lshlrev_b32 v62, 2, v57")
    A("v_lshlrev_b32 v63, 2, v58")
    A("ds_write_b64 v2, v[62:63]")
    A("s_waitcnt lgkmcnt(0)")
    A("s_barrier")
    stamp(A, 3)
    for i in range(10):
        A(f"ds_read_b32 v{D+i}, v{B+i}")
    for i in range(10):
        A(f"s_waitcnt lgkmcnt({9})" if i == 0 else f"s_waitcnt lgkmcnt(9)")
        A(f"v_lshl_add_u32 v{D+i}, v{R+i}, 2, v{D+i}")
        A(f"ds_write_b32 v{D+i}, v{S+i} offset:4096")
    A("s_waitcnt lgkmcnt(0)")
    A("s_barrier")
    stamp(A, 4)
    A(f"ds_read_b128 v[8:11], v1 offset:4096")
    A(f"ds_read_b128 v[12:15], v1 offset:{4096+8192}")
    A(f"ds_read_b64 v[16:17], v2 offset:{4096+16384}")
    A("s_waitcnt lgkmcnt(2)")
    A("buffer_store_dwordx4 v[8:11], v1, s[20:23], s3 offen")
    A("s_waitcnt lgkmcnt(1)")
    A("buffer_store_dwordx4 v[12:15], v1, s[20:23], s10 offen")
    A("s_waitcnt lgkmcnt(0)")
    A("buffer_store_dwordx2 v[16:17], v2, s[20:23], s11 offen")
    if PROF:
        A("v_readfirstlane_b32 s30, v3")
    stamp_dump(A, 0, 8, 30, 8)
    A("K1_END:")
    A("s_endpgm")

def gen_k1(A):
    kernel_begin(A, "k1_kernel")
    A(f"s_cmp_ge_u32 s2, {K1_GRID}")
    A("s_cbranch_scc1 K1_END")
    A(f"s_cmp_lt_u32 s2, {NCH}")
    A("s_cbranch_scc1 K1_SORT")
    gen_ln(A)
    gen_sort(A)
    return dict(name="k1_kernel", grid=K1_GRID, block=512, lds=K1_LDS, vgpr=228, sgpr=48)
```

```python
from common import *

K2_NWG = 252
K2_GRID = 253
T3_REG = 24576
T2_BASE = 4 * T3_REG
T2_REG = 4096
K2_LDS = T2_BASE + 4 * T2_REG
NT = 20

KA = 2; VA = 6; IDX = 10; DV = 11
S0 = 16; KF = 48; VF = 64; O = 80; Q3 = 176; Q2 = 196

def frag_addrs(A, lane, sbase, t0, t1):
    A(f"v_and_b32 v{t0}, 2, v{lane}")
    A(f"v_lshlrev_b32 v{t0}, 1, v{t0}")
    A(f"v_bfe_u32 v{t1}, v{lane}, 2, 2")
    A(f"v_or_b32 v{t0}, v{t0}, v{t1}")
    A(f"v_lshrrev_b32 v{t1}, 5, v{lane}")
    A(f"v_xor_b32 v{t0}, v{t0}, v{t1}")
    A(f"v_and_b32 v{t1}, 31, v{lane}")
    A(f"v_lshlrev_b32 v{t1}, 7, v{t1}")
    A(f"v_lshl_add_u32 v{t0}, v{t0}, 4, v{t1}")
    A(f"v_add_u32 v{KA}, s{sbase}, v{t0}")
    for j in range(1, 4):
        A(f"v_xor_b32 v{KA+j}, {32*j}, v{KA}")
    A(f"v_lshrrev_b32 v{t0}, 5, v{lane}")
    A(f"v_bfe_u32 v{t1}, v{lane}, 2, 2")
    A(f"v_lshl_add_u32 v{VA}, v{t0}, 3, v{t1}")
    A(f"v_lshlrev_b32 v{VA}, 7, v{VA}")
    A(f"v_bfe_u32 v{t1}, v{lane}, 4, 1")
    A(f"v_xor_b32 v{t0}, v{t0}, v{t1}")
    A(f"v_lshl_add_u32 v{VA}, v{t0}, 5, v{VA}")
    A(f"v_bfe_u32 v{t0}, v{lane}, 3, 1")
    A(f"v_lshl_add_u32 v{VA}, v{t0}, 6, v{VA}")
    A(f"v_and_b32 v{t0}, 3, v{lane}")
    A(f"v_lshl_add_u32 v{VA}, v{t0}, 3, v{VA}")
    A(f"v_add_u32 v{VA}, s{sbase}, v{VA}")
    A(f"v_xor_b32 v{VA+1}, 16, v{VA}")
    A(f"v_add_u32 v{VA+1}, 0x200, v{VA+1}")
    A(f"v_xor_b32 v{VA+2}, 64, v{VA}")
    A(f"v_xor_b32 v{VA+3}, 64, v{VA+1}")
    A(f"v_mov_b32 v{IDX}, 0xdddddddd")

def dma(slot, srdG=8, sbase=36, soff=37):
    L = [f"s_add_u32 m0, s{sbase}, {slot*4096:#x}" if slot else f"s_mov_b32 m0, s{sbase}"]
    ld = [f"buffer_load_dwordx4 v{DV}, s[{srdG}:{srdG+3}], s{soff} offen offset:{1024*i} lds" for i in range(4)]
    return L, ld, [f"s_add_u32 s{soff}, s{soff}, s45", f"s_min_u32 s{soff}, s{soff}, 0x40000000"]

def dma_now(A, slot):
    a, b, c = dma(slot)
    A.many(a); A("s_nop 0"); A.many(b); A.many(c)

def kread(j, slot):
    return f"ds_read_b128 {vr(KF+4*j,4)}, v{KA+j} offset:{slot*4096}"
def vread(ks, dh, slot):
    d = VF + 4*(2*ks + dh)
    return [f"ds_read_b64_tr_b16 {vr(d+2*i,2)}, v{VA+2*dh+i} offset:{slot*4096+2048*ks}" for i in range(2)]
def qk(sb, j, q):
    s = S0 + 16*sb
    c = "0" if j == 0 else vr(s, 16)
    return f"v_mfma_f32_32x32x16_bf16 {vr(s,16)}, {vr(KF+4*j,4)}, {vr(q+4*j,4)}, {c}"
def pv(sb, t, ks, dh):
    o = O + 32*t + 16*dh
    return f"v_smfmac_f32_32x32x32_bf16 {vr(o,16)}, {vr(VF+4*(2*ks+dh),4)}, {vr(S0+16*sb+8*ks,8)}, v{IDX}"

def gen_loop(A, tl, Q, name):
    T = len(tl)
    A(f"s_mov_b32 s38, {NT//4-1}")
    A(".p2align 6")
    A(f"{name}_LOOP:")
    U = 4*T
    for u in range(U):
        k, t = divmod(u, T)
        tp = tl[(u - 1) % T]; tn = tl[(u + 1) % T]
        sb = u & 1; so = sb ^ 1
        M = [pv(so, tp, 0, 1), pv(so, tp, 1, 0), pv(so, tp, 1, 1)] + [qk(so, j, Q + 16*tn) for j in range(4)] + [pv(sb, tl[t], 0, 0)]
        pre = [[] for _ in range(9)]
        post = [[] for _ in range(8)]
        a, b, c = dma(k)
        a = [f"s_mov_b32 m0, s{48+k}"]
        if t == 0:
            vs = vread(0, 0, k)[1:] + vread(0, 1, k) + vread(1, 0, k) + vread(1, 1, k)
            for g in range(7):
                post[g].append(vs[g])
            pre[7].append(f"s_waitcnt lgkmcnt({2 if T > 2 else 5})")
            pre[1] += c[1:]
        if t == 1:
            pre[2].append("s_waitcnt vmcnt(8) lgkmcnt(0)" if T == 3 else "s_waitcnt lgkmcnt(0)")
            pre[3 if T == 2 else 5] += a
        if t == T - 2:
            if T == 2:
                pre[3].append("s_waitcnt vmcnt(8)")
            for j in range(4):
                post[3+j].append(kread(j, (k + 1) % 4))
        if t == T - 1:
            if T == 3:
                pre[3].append("s_waitcnt lgkmcnt(0)")
            for j in range(4):
                post[3+j].append(b[j])
            pre[7] += c[:1]
            post[7] += vread(0, 0, (k + 1) % 4)[:1]
        if u == U - 1:
            pre[8].append("s_sub_u32 s38, s38, 1")
        X = os.environ.get("X", "")
        for g in range(8):
            if "r" in X: post[g] = [i for i in post[g] if not i.startswith("ds_read")]
            if "k" in X: post[g] = [i for i in post[g] if not i.startswith("ds_read_b128")]
            if "d" in X: post[g] = [i for i in post[g] if not i.startswith("buffer")]
            A.many(pre[g]); A(M[g]); A.many(post[g])
            s = S0 + 16*sb + 2*g
            A(f"v_exp_f32 v{s}, v{s}")
            if g == 7: A.many(pre[8])
            A(f"v_exp_f32 v{s+1}, v{s+1}")
    A(f"s_cbranch_scc0 {name}_LOOP")

def gen_attn(A, Q):
    for r in list(range(O, O + 96, 2)) + list(range(S0+16, S0+32, 2)) + list(range(VF+4, VF+16, 2)):
        A(f"v_mov_b64 {vr(r,2)}, 0")
    A("s_waitcnt vmcnt(24)")
    for j in range(4):
        A(kread(j, 0))
    A.many(vread(0, 0, 0)[:1])
    if "r" in os.environ.get("X", ""):
        A.many(vread(0, 0, 0) + vread(0, 1, 0) + vread(1, 0, 0) + vread(1, 1, 0))
    for k in range(4):
        A(f"s_add_u32 s{48+k}, s36, {4096*k}")
    A("s_waitcnt vmcnt(12) lgkmcnt(1)")
    for j in range(4):
        A(qk(0, j, Q))
    A("s_nop 7")
    stamp(A, 4)
    gen_loop(A, [0, 1, 2], Q, "K2A")
    stamp(A, 3)
    gen_loop(A, [0, 2], Q, "K2B")
    A(pv(1, 2, 0, 1)); A("s_nop 0"); A(pv(1, 2, 1, 0)); A(pv(1, 2, 1, 1))
    stamp(A, 5)
    A("s_waitcnt vmcnt(0) lgkmcnt(0)")
    A(f"v_add_u32 v12, s36, v{DV}")
    for q in range(24):
        A(f"ds_write_b128 v12, {vr(O+4*q,4)} offset:{1024*q}")
    A("s_branch K2_EPI")

def gen_gather(A):
    LB = 0
    T0, T1 = 12, 13
    C0, C1 = 14, 15
    EN = 76; PS = 108
    AC = 16; PR = 56; BUF = 76
    DI = 228
    AD0, AD1 = 233, 234
    LBV = 235
    TWO = 236
    AO = 237
    t0, t1, t2, t3 = 238, 239, 240, 241
    srd(A, 20, 4, WS_T, NCH * 4096)
    srd(A, 24, 4, WS_E, E * 4)
    A("s_lshl_b32 s54, s42, 2")
    A("s_add_u32 s53, s54, 0x40000")
    A(f"v_lshlrev_b32 v{t0}, 12, v0")
    A(f"buffer_load_dword v{T0}, v{t0}, s[20:23], s54 offen")
    A(f"buffer_load_dword v{T1}, v{t0}, s[20:23], s53 offen")
    srd(A, 28, 4, WS_H, N, stride=128)
    srd(A, 32, 4, WS_A, N * 128)
    srd(A, 60, 6, 0, N * 2)
    A(f"s_add_u32 s48, s36, {LB}")
    A(f"v_add_u32 v{t0}, s48, v{DV}")
    for r in range(4):
        A(f"v_mov_b32 v{AC+r}, -1")
    for i in range(3):
        A(f"ds_write_b128 v{t0}, {vr(AC,4)} offset:{64+1024*i}")
    A(f"v_mov_b32 v{LBV}, s48")
    A(f"v_and_b32 v{t1}, 15, v0")
    A(f"v_lshl_add_u32 v{t2}, v{t1}, 2, v{LBV}")
    A(f"v_lshl_add_u32 v{t3}, v{t1}, 8, v{LBV}")
    A(f"v_add_u32 v{t3}, 64, v{t3}")
    A(f"ds_write_b32 v{t2}, v{t3}")
    A(f"v_mov_b32 v{TWO}, 2")
    A("s_mul_i32 s49, s42, 20")
    A(f"v_bfe_u32 v{t0}, v0, 3, 1")
    A(f"v_lshlrev_b32 v{t1}, 1, v{t0}")
    for p in range(5):
        A(f"v_mov_b32 v{DI+p}, 0")
    for p in range(5):
        A(f"buffer_load_short_d16_hi v{DI+p}, v{t1}, s[60:63], s49 offen offset:{4*p}")
    A(f"v_lshlrev_b32 v{AO}, 7, v{t0}")
    A(f"v_and_b32 v{t0}, 7, v0")
    A(f"v_lshl_add_u32 v{AO}, v{t0}, 4, v{AO}")
    A(f"v_lshlrev_b32 v{PR+1}, 4, v{t0}")
    A(f"v_bfe_u32 v{t0}, v0, 4, 1")
    A(f"v_lshl_add_u32 v{AO}, v{t0}, 3, v{AO}")
    A(f"v_lshrrev_b32 v{t0}, 5, v0")
    A(f"v_lshl_add_u32 v{AO}, v{t0}, 2, v{AO}")
    A("s_mul_i32 s50, s42, 1280")
    for i in range(1, 10):
        A(f"v_mov_b32 v{PR+2*i+1}, v{PR+1}")
    A(f"v_mul_u32_u24 v{t0}, {CH}, v0")
    A(f"s_mov_b32 s51, {64*CH*4}")
    A("s_waitcnt vmcnt(5)")
    stamp(A, 1)
    A(f"v_lshrrev_b32 v{C0}, 16, v{T0}")
    A(f"v_lshrrev_b32 v{C1}, 16, v{T1}")
    A(f"v_add_u32_sdwa v{AD0}, v{T0}, v{t0} dst_sel:DWORD dst_unused:UNUSED_PAD src0_sel:WORD_0 src1_sel:DWORD")
    A(f"v_add_u32_sdwa v{AD1}, v{T1}, v{t0} dst_sel:DWORD dst_unused:UNUSED_PAD src0_sel:WORD_0 src1_sel:DWORD")
    A(f"v_lshlrev_b32 v{AD0}, 2, v{AD0}")
    A(f"v_lshlrev_b32 v{AD1}, 2, v{AD1}")
    A(f"v_add_u32 v{t0}, v{C0}, v{C1}")
    A("G_ROUND:")
    for s, (ad, c, so) in enumerate(((AD0, C0, "0"), (AD1, C1, "s51"))):
        for g in range(4):
            A(f"v_cmpx_lt_i32 vcc, {4*g}, v{c}")
            A(f"buffer_load_dwordx4 {vr(EN+16*s+4*g,4)}, v{ad}, s[24:27], {so} offen offset:{16*g}")
        A("s_mov_b64 exec, -1")
    A("s_nop 1")
    for sh in (1, 2, 4, 8):
        A("s_nop 1")
        A(f"v_add_u32_dpp v{t0}, v{t0}, v{t0} row_shr:{sh} row_mask:0xf bank_mask:0xf bound_ctrl:0")
    A("s_nop 1")
    A(f"v_add_u32_dpp v{t0}, v{t0}, v{t0} row_bcast:15 row_mask:0xa bank_mask:0xf")
    A("s_nop 1")
    A(f"v_add_u32_dpp v{t0}, v{t0}, v{t0} row_bcast:31 row_mask:0xc bank_mask:0xf")
    A("s_nop 0")
    A(f"v_readlane_b32 s52, v{t0}, 63")
    A(f"v_mov_b32 v{t0}, 0")
    A("s_cmp_gt_u32 s52, 860")
    A("s_cbranch_scc1 G_SLOW")
    for s, c in enumerate((C0, C1)):
        for k in range(16):
            if k % 4 == 0:
                A(f"s_waitcnt vmcnt({7 - 4*s - k//4})")
            A(f"v_cmpx_lt_i32 vcc, {k}, v{c}")
            if k >= 8 and k % 2 == 0:
                A(f"s_cbranch_execz G_A{s}")
            A(f"v_add_u32_sdwa v{t1}, v{EN+16*s+k}, v{LBV} dst_sel:DWORD dst_unused:UNUSED_PAD src0_sel:WORD_1 src1_sel:DWORD")
            A(f"ds_add_rtn_u32 v{PS+16*s+k}, v{t1}, v{TWO}")
        A(f"G_A{s}:")
        A("s_mov_b64 exec, -1")
    A("s_waitcnt vmcnt(0) lgkmcnt(0)")
    for s, c in enumerate((C0, C1)):
        for k in range(16):
            A(f"v_cmpx_lt_i32 vcc, {k}, v{c}")
            if k >= 8 and k % 2 == 0:
                A(f"s_cbranch_execz G_W{s}")
            A(f"ds_write_b16 v{PS+16*s+k}, v{EN+16*s+k}")
        A(f"G_W{s}:")
        A("s_mov_b64 exec, -1")
    A(f"v_max_i32 v{t1}, v{C0}, v{C1}")
    A(f"v_cmp_lt_i32 vcc, 16, v{t1}")
    A(f"v_subrev_u32 v{C0}, 16, v{C0}")
    A(f"v_subrev_u32 v{C1}, 16, v{C1}")
    A(f"v_add_u32 v{AD0}, 64, v{AD0}")
    A(f"v_add_u32 v{AD1}, 64, v{AD1}")
    A("s_waitcnt lgkmcnt(0)")
    A("s_cbranch_vccnz G_ROUND")
    stamp(A, 2)
    A(f"ds_read_b32 v{t1}, v{t2}")
    A(f"v_lshrrev_b32 v{t0}, 3, v0")
    A(f"v_lshl_add_u32 v{LBV}, v{t0}, 1, v{LBV}")
    for i in range(10):
        A(f"ds_read_u16 v{PR+2*i}, v{LBV} offset:{64+256*i}")
    A("s_waitcnt lgkmcnt(10)")
    A(f"v_sub_u32 v{t1}, v{t1}, v{t3}")
    for sh in (1, 2, 4, 8):
        A("s_nop 1")
        A(f"v_max_u32_dpp v{t1}, v{t1}, v{t1} row_shr:{sh} row_mask:0xf bank_mask:0xf bound_ctrl:0")
    A("s_nop 0")
    A(f"v_readlane_b32 s52, v{t1}, 15")
    A("s_cmp_gt_u32 s52, 256")
    A("s_cbranch_scc1 G_SLOW")
    A("s_add_u32 s52, s52, 15")
    A("s_lshr_b32 s52, s52, 4")
    A("s_max_u32 s52, s52, 2")
    A("s_sub_u32 s52, s52, 2")
    def ld(dst, i, it_off):
        A(f"buffer_load_dwordx4 {vr(dst,4)}, {vr(PR+2*i,2)}, s[28:31], 0 idxen offen")
        A(f"ds_read_u16 v{PR+2*i}, v{LBV} offset:{64+256*i+16*it_off}")
    def add(i, b):
        for r in range(4):
            A(f"v_pk_add_f16 v{AC+4*i+r}, v{AC+4*i+r}, v{BUF+4*b+r}")
    A("s_setprio 0")
    for i in range(10):
        A("s_waitcnt lgkmcnt(9)")
        ld(AC+4*i, i, 1)
    for i in range(5):
        A("s_waitcnt lgkmcnt(9)")
        ld(BUF+4*i, i, 2)
    A("G_LOOP:")
    for i in range(5, 10):
        A("s_waitcnt vmcnt(4) lgkmcnt(9)")
        add(i-5, i-5)
        ld(BUF+4*(i-5), i, 2)
    A("s_sub_u32 s52, s52, 1")
    A("s_cbranch_scc1 G_DRAIN")
    for i in range(5):
        A("s_waitcnt vmcnt(4) lgkmcnt(9)")
        add(i+5, i)
        ld(BUF+4*i, i, 3)
    A(f"v_add_u32 v{LBV}, 16, v{LBV}")
    A("s_branch G_LOOP")
    A("G_DRAIN:")
    for i in range(5):
        A(f"s_waitcnt vmcnt({4-i})")
        add(i+5, i)
    A("s_nop 1")
    A("G_RED:")
    stamp(A, 3)
    for i in range(10):
        A(f"v_permlane32_swap_b32 v{AC+4*i}, v{AC+4*i+1}")
        A(f"v_permlane32_swap_b32 v{AC+4*i+2}, v{AC+4*i+3}")
    for i in range(10):
        A(f"v_pk_add_f16 v{AC+4*i}, v{AC+4*i}, v{AC+4*i+1}")
        A(f"v_pk_add_f16 v{AC+4*i+2}, v{AC+4*i+2}, v{AC+4*i+3}")
    for i in range(10):
        A(f"v_permlane16_swap_b32 v{AC+4*i}, v{AC+4*i+2}")
    for i in range(10):
        A(f"v_pk_add_f16 v{AC+4*i}, v{AC+4*i}, v{AC+4*i+2}")
    for p in range(5):
        x, y, t = AC+8*p, AC+8*p+4, AC+8*p+1
        A(f"v_mov_b32_dpp v{t}, v{x} row_ror:8 row_mask:0xf bank_mask:0x3")
    for p in range(5):
        x, y, t = AC+8*p, AC+8*p+4, AC+8*p+1
        A(f"v_mov_b32_dpp v{t}, v{y} row_ror:8 row_mask:0xf bank_mask:0xc")
        A(f"v_mov_b32_dpp v{x}, v{y} quad_perm:[0,1,2,3] row_mask:0xf bank_mask:0xc")
    for p in range(5):
        x, t = AC+8*p, AC+8*p+1
        A(f"v_pk_add_f16 v{x}, v{x}, v{t}")
    for p in range(5):
        x = AC+8*p
        A(f"v_fma_mix_f32 v{x+2}, v{x}, v{DI+p}, 0 op_sel:[0,0,0] op_sel_hi:[1,0,0]")
        A(f"v_fma_mix_f32 v{x+3}, v{x}, v{DI+p}, 0 op_sel:[1,0,0] op_sel_hi:[1,0,0]")
    def fin():
        for p in range(5):
            x = AC+8*p
            A(f"v_cvt_pk_bf16_f32 v{x}, v{x+2}, v{x+3}")
            A(f"buffer_store_dword v{x}, v{AO}, s[32:35], s50 offen offset:{256*p}")
    fin()
    stamp(A, 5)
    A("s_branch K2_EPI")
    A("G_SLOW:")
    A("s_waitcnt vmcnt(0) lgkmcnt(0)")
    A(f"v_add_u32 v{t0}, s48, v{DV}")
    for r in range(4):
        A(f"v_mov_b32 v{AC+r}, 0")
    for i in range(3):
        A(f"ds_write_b128 v{t0}, {vr(AC,4)} offset:{1024*i}")
    A(f"v_lshrrev_b32 v{t0}, 3, v0")
    A(f"v_lshlrev_b32 v{t1}, 2, v{t0}")
    A(f"v_lshlrev_b32 v{t2}, 1, v{PR+1}")
    A(f"v_add_u32 v{t2}, s48, v{t2}")
    A("s_mov_b32 s52, 0")
    A("G_SC:")
    A("s_cmp_lg_u32 s52, 64")
    A("s_cbranch_scc1 G_SC1")
    A(f"v_mov_b32 v{T0}, v{T1}")
    A("G_SC1:")
    A("s_and_b32 s53, s52, 63")
    A("s_nop 3")
    A(f"v_readlane_b32 s54, v{T0}, s53")
    A(f"s_mul_i32 s55, s52, {CH}")
    A("s_and_b32 s56, s54, 0xffff")
    A("s_add_u32 s55, s55, s56")
    A("s_lshl_b32 s55, s55, 2")
    A("s_lshr_b32 s54, s54, 16")
    A("G_SI:")
    A("s_cmp_lt_i32 s54, 1")
    A("s_cbranch_scc1 G_SN")
    A(f"v_cmpx_gt_i32 vcc, s54, v{t0}")
    A(f"buffer_load_dword v{t3}, v{t1}, s[24:27], s55 offen")
    A("s_waitcnt vmcnt(0)")
    A(f"v_and_b32 v{PR}, 0xffff, v{t3}")
    A(f"v_lshrrev_b32 v{t3}, 16, v{t3}")
    A(f"buffer_load_dwordx4 {vr(BUF,4)}, {vr(PR,2)}, s[28:31], 0 idxen offen")
    A(f"v_lshl_add_u32 v{t3}, v{t3}, 6, v{t2}")
    A("s_waitcnt vmcnt(0)")
    for r in range(4):
        A(f"v_cvt_f32_f16 v{BUF+4+2*r}, v{BUF+r}")
        A(f"v_cvt_f32_f16_sdwa v{BUF+5+2*r}, v{BUF+r} dst_sel:DWORD dst_unused:UNUSED_PAD src0_sel:WORD_1")
    for r in range(8):
        A(f"ds_add_f32 v{t3}, v{BUF+4+r} offset:{4*r}")
    A("s_waitcnt lgkmcnt(0)")
    A("s_mov_b64 exec, -1")
    A("s_sub_u32 s54, s54, 8")
    A("s_add_u32 s55, s55, 32")
    A("s_branch G_SI")
    A("G_SN:")
    A("s_add_u32 s52, s52, 1")
    A(f"s_cmp_lt_u32 s52, {NCH}")
    A("s_cbranch_scc1 G_SC")
    A(f"v_lshl_add_u32 v{t0}, v{AO}, 1, s48")
    for p in range(5):
        A(f"ds_read_b64 {vr(AC+8*p+2,2)}, v{t0} offset:{512*p}")
    A("s_waitcnt lgkmcnt(0)")
    for p in range(5):
        x = AC+8*p
        A(f"v_mul_f32 v{x+2}, v{x+2}, v{DI+p}")
        A(f"v_mul_f32 v{x+3}, v{x+3}, v{DI+p}")
    fin()
    A("s_branch K2_EPI")

def gen_wprep(A):
    A("K2_WPREP:")
    A("s_load_dwordx2 s[8:9], s[0:1], 32")
    A("s_load_dwordx4 s[12:15], s[0:1], 56")
    A("v_and_b32 v1, 31, v0")
    A("v_lshrrev_b32 v2, 5, v0")
    A("v_and_b32 v3, 0x13, v1")
    A("v_and_b32 v4, 4, v1")
    A("v_lshl_or_b32 v3, v4, 1, v3")
    A("v_and_b32 v4, 8, v1")
    A("v_lshrrev_b32 v4, 1, v4")
    A("v_or_b32 v3, v3, v4")
    A("s_lshr_b32 s36, s3, 2")
    A("s_bfe_u32 s37, s3, 0x10001")
    A("s_and_b32 s38, s3, 1")
    A("s_cmp_eq_u32 s36, 0")
    A("s_cselect_b64 vcc, -1, 0")
    A("s_movk_i32 s39, 8064")
    A("s_cselect_b32 s39, 0x10000, s39")
    A("v_cndmask_b32 v4, v1, v3, vcc")
    A("v_lshlrev_b32 v4, 7, v4")
    A("v_lshl_add_u32 v4, v2, 4, v4")
    A("v_lshlrev_b32 v5, 4, v2")
    A("s_lshl_b32 s40, s37, 12")
    A("v_lshlrev_b32 v6, 10, v2")
    A("v_lshl_add_u32 v6, v3, 1, v6")
    A("s_lshl_b32 s41, s38, 6")
    A("s_add_u32 s42, s41, 0x1000")
    A("v_lshlrev_b32 v7, 4, v0")
    A("s_waitcnt lgkmcnt(0)")
    A("s_cmp_eq_u32 s36, 0")
    A("s_cselect_b32 s16, s8, s12")
    A("s_cselect_b32 s17, s9, s13")
    A("s_mov_b32 s18, 8192")
    A("s_mov_b32 s19, 0x20000")
    srd(A, 20, 14, 0, 8192)
    srd(A, 24, 4, WS_W, 16384)
    AF, A2, BF, D = 16, 32, 48, 64
    for j in range(4):
        A(f"buffer_load_dwordx4 {vr(AF+4*j,4)}, v4, s[16:19], s40 offen offset:{32*j}")
        A(f"buffer_load_dwordx4 {vr(A2+4*j,4)}, v5, s[16:19], s39 offen offset:{32*j}")
    for hi in range(2):
        for j in range(4):
            for k in range(4):
                jj = 2*k + hi
                A(f"buffer_load_ushort v{BF+4*j+k+32*hi}, v6, s[20:23], {'s41' if j < 2 else 's42'} offen offset:{(16*(j&1)+jj)*128}")
    A("s_waitcnt vmcnt(0)")
    for r in range(16):
        A(f"v_lshl_or_b32 v{BF+r}, v{BF+32+r}, 16, v{BF+r}")
    for r in range(16):
        A(f"v_xor_b32 v{A2+r}, 0x80008000, v{A2+r}")
    A("s_nop 1")
    for j in range(4):
        A(f"v_mfma_f32_32x32x16_bf16 {vr(D,16)}, {vr(AF+4*j,4)}, {vr(BF+4*j,4)}, {'0' if j == 0 else vr(D,16)}")
    for j in range(4):
        A(f"v_mfma_f32_32x32x16_bf16 {vr(D,16)}, {vr(A2+4*j,4)}, {vr(BF+4*j,4)}, {vr(D,16)}")
    A("s_lshl_b32 s43, s36, 13")
    A("s_lshl_b32 s44, s38, 12")
    A("s_add_u32 s43, s43, s44")
    A("s_lshl_b32 s44, s37, 11")
    A("s_add_u32 s43, s43, s44")
    A("s_nop 7")
    A("s_nop 7")
    for r in range(8):
        A(f"v_cvt_pk_bf16_f32 v{AF+r}, v{D+2*r}, v{D+2*r+1}")
    A(f"buffer_store_dwordx4 {vr(AF,4)}, v7, s[24:27], s43 offen")
    A(f"buffer_store_dwordx4 {vr(AF+4,4)}, v7, s[24:27], s43 offen offset:1024")
    A("s_endpgm")

def gen_k2(A):
    kernel_begin(A, "k2_kernel")
    A(f"s_cmp_ge_u32 s2, {K2_GRID}")
    A("s_cbranch_scc1 K2_END")
    A("s_load_dwordx2 s[4:5], s[0:1], 88")
    A("s_load_dwordx2 s[6:7], s[0:1], 24")
    A("v_lshrrev_b32 v1, 6, v0")
    A("v_and_b32 v0, 63, v0")
    A("v_readfirstlane_b32 s3, v1")
    A(f"s_cmp_eq_u32 s2, {K2_NWG}")
    A("s_cbranch_scc1 K2_WPREP")
    stamp_init(A)
    A(f"v_lshlrev_b32 v{DV}, 4, v0")
    A("s_and_b32 s39, s3, 3")
    A("s_lshr_b32 s40, s2, 2")
    A("s_mul_i32 s40, s40, 5")
    A("s_and_b32 s41, s2, 1")
    A("s_bfe_u32 s46, s2, 0x10001")
    A("s_cmp_ge_u32 s3, 4")
    A("s_cbranch_scc1 K2_G")
    A("s_setprio 1")
    A("s_lshl_b32 s42, s41, 2")
    A("s_add_u32 s42, s42, s39")
    A(f"s_mul_i32 s42, s42, {2*NT*4096}")
    A(f"s_sub_u32 s10, {N*128}, s42")
    A(f"s_min_u32 s10, s10, {2*NT*4096}")
    A("s_mov_b32 s11, 0x20000")
    A(f"s_mul_i32 s36, s39, {T3_REG}")
    A(f"s_mul_i32 s37, s46, {(2*NT-1)*4096}")
    A("s_lshl_b32 s45, s46, 13")
    A("s_sub_u32 s45, 0x1000, s45")
    A("s_lshl_b32 s43, s46, 1")
    A("s_add_u32 s43, s43, s40")
    A("s_lshl_b32 s43, s43, 12")
    A("s_add_u32 s44, s40, 4")
    A("s_lshl_b32 s44, s44, 12")
    A("s_add_u32 s47, s43, 0x1000")
    A("s_waitcnt lgkmcnt(0)")
    A("s_add_u32 s8, s4, s42")
    A("s_addc_u32 s9, s5, 0")
    srd(A, 12, 4, WS_Q, NQT * 4096)
    dma_now(A, 0)
    for t, sg in enumerate((43, 44, 47)):
        for j in range(4):
            A(f"buffer_load_dwordx4 {vr(Q3+16*t+4*j,4)}, v{DV}, s[12:15], s{sg} offen offset:{1024*j}")
    for s in range(1, 4):
        dma_now(A, s)
    frag_addrs(A, 0, 36, 12, 13)
    gen_attn(A, Q3)
    A("K2_G:")
    if "p" in os.environ.get("X", ""): A("s_setprio 2")
    A(f"s_mul_i32 s36, s39, {T2_REG}")
    A(f"s_add_u32 s36, s36, {T2_BASE}")
    A("s_lshl_b32 s42, s2, 2")
    A("s_add_u32 s42, s42, s39")
    A("s_cmp_ge_u32 s42, %d" % (0 if "g" in os.environ.get("X", "") else 1000))
    A("s_waitcnt lgkmcnt(0)")
    A("s_cbranch_scc1 K2_EPI")
    gen_gather(A)
    A("K2_EPI:")
    srd(A, 16, 4, WS_P, 4 * PSTRIDE)
    A("s_lshl_b32 s42, s3, 10")
    A(f"v_add_u32 v12, s42, v{DV}")
    A("v_add_u32 v13, 0x10000, v12")
    A("s_lshl_b32 s43, s46, 1")
    A("s_add_u32 s44, s43, s41")
    A("s_add_u32 s43, s43, s40")
    A("s_lshl_b32 s43, s43, 13")
    A(f"s_mul_i32 s47, s41, {PSTRIDE}")
    A("s_add_u32 s43, s43, s47")
    A("s_add_u32 s47, s43, 0x2000")
    A(f"s_mul_i32 s44, s44, {PSTRIDE}")
    A("s_add_u32 s48, s40, 4")
    A("s_lshl_b32 s48, s48, 13")
    A("s_add_u32 s44, s44, s48")
    A("s_waitcnt lgkmcnt(0)")
    A("s_barrier")
    stamp(A, 6)
    R = 16
    for t in range(3):
        for v in range(4):
            off = v*T3_REG + t*8192
            A(f"ds_read_b128 {vr(R+16*t+4*v,4)}, v{12+(off>>16)} offset:{off & 0xffff}")
    for t, sg in enumerate((43, 44, 47)):
        A(f"s_waitcnt lgkmcnt({8-4*t})")
        b = R + 16*t
        A(f"v_pk_add_f32 {vr(b,2)}, {vr(b,2)}, {vr(b+4,2)}")
        A(f"v_pk_add_f32 {vr(b+2,2)}, {vr(b+2,2)}, {vr(b+6,2)}")
        A(f"v_pk_add_f32 {vr(b+8,2)}, {vr(b+8,2)}, {vr(b+12,2)}")
        A(f"v_pk_add_f32 {vr(b+10,2)}, {vr(b+10,2)}, {vr(b+14,2)}")
        A(f"v_pk_add_f32 {vr(b,2)}, {vr(b,2)}, {vr(b+8,2)}")
        A(f"v_pk_add_f32 {vr(b+2,2)}, {vr(b+2,2)}, {vr(b+10,2)}")
        A(f"buffer_store_dwordx4 {vr(b,4)}, v12, s[16:19], s{sg} offen")
    stamp_dump(A, 1, 4, 3, 8)
    A("K2_END:")
    A("s_endpgm")
    gen_wprep(A)
    return dict(name="k2_kernel", grid=K2_GRID, block=512, lds=K2_LDS, vgpr=256, sgpr=64)
```

```python
from common import *
import k2
from k2 import KA, VA, IDX, DV, S0, KF, VF, O, frag_addrs, kread, vread, qk, pv

K3_LDS = 32768 + 1024

def gen_k3(A):
    kernel_begin(A, "k3_kernel")
    A(f"s_cmp_ge_u32 s2, {NQT}")
    A("s_cbranch_scc1 K3_END")
    A("s_load_dwordx2 s[4:5], s[0:1], 88")
    A("s_load_dwordx2 s[6:7], s[0:1], 0")
    A("s_load_dwordx2 s[34:35], s[0:1], 72")
    A("v_lshrrev_b32 v1, 6, v0")
    A("v_and_b32 v0, 63, v0")
    A("v_readfirstlane_b32 s3, v1")
    stamp_init(A)
    A(f"v_lshlrev_b32 v{DV}, 4, v0")
    PO, LO, XO, WO = 128, 129, 130, 131
    PR = 132
    LR = 164
    AF = 168; XF = 172; WF = 176
    D = 192
    A(f"v_lshl_add_u32 v{PO}, v1, 11, v{DV}")
    A(f"v_lshl_add_u32 v{WO}, v1, 10, v{DV}")
    A(f"v_or_b32 v{LO}, 0x200, v{DV}")
    A(f"v_add_u32 v{LO}, {7*1024+12}, v{LO}")
    A("v_and_b32 v12, 31, v0")
    A("v_lshrrev_b32 v13, 5, v0")
    A(f"v_lshlrev_b32 v{XO}, 7, v12")
    A(f"v_lshl_add_u32 v{XO}, v1, 5, v{XO}")
    A(f"v_lshl_add_u32 v{XO}, v13, 4, v{XO}")
    A("s_lshl_b32 s40, s2, 13")
    A(f"s_add_u32 s41, s40, {PSTRIDE}")
    A(f"s_add_u32 s42, s40, {2*PSTRIDE}")
    A(f"s_add_u32 s43, s40, {3*PSTRIDE}")
    A("s_mul_i32 s44, s2, 52429")
    A("s_lshr_b32 s44, s44, 18")
    A("s_mul_i32 s44, s44, 5")
    A("s_sub_u32 s44, s2, s44")
    A("s_cmp_eq_u32 s44, 4")
    A(f"s_cselect_b32 s42, s42, {4*PSTRIDE}")
    A(f"s_cselect_b32 s43, s43, {4*PSTRIDE}")
    A("s_lshl_b32 s44, s2, 12")
    A("s_lshl_b32 s48, s2, 5")
    A("v_add_u32 v12, s48, v12")
    A("s_movk_i32 s45, 0x1000")
    A("s_movk_i32 s46, 0x2000")
    A("s_movk_i32 s47, 0x3000")
    A("s_waitcnt lgkmcnt(0)")
    srd(A, 16, 4, WS_P, 4 * PSTRIDE)
    for s in range(4):
        A(f"buffer_load_dword v{LR+s}, v{LO}, s[16:19], s{40+s} offen")
    for s in range(4):
        A(f"buffer_load_dwordx4 {vr(PR+8*s,4)}, v{PO}, s[16:19], s{40+s} offen")
        A(f"buffer_load_dwordx4 {vr(PR+8*s+4,4)}, v{PO}, s[16:19], s{40+s} offen offset:1024")
    srd(A, 20, 4, WS_W, 16384)
    srd(A, 24, 4, WS_A, N * 128)
    srd(A, 28, 6, 0, N * 128)
    for i in range(4):
        A(f"buffer_load_dwordx4 {vr(WF+4*i,4)}, v{WO}, s[20:23], {'0' if i == 0 else 's%d' % (44+i)} offen")
    A(f"buffer_load_dwordx4 {vr(AF,4)}, v{XO}, s[24:27], s44 offen")
    A(f"buffer_load_dwordx4 {vr(XF,4)}, v{XO}, s[28:31], s44 offen")
    srd(A, 52, 34, 0, N * 128)
    A(f"v_cmp_gt_u32 vcc, {N}, v12")
    A("s_mov_b64 s[50:51], vcc")
    A("s_waitcnt vmcnt(14)")
    stamp(A, 1)
    A(f"v_add_f32 v{LR}, v{LR}, v{LR+1}")
    A(f"v_add_f32 v{LR+2}, v{LR+2}, v{LR+3}")
    A(f"v_add_f32 v{LR}, v{LR}, v{LR+2}")
    A(f"v_cmp_nle_f32 vcc, {f2u(2.0**-64):#x}, v{LR}")
    A("s_and_b64 s[48:49], vcc, s[50:51]")
    A(f"v_cmp_nge_f32 vcc, {f2u(2.0**100):#x}, v{LR}")
    A("s_and_b64 vcc, vcc, s[50:51]")
    A("s_or_b64 vcc, vcc, s[48:49]")
    A("s_cbranch_scc1 K3_FB")
    A("K3_COMMON:")
    A(f"v_rcp_f32 v{LR}, v{LR}")
    A("s_waitcnt vmcnt(6)")
    for i in range(4):
        A(f"v_pk_add_f32 {vr(PR+2*i,2)}, {vr(PR+2*i,2)}, {vr(PR+8+2*i,2)}")
        A(f"v_pk_add_f32 {vr(PR+16+2*i,2)}, {vr(PR+16+2*i,2)}, {vr(PR+24+2*i,2)}")
    A(f"v_mov_b32 v{LR+1}, v{LR}")
    for i in range(4):
        A(f"v_pk_add_f32 {vr(PR+2*i,2)}, {vr(PR+2*i,2)}, {vr(PR+16+2*i,2)}")
    for i in range(4):
        A(f"v_pk_mul_f32 {vr(PR+2*i,2)}, {vr(PR+2*i,2)}, {vr(LR,2)}")
    for i in range(4):
        A(f"v_cvt_pk_bf16_f32 v{PR+8+i}, v{PR+2*i}, v{PR+2*i+1}")
    A("s_waitcnt vmcnt(1)")
    stamp(A, 2)
    A(f"v_mfma_f32_32x32x16_bf16 {vr(D,16)}, {vr(WF,4)}, {vr(AF,4)}, 0")
    A(f"v_mfma_f32_32x32x16_bf16 {vr(D+16,16)}, {vr(WF+4,4)}, {vr(AF,4)}, 0")
    A(f"v_mfma_f32_32x32x16_bf16 {vr(D,16)}, {vr(WF+8,4)}, {vr(PR+8,4)}, {vr(D,16)}")
    A(f"v_mfma_f32_32x32x16_bf16 {vr(D+16,16)}, {vr(WF+12,4)}, {vr(PR+8,4)}, {vr(D+16,16)}")
    A(f"v_lshl_add_u32 v12, v1, 13, v{DV}")
    A("s_mov_b32 s48, 0xffff0000")
    A("s_nop 9")
    for q in range(8):
        A(f"ds_write_b128 v12, {vr(D+4*q,4)} offset:{1024*q}")
    A("s_waitcnt vmcnt(0)")
    for i in range(4):
        A(f"v_lshlrev_b32 v{WF+2*i}, 16, v{XF+i}")
        A(f"v_and_b32 v{WF+2*i+1}, s48, v{XF+i}")
    A("s_waitcnt lgkmcnt(0)")
    A("s_barrier")
    for s in range(4):
        A(f"ds_read_b128 {vr(PR+8*s,4)}, v{PO} offset:{8192*s}")
        A(f"ds_read_b128 {vr(PR+8*s+4,4)}, v{PO} offset:{8192*s+1024}")
    A("s_waitcnt lgkmcnt(4)")
    for i in range(4):
        A(f"v_pk_add_f32 {vr(PR+2*i,2)}, {vr(PR+2*i,2)}, {vr(PR+8+2*i,2)}")
    A("s_waitcnt lgkmcnt(0)")
    for i in range(4):
        A(f"v_pk_add_f32 {vr(PR+16+2*i,2)}, {vr(PR+16+2*i,2)}, {vr(PR+24+2*i,2)}")
    for i in range(4):
        A(f"v_pk_add_f32 {vr(PR+2*i,2)}, {vr(PR+2*i,2)}, {vr(PR+16+2*i,2)}")
    for i in range(4):
        A(f"v_cvt_pk_bf16_f32 v{PR+8+i}, v{PR+2*i}, v{PR+2*i+1}")
    for i in range(4):
        A(f"v_lshlrev_b32 v{PR+2*i}, 16, v{PR+8+i}")
        A(f"v_and_b32 v{PR+2*i+1}, s48, v{PR+8+i}")
    for i in range(4):
        A(f"v_pk_add_f32 {vr(PR+2*i,2)}, {vr(PR+2*i,2)}, {vr(WF+2*i,2)}")
    for i in range(4):
        A(f"v_cvt_pk_bf16_f32 v{PR+8+i}, v{PR+2*i}, v{PR+2*i+1}")
    A(f"buffer_store_dwordx4 {vr(PR+8,4)}, v{XO}, s[52:55], s44 offen")
    stamp_dump(A, 2, 4, 3, 8)
    A("K3_END:")
    A("s_endpgm")
    Q = 112; MX = 14; CI = S0 + 16
    A("K3_FB:")
    srd(A, 8, 4, WS_G, N * 128)
    srd(A, 12, 4, WS_Q, NQT * 4096)
    for j in range(4):
        A(f"buffer_load_dwordx4 {vr(Q+4*j,4)}, v{DV}, s[12:15], s44 offen offset:{1024*j}")
    A("s_lshl_b32 s36, s3, 12")
    frag_addrs(A, 0, 36, 12, 13)
    A("s_mov_b32 m0, s36")
    A(f"v_mov_b32 v{MX}, 0xff800000")
    A("v_cmp_lt_u32 vcc, 31, v0")
    A("s_waitcnt vmcnt(0)")
    A(f"v_and_b32 v12, 0xffff, v{Q+15}")
    A(f"v_cndmask_b32 v{Q+15}, v{Q+15}, v12, vcc")
    for ps in range(2):
        A("s_lshl_b32 s37, s3, 12")
        A(f"K3_P{ps}:")
        for i in range(4):
            A(f"buffer_load_dwordx4 v{DV}, s[8:11], s37 offen offset:{1024*i} lds")
        A("s_waitcnt vmcnt(0)")
        for j in range(4):
            A(kread(j, 0))
        if ps:
            for ks in range(2):
                for dh in range(2):
                    A.many(vread(ks, dh, 0))
        A("s_waitcnt lgkmcnt(0)")
        for j in range(4):
            c = ("0" if ps == 0 else vr(CI, 16)) if j == 0 else vr(S0, 16)
            A(f"v_mfma_f32_32x32x16_bf16 {vr(S0,16)}, {vr(KF+4*j,4)}, {vr(Q+4*j,4)}, {c}")
        A("s_nop 7")
        A("s_nop 7")
        A(f"s_cmp_eq_u32 s37, {(NQT-1)*4096}")
        for ks in range(2):
            if ks:
                A(f"s_cbranch_scc1 K3_S{ps}")
            if ps == 0:
                for r in range(4):
                    A(f"v_max3_f32 v{MX}, v{MX}, v{S0+8*ks+2*r}, v{S0+8*ks+2*r+1}")
            else:
                for r in range(8):
                    A(f"v_exp_f32 v{S0+8*ks+r}, v{S0+8*ks+r}")
                A("s_nop 2")
                A(pv(0, 0, ks, 0)); A(pv(0, 0, ks, 1))
        A(f"K3_S{ps}:")
        A("s_add_u32 s37, s37, 0x4000")
        A(f"s_cmp_lt_u32 s37, {NQT*4096}")
        A(f"s_cbranch_scc1 K3_P{ps}")
        if ps == 0:
            A(f"v_mov_b32 v12, v{MX}")
            A(f"v_mov_b32 v13, v{MX}")
            A("v_lshlrev_b32 v15, 2, v0")
            A("s_nop 0")
            A("v_permlane32_swap_b32 v12, v13")
            A("s_nop 1")
            A(f"v_max_f32 v{MX}, v12, v13")
            A("v_lshl_add_u32 v12, v1, 8, v15")
            A(f"ds_write_b32 v12, v{MX} offset:32768")
            A("s_waitcnt lgkmcnt(0)")
            A("s_barrier")
            for s in range(4):
                A(f"ds_read_b32 v{CI+s}, v15 offset:{32768+256*s}")
            A("s_waitcnt lgkmcnt(0)")
            A(f"v_max3_f32 v{MX}, v{CI}, v{CI+1}, v{CI+2}")
            A(f"v_max_f32 v{MX}, v{MX}, v{CI+3}")
            for r in range(16):
                A(f"v_sub_f32 v{CI+r}, 0, v{MX}")
            for r in range(32):
                A(f"v_mov_b32 v{O+r}, 0")
    A("s_nop 7")
    A("s_nop 7")
    A("s_barrier")
    A(f"v_lshl_add_u32 v12, v1, 13, v{DV}")
    for q in range(8):
        A(f"ds_write_b128 v12, {vr(O+4*q,4)} offset:{1024*q}")
    A("s_waitcnt lgkmcnt(0)")
    A("s_barrier")
    for s in range(4):
        A(f"ds_read_b128 {vr(PR+8*s,4)}, v{PO} offset:{8192*s}")
        A(f"ds_read_b128 {vr(PR+8*s+4,4)}, v{PO} offset:{8192*s+1024}")
        A(f"ds_read_b32 v{LR+s}, v{LO} offset:{8192*s}")
    A("s_waitcnt lgkmcnt(0)")
    A("s_barrier")
    A(f"v_add_f32 v{LR}, v{LR}, v{LR+1}")
    A(f"v_add_f32 v{LR+2}, v{LR+2}, v{LR+3}")
    A(f"v_add_f32 v{LR}, v{LR}, v{LR+2}")
    A("s_branch K3_COMMON")
    return dict(name="k3_kernel", grid=NQT, block=256, lds=K3_LDS, vgpr=224, sgpr=64)
```

```python
from fc import *
WF = Q + 16
XF = S0 + 16
ONE = 240
XO, WO, RA = 12, 13, 14

def xhalf_sum(A, x, t0, t1):
    A(f"v_mov_b32 v{t0}, v{x}")
    A(f"v_mov_b32 v{t1}, v{x}")
    A("s_nop 1")
    A(f"v_permlane32_swap_b32 v{t0}, v{t1}")
    A("s_nop 1")
    A(f"v_add_f32 v{x}, v{t0}, v{t1}")
def bfround(A, x):
    A(f"v_cvt_pk_bf16_f32 v{x}, v{x}, v{x}")
    A(f"v_lshlrev_b32 v{x}, 16, v{x}")

def gen_ln_q(A):
    A("s_load_dwordx2 s[16:17], s[0:1], 0")
    A("v_and_b32 v3, 31, v0")
    A("v_lshrrev_b32 v4, 5, v0")
    A(f"s_lshr_b32 s42, s3, 1")
    A(f"s_xor_b32 s42, s{SW}, s42")
    A("s_mul_i32 s42, s42, 40")
    A(f"s_and_b32 s43, s{SW}, -4")
    A("s_mul_i32 s43, s43, 40")
    A("s_add_u32 s43, s43, 32")
    A("v_lshrrev_b32 v7, 3, v3")
    A("v_and_b32 v8, 7, v3")
    A("v_mad_u32_u24 v8, v7, 40, v8")
    A("s_cmp_eq_u32 s3, 1")
    A("s_cselect_b32 s42, s43, s42")
    A("s_cselect_b64 vcc, -1, 0")
    A("v_cndmask_b32 v8, v3, v8, vcc")
    A("v_add_u32 v8, s42, v8")
    A("v_lshlrev_b32 v5, 7, v8")
    A("v_lshl_add_u32 v5, v4, 4, v5")
    A(f"v_cmp_eq_u32 s[44:45], s{SI}, v7")
    A(f"s_mov_b32 s18, {N*128}")
    A("s_mov_b32 s19, 0x20000")
    Xr = 16; F = 96; HB = 192; HH = 208; MT = 32; QT = 64
    A("s_waitcnt lgkmcnt(0)")
    for j in range(4):
        A(f"buffer_load_dwordx4 {vr(Xr+4*j,4)}, v5, s[16:19], 0 offen offset:{32*j}")
    st(A, "lni")
    flag_srd(A)
    if "t" in X:
        srd(A, 48, 4, WS_G, 0x300000)
        A("v_lshlrev_b32 v7, 20, v0")
        A("buffer_load_dword v10, v7, s[48:51], 0 offen sc1")
    A(f"v_mov_b32 v{ONE}, 1")
    A("s_cmp_eq_u32 s3, 0")
    A("s_cselect_b64 s[44:45], -1, s[44:45]")
    A("s_cmp_eq_u32 s3, 2")
    A("s_cselect_b64 s[44:45], 0, s[44:45]")
    A("v_mov_b32 v7, 0x70000000")
    A("v_cndmask_b32 v5, v7, v5, s[44:45]")
    A("v_and_b32 v7, 2, v8")
    A("v_lshlrev_b32 v7, 1, v7")
    A("v_bfe_u32 v8, v8, 2, 2")
    A("v_or_b32 v7, v7, v8")
    A("v_lshlrev_b32 v7, 4, v7")
    A("v_xor_b32 v8, v5, v7")
    srd(A, 48, 4, WS_G, N * 128)
    srd(A, 52, 4, WS_H, N * 128)
    A("v_cmp_eq_u32 s[44:45], 1, v4")
    A("s_mov_b32 s47, 0xffff0000")
    A(f"s_lshl_b32 s42, s3, 12")
    A(f"s_add_u32 s42, s42, {QX}")
    A(f"v_add_u32 v9, s42, v{DV}")
    A(f"v_add_u32 v6, {MTL}, v{DV}")
    A(f"s_lshl_b32 s43, s{SW}, 7")
    A("s_waitcnt vmcnt(1)" if "t" in X else "s_waitcnt vmcnt(0)")
    st(A, "lnx")
    T0 = 228
    for i in range(16):
        A(f"v_lshlrev_b32 v{F+2*i}, 16, v{Xr+i}")
        A(f"v_and_b32 v{F+2*i+1}, s47, v{Xr+i}")
    p0, p1 = vr(T0, 2), vr(T0+2, 2)
    A(f"v_pk_add_f32 {p0}, {vr(F,2)}, {vr(F+2,2)}")
    A(f"v_pk_add_f32 {p1}, {vr(F+4,2)}, {vr(F+6,2)}")
    for i in range(4, 16, 2):
        A(f"v_pk_add_f32 {p0}, {p0}, {vr(F+2*i,2)}")
        A(f"v_pk_add_f32 {p1}, {p1}, {vr(F+2*i+2,2)}")
    A(f"v_pk_add_f32 {p0}, {p0}, {p1}")
    A(f"v_add_f32 v{T0}, v{T0}, v{T0+1}")
    xhalf_sum(A, T0, T0+2, T0+3)
    A(f"v_mul_f32 v{T0}, {f2u(-1.0/64):#x}, v{T0}")
    A(f"v_mov_b32 v{T0+1}, v{T0}")
    for i in range(16):
        A(f"v_pk_add_f32 {vr(F+2*i,2)}, {vr(F+2*i,2)}, {p0}")
    def sumsq(B):
        A(f"v_pk_mul_f32 {p0}, {vr(B,2)}, {vr(B,2)}")
        A(f"v_pk_mul_f32 {p1}, {vr(B+2,2)}, {vr(B+2,2)}")
        for i in range(2, 16, 2):
            A(f"v_pk_fma_f32 {p0}, {vr(B+2*i,2)}, {vr(B+2*i,2)}, {p0}")
            A(f"v_pk_fma_f32 {p1}, {vr(B+2*i+2,2)}, {vr(B+2*i+2,2)}, {p1}")
        A(f"v_pk_add_f32 {p0}, {p0}, {p1}")
        A(f"v_add_f32 v{T0}, v{T0}, v{T0+1}")
        xhalf_sum(A, T0, T0+2, T0+3)
    sumsq(F)
    A(f"v_mul_f32 v{T0}, {f2u(1.0/64):#x}, v{T0}")
    bfround(A, T0)
    A(f"v_add_f32 v{T0}, {f2u(1e-5):#x}, v{T0}")
    bfround(A, T0)
    A(f"v_sqrt_f32 v{T0}, v{T0}")
    A("s_nop 0")
    bfround(A, T0)
    A(f"v_rcp_f32 v{T0}, v{T0}")
    A("s_nop 0")
    A(f"v_mov_b32 v{T0+1}, v{T0}")
    for i in range(16):
        A(f"v_pk_mul_f32 {vr(F+2*i,2)}, {vr(F+2*i,2)}, {p0}")
    for i in range(16):
        A(f"v_cvt_pk_bf16_f32 v{HB+i}, v{F+2*i}, v{F+2*i+1}")
    A(f"v_and_b32 v{T0}, 0xffff, v{HB+15}")
    A(f"v_or_b32 v{T0}, 0x3f800000, v{T0}")
    for k in range(3):
        A(f"v_mov_b32 v{224+k}, v{HB+12+k}")
    A(f"v_cndmask_b32 v227, v{HB+15}, v{T0}, s[44:45]")
    st(A, "lnv")
    for j in range(4):
        if j:
            A(f"v_xor_b32 v{T0+j}, {32*j}, v8")
        src = vr(HB+4*j, 4) if j < 3 else "v[224:227]"
        A(f"buffer_store_dwordx4 {src}, v{8 if j == 0 else T0+j}, s[48:51], 0 offen sc1")
    st(A, "lng")
    for i in range(16):
        A(f"v_cvt_pk_f16_f32 v{HH+i}, v{F+2*i}, v{F+2*i+1}")
    for j in range(4):
        A(f"buffer_store_dwordx4 {vr(HH+4*j,4)}, v5, s[52:55], 0 offen offset:{32*j} sc1")
    A("s_barrier")
    A("s_barrier")
    for q in range(8):
        A(f"ds_read_b128 {vr(MT+4*q,4)}, v6 offset:{1024*q}")
    A("s_waitcnt lgkmcnt(0)")
    st(A, "lnw")
    for b in range(2):
        for j in range(4):
            c = "0" if j == 0 else vr(QT+16*b, 16)
            A(f"v_mfma_f32_32x32x16_bf16 {vr(QT+16*b,16)}, {vr(MT+16*b+4*j,4)}, {vr(HB+4*j,4)}, {c}")
    lds_wait(A, "L_WN", 0, 1, T0)
    A(f"s_mov_b32 s{SN}, s57")
    A("s_cmp_eq_u32 s3, 2")
    A("s_cbranch_scc1 L_F")
    A("s_mov_b64 exec, 1")
    A("s_waitcnt vmcnt(4)")
    st(A, "lnd")
    A(f"ds_add_rtn_u32 v{T0+1}, v{MB}, v{ONE} offset:28")
    A("s_waitcnt lgkmcnt(0)")
    A(f"v_cmpx_eq_u32 vcc, 1, v{T0+1}")
    A("s_cbranch_execz L_G")
    A(f"buffer_store_dword v{T0}, off, s[12:15], s43 sc1")
    A("L_G:")
    A("s_mov_b64 exec, -1")
    A("L_F:")
    A("s_nop 7")
    sumsq(QT)
    A(f"v_sqrt_f32 v{T0}, v{T0}")
    A(f"v_mov_b32 v{T0+2}, v{QT+31}")
    A(f"v_mov_b32 v{T0+3}, v{QT+31}")
    A(f"s_mov_b32 s42, {f2u(LOG2E/8):#x}")
    A(f"s_mov_b32 s43, {f2u(LOG2E/8):#x}")
    A(f"v_permlane32_swap_b32 v{T0+2}, v{T0+3}")
    A(f"v_mul_f32 v{T0}, {f2u(-LOG2E):#x}, v{T0}")
    A(f"v_add_f32 v{T0}, {f2u(64.0):#x}, v{T0}")
    A(f"v_mul_f32 v{T0+2}, {f2u(-LOG2E/8):#x}, v{T0+3}")
    A(f"v_mov_b32 v{T0+3}, v{T0+2}")
    for i in range(16):
        A(f"v_pk_fma_f32 {vr(QT+2*i,2)}, {vr(QT+2*i,2)}, s[42:43], {p1}")
    A(f"v_cndmask_b32 v{QT+31}, v{QT+31}, v{T0}, s[44:45]")
    for i in range(16):
        A(f"v_cvt_pk_bf16_f32 v{Xr+i}, v{QT+2*i}, v{QT+2*i+1}")
    for j in range(4):
        A(f"ds_write_b128 v9, {vr(Xr+4*j,4)} offset:{1024*j}")
    lds_signal(A, 24, ONE)
    st(A, "lnc")
    A("s_waitcnt vmcnt(0)")
    lds_signal(A, 36, ONE)
    st(A, "lnq")

def gen_w3(A):
    A("s_load_dwordx4 s[28:31], s[0:1], 40")
    A("s_load_dwordx2 s[16:17], s[0:1], 80")
    A("v_and_b32 v3, 31, v0")
    A("v_lshrrev_b32 v4, 5, v0")
    pi_perm(A, 6, 3, 7)
    A("v_lshlrev_b32 v6, 7, v6")
    A("v_lshl_add_u32 v6, v4, 4, v6")
    A("s_movk_i32 s18, 256")
    A("s_mov_b32 s19, 0x20000")
    A("s_movk_i32 s47, 0x1000")
    A(f"v_mov_b32 v{ONE}, 1")
    A(f"v_add_u32 v5, {MTL}, v{DV}")
    A("s_waitcnt lgkmcnt(0)")
    srd(A, 20, 28, 0, 8192)
    srd(A, 24, 30, 0, 8192)
    WQ = 32; WK = 64; M = 128; MT = 192
    for a in range(2):
        so = "0" if a == 0 else "s47"
        for j in range(4):
            A(f"buffer_load_dwordx4 {vr(WQ+16*a+4*j,4)}, v6, s[20:23], {so} offen offset:{32*j}")
        for j in range(4):
            A(f"buffer_load_dwordx4 {vr(WK+16*a+4*j,4)}, v6, s[24:27], {so} offen offset:{32*j}")
    A("buffer_load_dword v16, off, s[16:19], 0 sc1")
    flag_srd(A)
    A("s_barrier")
    A("s_waitcnt vmcnt(1)")
    for j in range(4):
        for a in range(2):
            for b in range(2):
                d = M + 32*b + 16*a
                c = "0" if j == 0 else vr(d, 16)
                A(f"v_mfma_f32_32x32x16_bf16 {vr(d,16)}, {vr(WQ+16*a+4*j,4)}, {vr(WK+16*b+4*j,4)}, {c}")
    A("s_nop 7")
    A("s_nop 3")
    for a in range(2):
        for b in range(2):
            for j in range(2*a, 2*a+2):
                s = M + 32*b + 16*a + 8*(j & 1)
                for k in range(4):
                    A(f"v_cvt_pk_bf16_f32 v{MT+16*b+4*j+k}, v{s+2*k}, v{s+2*k+1}")
                A(f"ds_write_b128 v5, {vr(MT+16*b+4*j,4)} offset:{1024*(4*b+j)}")
    A("s_waitcnt lgkmcnt(0)")
    st(A, "m3")
    A("s_barrier")
    A(f"s_mov_b32 s58, {LIMIT}")
    A("N_L:")
    A("s_waitcnt vmcnt(0)")
    A(f"v_readfirstlane_b32 s{SN}, v16")
    A("s_sub_u32 s58, s58, 1")
    A("s_cbranch_scc1 N_X")
    A(f"s_cmp_lg_u32 s{SN}, 0")
    A("s_cbranch_scc1 N_X")
    A("buffer_load_dword v16, off, s[16:19], 0 sc1")
    A("s_branch N_L")
    A("N_X:")
    A(f"s_or_b32 s{SN}, s{SN}, 1")
    A(f"v_mov_b32 v16, s{SN}")
    A(f"ds_write_b32 v{MB}, v16")
    st(A, "n3")

def emit_step(A, M, pre, post, sb):
    for g in range(8):
        A.many(pre[g])
        if M[g]: A(M[g])
        A.many(post[g])
        s = S0 + 16*sb + 2*g
        A(f"v_exp_f32 v{s}, v{s}")
        if g == 7: A.many(pre[8])
        A(f"v_exp_f32 v{s+1}, v{s+1}")

def gen_loop(A, tl, iters, name):
    T = len(tl)
    A(f"s_mov_b32 s38, {iters-1}")
    A(".p2align 6")
    A(f"{name}:")
    U = 5*T
    for u in range(U):
        k, t = divmod(u, T)
        tp = tl[(u - 1) % T]; tn = tl[(u + 1) % T]; tc = tl[t]
        M = [pv(tp, tp, 0, 1), pv(tp, tp, 1, 0), pv(tp, tp, 1, 1)] + [qk(tn, j, tn) for j in range(4)] + [pv(tc, tc, 0, 0)]
        pre = [[] for _ in range(9)]
        post = [[] for _ in range(8)]
        if t == 0:
            vs = vread(0, 0, k)[1:] + vread(0, 1, k) + vread(1, 0, k) + vread(1, 1, k)
            for g in range(7):
                post[g].append(vs[g])
            pre[7].append(f"s_waitcnt lgkmcnt({2 if T > 2 else 5})")
        if t == 1:
            pre[2].append("s_waitcnt vmcnt(12) lgkmcnt(0)" if T == 3 else "s_waitcnt lgkmcnt(0)")
            pre[3 if T == 2 else 5].append(f"s_mov_b32 m0, s{48+k}")
            if k == 3 and T == 3: post[0].append(f"ds_read_b32 v{ONE+1}, v{MB} offset:36")
        if t == T - 2:
            if T == 2:
                pre[3].append("s_waitcnt vmcnt(12)")
            for j in range(4):
                post[3+j].append(kread(j, (k + 1) % 5))
        if t == T - 1:
            if T == 3:
                pre[3].append("s_waitcnt lgkmcnt(0)")
            for j in range(4):
                post[3+j].append(dma_ld(j))
            pre[7].append("s_add_u32 s37, s37, s45")
            post[7] += vread(0, 0, (k + 1) % 5)[:1]
        if u == U - 1:
            pre[8].append("s_sub_u32 s38, s38, 1")
        emit_step(A, M, pre, post, tc)
    A(f"s_cbranch_scc0 {name}")

def dump(t, a=None):
    return [f"ds_write_b128 v{RA if a is None else a}, {vr(O+32*t+4*q,4)} offset:{1024*q}" for q in range(8)]

def final_loads():
    L = []
    for i in range(4):
        L.append(f"buffer_load_dwordx4 {vr(WF+4*i,4)}, v{WO}, s[20:23], {'0' if i == 0 else 's%d' % (60+i)} offen sc1")
    L.append(f"buffer_load_dwordx4 {vr(XF,4)}, v{XO}, s[16:19], 0 offen")
    return L

def final_setup_v(A):
    A("v_and_b32 v16, 31, v0")
    A("v_lshrrev_b32 v17, 5, v0")
    A("v_and_b32 v18, 7, v16")
    A("v_add_u32 v18, 32, v18")
    A("v_lshrrev_b32 v19, 3, v16")
    A("s_cmp_ge_u32 s3, 4")
    A("s_cselect_b64 vcc, -1, 0")
    A(f"v_cmp_eq_u32 s[54:55], s{SI}, v19")
    A("v_cndmask_b32 v16, v16, v18, vcc")
    A(f"s_lshl_b32 s42, s{SV}, 5")
    A("v_lshl_add_u32 v17, v17, 4, s42")
    A(f"v_mul_u32_u24 v1, {ASTR}, v16")
    A("v_add_u32 v1, v1, v17")
    A(f"v_add_u32 v1, {AL}, v1")
    A(f"s_mul_i32 s42, s{SW}, {40*128}")
    A(f"v_lshl_add_u32 v{XO}, v16, 7, v17")
    A(f"v_add_u32 v{XO}, s42, v{XO}")
    A("s_andn2_b64 vcc, vcc, s[54:55]")
    A("v_mov_b32 v18, 0x70000000")
    A(f"v_cndmask_b32 v{XO}, v{XO}, v18, vcc")
    A(f"s_lshl_b32 s42, s{SV}, 10")
    A(f"v_add_u32 v{WO}, s42, v{DV}")
    A(f"s_lshl_b32 s42, s{SV}, 13")
    A(f"s_add_u32 s42, s42, {STG}")
    A(f"v_add_u32 v{RA}, s42, v{DV}")

def final_setup_s(A):
    A(f"s_lshl_b32 s54, s{SI}, 3")
    A("s_lshl_b32 s54, 0xff, s54")
    A("s_mov_b32 s55, s54")
    srd(A, 16, 6, 0, N * 128)
    srd(A, 20, 4, WS_W, 16384)
    srd(A, 24, 28, 0, N * 128)
    A("s_movk_i32 s61, 0x1000")
    A("s_movk_i32 s62, 0x2000")
    A("s_movk_i32 s63, 0x3000")

class Track:
    def __init__(self): self.q = {"l": [], "v": []}
    def add(self, ins, tag):
        self.q["l" if ins.startswith("ds_") else "v"].append(tag); return ins
    def cnt(self, c, tags):
        q = self.q[c]; last = max([i for i, t in enumerate(q) if t in tags], default=-1)
        return min(len(q) - 1 - last, 15 if c == "l" else 63)

SEQS = {
 "2": "O35 S35 S36 S37 S38 O36 O37 O38 O39 O40",
 "4": "O35 S35 O36 S36 S37 O37 O38 O39 O40 O41",
 "4b": "O35 S35 S36 S37 O36 O37 O38 O39 O40 O41",
 "6": "O35 S35 S36 O36 O37 O38 O39 O40 O41 O42",
 "8": "O35 S35 O36 O37 O38 O39 O40 O41 O42 O43",
}
def gen_t1(A):
    seq = [(int(w[1:]), 0 if w[0] == "O" else 2) for w in SEQS[os.environ.get("SEQ", "2")].split()]
    n = len(seq); P = [a for a, _ in seq]; last = max(P)
    ms = max(i for i in range(n) if seq[i][1] == 2)
    assert P[0] == 35 and P[1] == 35
    L = []
    def ins(s, tag=None): L.append((s, tag))
    def wait(l=None, v=None): L.append(("WAIT", (l, v)))
    pre_l = ["V0"]; pre_v = [f"D{k}" for k in (36, 37, 38, 39) for _ in range(4)]
    ins("s_add_u32 s37, s37, s47")
    dl = dump(2); fl = final_loads()
    newv = lambda i: i == 0 or P[i] != P[i-1]
    nd = 40
    for i in range(n):
        sb = 0 if i % 2 == 0 else 2; so = 2 - sb
        tp = 2 if i == 0 else seq[i-1][1]
        M = [pv(so, tp, 0, 1), pv(so, tp, 1, 0), pv(so, tp, 1, 1)] + [qk(so, j, seq[i+1][1]) if i + 1 < n else None for j in range(4)] + [pv(sb, seq[i][1], 0, 0)]
        k = P[i] % 5
        vs = vread(0, 0, k)[1:] + vread(0, 1, k) + vread(1, 0, k) + vread(1, 1, k)
        vt = [f"V{i}"]*5 + [f"W{i}"]*2
        rk = i + 2 < n and P[i+2] != P[i+1]
        free = nd <= last and all(not (P[j] == nd - 5 and newv(j)) for j in range(i, n))
        for g in range(8):
            if g == 2:
                wait(l=[f"W{i-1}", f"K{i+1}"], v=[f"D{P[i+2]}"] if rk else None)
                if free: ins(f"s_mov_b32 m0, s{48+nd%5}")
            if g == 7 and newv(i): wait(l=[f"V{i}"])
            if M[g]: ins(M[g])
            if g < 7 and newv(i): ins(vs[g], vt[g])
            if 3 <= g <= 6 and rk: ins(kread(g-3, P[i+2] % 5), f"K{i+2}")
            if 2 <= g <= 5 and free: ins(dma_ld(g-2), f"D{nd}")
            if g == 6 and free: ins("s_add_u32 s37, s37, s45")
            if g == 7 and i + 1 < n and newv(i+1): ins(vread(0, 0, P[i+1] % 5)[0], f"V{i+1}")
            if i == ms + 3 and g in (0, 1, 6, 7): ins(fl.pop(0), "F")
            if i == ms + 4 and g == 0: ins(fl.pop(0), "F")
            if i == ms and g == 0: ins(f"ds_read_b32 v{ONE+1}, v{MB} offset:20", f"W{i}")
            if i == ms + 1 and g == 2: ins(f"v_readfirstlane_b32 s57, v{ONE+1}")
            if i == ms + 1 and g == 4:
                ins("s_cmp_lt_u32 s57, 4"); ins("s_cbranch_scc1 A_WC"); ins("A_WR:")
            if dl and (i, g) >= (ms + 1, 5):
                ins(dl.pop(0), "X"); ins(dl.pop(0), "X")
                if not dl:
                    ins("s_mov_b64 exec, 1"); ins(f"ds_add_u32 v{MB}, v{ONE} offset:8", "X"); ins("s_mov_b64 exec, -1")
            r = S0 + 16*sb + 2*g
            ins(f"v_exp_f32 v{r}, v{r}"); ins(f"v_exp_f32 v{r+1}, v{r+1}")
        if free: nd += 1
    assert not dl and not fl and nd == last + 1
    wait(l=[f"W{n-1}"])
    ins(pv(2, 0, 0, 1)); ins("s_nop 0"); ins(pv(2, 0, 1, 0)); ins(pv(2, 0, 1, 1))
    T = Track(); T.q["l"] = pre_l; T.q["v"] = pre_v
    for s_, tag in L:
        if s_ == "WAIT":
            l, v = tag; w = "s_waitcnt"
            if v: w += f" vmcnt({T.cnt('v', v)})"
            if l: w += f" lgkmcnt({T.cnt('l', l)})"
            A(w)
        else:
            if tag: T.add(s_, tag)
            A(s_)

def gen_attn(A):
    A("A_MAIN:")
    A("s_load_dwordx2 s[6:7], s[0:1], 0")
    A("s_load_dwordx2 s[28:29], s[0:1], 72")
    A(f"s_mul_i32 s42, s{SV}, {80*4096}")
    A(f"s_sub_u32 s10, {N*128}, s42")
    A(f"s_min_u32 s10, s10, {80*4096}")
    A("s_mov_b32 s11, 0x20000")
    A("s_add_u32 s8, s4, s42")
    A("s_addc_u32 s9, s5, 0")
    A(f"s_mul_i32 s36, s{SV}, {RING}")
    for k in range(5):
        A(f"s_add_u32 s{48+k}, s36, {4096*k}")
    A(f"s_lshl_b32 s45, s{SHF}, 13")
    A("s_sub_u32 s45, 0x1000, s45")
    A(f"s_mul_i32 s37, s{SHF}, {79*4096}")
    A(f"s_lshl_b32 s42, s{SHF}, 12")
    A(f"s_sub_u32 s42, {40*4096}, s42")
    A("s_mul_i32 s47, s45, -80")
    A(f"s_cmp_eq_u32 s{SP}, 0")
    A("s_cselect_b32 s37, s37, s42")
    A("s_cselect_b32 s47, 0, s47")
    frag_addrs(A, 0, 36, 18, 19)
    A("s_waitcnt lgkmcnt(0)")
    final_setup_v(A)
    final_setup_s(A)
    for r in list(range(O, O + 96, 2)) + list(range(S0+32, S0+48, 2)) + list(range(VF+4, VF+16, 2)):
        A(f"v_mov_b64 {vr(r,2)}, 0")
    A("v_lshlrev_b32 v17, 7, v0")
    A(f"s_lshl_b32 s42, s{SV}, 13")
    lds_wait(A, "A_WF", 28, 2, 16)
    st(A, "fg")
    A("s_cmp_eq_u32 s3, 3")
    A("s_cselect_b32 exec_hi, 0x03ffffff, -1")
    poll1(A, "A_PG", 17, "s42", 16)
    st(A, "a3")
    A("s_setprio 1")
    for k in range(5):
        A(f"s_mov_b32 m0, s{48+k}")
        A("s_nop 0")
        for i in range(4): A(dma_ld(i))
        A("s_add_u32 s37, s37, s45")
    lds_signal(A, 40, ONE)
    lds_wait(A, "A_WQ", 24, 3, 16)
    A(f"v_add_u32 v17, {QX}, v{DV}")
    for q in range(12):
        A(f"ds_read_b128 {vr(Q+4*q,4)}, v17 offset:{1024*q}")
    A("s_waitcnt vmcnt(16)")
    for j in range(4): A(kread(j, 0))
    A(vread(0, 0, 0)[0])
    A("s_waitcnt lgkmcnt(1)")
    for j in range(4): A(qk(0, j, 0))
    A("s_nop 7")
    st(A, "a4")
    gen_loop(A, [0, 1, 2], 4, "A_L3")
    st(A, "l3")
    A(f"v_readfirstlane_b32 s57, v{ONE+1}")
    A("s_cmp_lt_u32 s57, 7")
    A("s_cbranch_scc1 A_WP")
    A("A_WPR:")
    A.many(dump(1))
    A("s_mov_b64 exec, 1")
    A(f"ds_add_u32 v{MB}, v{ONE} offset:8")
    A("s_mov_b64 exec, -1")
    gen_loop(A, [0, 2], 3, "A_L2")
    st(A, "l2")
    gen_t1(A)
    st(A, "a5")
    A(f"v_add_u32 v{RA}, s36, v{DV}")
    A("s_nop 7")
    A("s_nop 2")
    A.many(dump(0))
    A("s_branch FINAL")
    A("A_WC:")
    lds_wait(A, "A_WC1", 20, 4, ONE+1)
    A("s_branch A_WR")

    A("A_WP:")
    lds_wait(A, "A_WP1", 36, 7, ONE+1)
    A("s_branch A_WPR")
```

```python
from fc import *
from fa import WF, XF, XO, WO, RA, final_setup_v, final_setup_s, final_loads

T = 140; RS = 176; PO = 177; EV = 178; PK = 180; EK = 192
TH = 60; MD = 40
GP = int(os.environ.get("GP", "0"))
DG = int(os.environ.get("DG", "6"))
def gen_sort(A):
    A("s_load_dwordx4 s[28:31], s[0:1], 8")
    A(f"s_lshl_b32 s42, s{SV}, 6")
    A("v_add_u32 v2, s42, v0")
    A("v_lshlrev_b32 v3, 4, v2")
    A("v_lshlrev_b32 v4, 3, v2")
    A(f"s_mul_i32 s50, s{SW}, {CH*4}")
    A("s_add_u32 s43, s50, 0x1000")
    A("s_add_u32 s44, s50, 0x2000")
    A("s_waitcnt lgkmcnt(0)")
    srd(A, 20, 30, 0, E * 4)
    srd(A, 24, 28, 0, E * 4)
    D = 16; S = 28; R = 40; B = 52
    def eloads(base, sd):
        A(f"buffer_load_dwordx4 {vr(base,4)}, v3, {sr(sd,4)}, s50 offen")
        A(f"buffer_load_dwordx4 {vr(base+4,4)}, v3, {sr(sd,4)}, s43 offen")
        A(f"buffer_load_dwordx2 {vr(base+8,2)}, v4, {sr(sd,4)}, s44 offen")
    Z = 64
    A(f"s_mov_b32 s49, {STG}")
    A(f"v_mov_b32 v10, {CELL}")
    A("v_lshrrev_b32 v5, 2, v2")
    A("v_and_b32 v7, 3, v2")
    A(f"v_mad_u32_u24 v73, v5, v10, s49")
    A("v_lshl_add_u32 v73, v7, 4, v73")
    A(f"s_and_b32 s42, s{SW}, 15")
    A("s_lshl_b32 s42, s42, 20")
    A("s_add_u32 s42, s42, 0x1000000")
    A(f"v_lshl_add_u32 v{Z+1}, v7, 18, s42")
    A("v_cmp_eq_u32 vcc, 0, v7")
    for r in range(2, 6):
        A(f"v_mov_b32 v{Z+r}, v{Z+1}")
    A(f"v_addc_co_u32 v{Z}, vcc, 0, v{Z+1}, vcc")
    for it in range(4):
        A(f"ds_write_b128 v73, {vr(Z,4)} offset:{64*CELL*it}")
        A(f"ds_write_b128 v73, {vr(Z+2,4)} offset:{64*CELL*it+64}")
    for r in range(4):
        A(f"v_mov_b32 v{Z+16+r}, -1")
        A(f"v_mov_b32 v{Z+20+r}, 0")
    A(f"v_add_u32 v5, {LL}, v3")
    for i in range(3):
        A(f"ds_write_b128 v5, {vr(Z+16,4)} offset:{4096*i}")
    A("v_mov_b32 v6, 1")
    A(f"v_lshlrev_b32 v5, 2, v0")
    A(f"v_add_u32 v8, {LST}, v5")
    A(f"v_add_u32 v5, {DUM}, v5")
    A(f"v_lshlrev_b32 v9, 8, v0")
    A(f"v_add_u32 v9, {LL}, v9")
    A("ds_write2st64_b32 v8, v9, v5 offset0:0 offset1:1")
    for i in range(3):
        A(f"ds_write_b128 v{MB}, {vr(Z+20,4)} offset:{16*i}")
    srd(A, 28, 4, WS_E, 2 * E2)
    flag_srd(A)
    A("s_mov_b32 s47, 52429")
    A("v_mov_b32 v7, 31")
    gather_setup(A)
    A("s_barrier")
    if "g" not in X: eloads(D, 20)
    if "a" in X: eloads(S, 24)
    A("s_waitcnt lgkmcnt(0)")
    A("s_barrier")
    if "p" in X: A("s_setprio 2")
    A("s_load_dwordx2 s[6:7], s[0:1], 24")
    A(f"s_cmp_ge_u32 s{SW}, {0 if 'x' in X else NB}")
    A("s_cbranch_scc1 B_3")
    if "g" in X:
        lds_wait(A, "B_WG", 40, 4, 5)
        eloads(D, 20); eloads(S, 24)
    A(f"s_waitcnt vmcnt({3 if 'g' in X or 'a' in X else 0}) lgkmcnt(0)")
    if "b" in X: eloads(S, 24)
    st(A, "bld")
    for i in range(10):
        A(f"v_mul_u32_u24 v{B+i}, s47, v{D+i}")
        A(f"v_lshrrev_b32 v72, 21, v{B+i}")
        A(f"v_mad_u32_u24 v{B+i}, v72, v10, s49")
        A(f"ds_add_rtn_u32 v{R+i}, v{B+i}, v6")
        A(f"v_mul_u32_u24 v72, 40, v72")
        A(f"v_sub_u32 v{D+i}, v{D+i}, v72")
    for i in range(10):
        A(f"s_waitcnt lgkmcnt({9-i})")
        A(f"v_min_u32_sdwa v{R+i}, v{R+i}, v7 dst_sel:DWORD dst_unused:UNUSED_PAD src0_sel:WORD_0 src1_sel:DWORD")
        A(f"v_lshl_add_u32 v{B+i}, v{R+i}, 2, v{B+i}")
    if not set("gab") & set(X):
        lds_wait(A, "B_WG", 40, 4, 5)
        st(A, "bgo")
        eloads(S, 24)
    A("s_waitcnt vmcnt(0)")
    st(A, "bsrc")
    for i in range(10):
        A(f"v_lshl_or_b32 v{S+i}, v{D+i}, 18, v{S+i}")
        A(f"ds_write_b32 v{B+i}, v{S+i}")
    lds_signal(A, 32, 6)
    A(f"s_lshl_b32 s42, s{SW}, 14")
    A(f"s_add_u32 s43, s42, {E2:#x}")
    lds_wait(A, "B_W1", 32, 4, 5)
    st(A, "bsort")
    for it in range(4):
        A(f"ds_read_b128 {vr(16+4*it,4)}, v73 offset:{64*CELL*it}")
    for it in range(4):
        A(f"ds_read_b128 {vr(32+4*it,4)}, v73 offset:{64*CELL*it+64}")
    A("v_mov_b32 v7, 16")
    for it in range(4):
        A(f"s_waitcnt lgkmcnt({7-it})")
        A(f"buffer_store_dwordx4 {vr(16+4*it,4)}, v3, s[28:31], s42 offen sc1")
        A(f"v_mov_b32_dpp v{48+it}, v{16+4*it} quad_perm:[0,0,0,0] row_mask:0xf bank_mask:0xf")
        A("s_add_u32 s42, s42, 0x1000")
    A("s_waitcnt lgkmcnt(0)")
    for it in range(4):
        A(f"v_cmp_gt_u32_sdwa vcc, v{48+it}, v7 src0_sel:WORD_0 src1_sel:DWORD")
        A("s_and_b64 exec, vcc, -1")
        A(f"s_cbranch_scc0 B_O{it}")
        A(f"buffer_store_dwordx4 {vr(32+4*it,4)}, v3, s[28:31], s43 offen sc1")
        A(f"B_O{it}:")
        A("s_mov_b64 exec, -1")
        A("s_add_u32 s43, s43, 0x1000")
    A("B_3:")
    A("s_waitcnt vmcnt(0) lgkmcnt(0)")
    st(A, "bpub")
    lds_signal(A, 36, 6)
    lds_wait(A, "B_W2", 0, 1, 5)
    A(f"s_mov_b32 s{SN}, s57")
    lds_wait(A, "B_W3", 36, 7, 5)
    A("s_cmp_lg_u32 s3, 4")
    A("s_cbranch_scc1 B_4")
    A(f"s_lshl_b32 s42, s{SW}, 7")
    A(f"s_add_u32 s42, s42, {FS}")
    flag_store(A, "s42", 16)
    A("B_4:")

EN = 140; PS = 16; BUF = 48; PR = 88; AC = 108; SA = 128; SX = 132
DI = 228; DO = 231; FO = 232; LR2 = 233; C16 = 234; LBV = 235; TWO = 236; AO = 237; C = 244
t0, t1, t2, t3 = 238, 239, 241, 242
def gather_setup(A):
    A(f"s_lshl_b32 s42, s{SV}, 12")
    A(f"v_add_u32 v{PO}, s42, v{DV}")
    A(f"s_lshl_b32 s42, s{SV}, 11")
    A(f"s_add_u32 s42, s42, {STG}")
    A(f"v_add_u32 v{RS}, s42, v{DV}")
    A(f"s_mov_b32 s{TH}, 4")
    A(f"v_mov_b32 v{EV}, 0")
    A(f"v_bfe_u32 v{t0}, v0, 3, 1")
    A(f"v_lshrrev_b32 v{t1}, 5, v0")
    A(f"v_cmp_eq_u32 vcc, v{t0}, v{t1}")
    A(f"v_lshl_add_u32 v{t0}, v{t0}, 1, v{t1}")
    A(f"v_lshlrev_b32 v{DO}, 1, v{t0}")
    A(f"v_and_b32 v{t1}, 1, v0")
    A(f"v_lshlrev_b32 v{t1}, 4, v{t1}")
    A(f"v_mov_b32 v{t2}, 0x3c00")
    A(f"v_lshlrev_b32 v{t1}, v{t1}, v{t2}")
    A(f"v_cndmask_b32 v{t1}, 0, v{t1}, vcc")
    A("s_mov_b32 vcc_lo, 0xf0f0f0f0")
    A("s_mov_b32 vcc_hi, vcc_lo")
    A(f"v_cndmask_b32 v{SA+1}, 0, v{t1}, vcc")
    A(f"v_sub_u32 v{SA}, v{t1}, v{SA+1}")
    A(f"v_mov_b32 v{SA+3}, v{SA+1}")
    A(f"v_mov_b32 v{SA+2}, v{SA}")
    A("s_mov_b32 vcc_lo, 0xcccccccc")
    A("s_mov_b32 vcc_hi, vcc_lo")
    A(f"v_mov_b32 v{t1}, 0xeeeeeeee")
    A(f"v_mov_b32 v{SX}, 0x44444444")
    A(f"v_cndmask_b32 v{SX}, v{SX}, v{t1}, vcc")
    for p in range(3):
        A(f"v_mov_b32 v{DI+p}, 0")
    for r in range(20):
        A(f"v_mov_b32 v{AC+r}, 0")
    A(f"v_and_b32 v{t1}, 7, v0")
    A(f"v_lshlrev_b32 v{PR+1}, 4, v{t1}")
    A(f"v_bfe_u32 v{t2}, v0, 4, 1")
    A(f"v_lshl_add_u32 v{t2}, v{t2}, 3, v{PR+1}")
    A(f"v_mul_u32_u24 v{AO}, {ASTR}, v{t0}")
    A(f"s_mul_i32 s42, s{SV}, {10*ASTR}")
    A(f"s_add_u32 s42, s42, {AL}")
    A(f"v_add3_u32 v{AO}, v{AO}, v{t2}, s42")
    A(f"v_lshl_add_u32 v{t2}, v{t0}, 7, v{t2}")
    for i in range(1, 10):
        A(f"v_mov_b32 v{PR+2*i+1}, v{PR+1}")
    A(f"v_mov_b32 v{LBV}, {LST}")
    A(f"s_mul_i32 s42, s{SV}, 2560")
    A(f"s_add_u32 s42, s42, {LL}")
    A(f"v_lshrrev_b32 v{t0}, 3, v0")
    A(f"v_lshl_add_u32 v{LR2}, v{t0}, 1, s42")
    A(f"v_mov_b32 v{TWO}, 2")
    A(f"v_mov_b32 v{C16}, 16")
    A(f"v_lshlrev_b32 v{FO}, 7, v2")
    A(f"v_lshrrev_b32 v{t3}, 2, v0")
    A(f"v_lshlrev_b32 v{t3}, 14, v{t3}")
    A(f"v_and_b32 v{t1}, 3, v0")
    A(f"v_lshl_add_u32 v{t3}, v{t1}, 4, v{t3}")
    A(f"v_lshlrev_b32 v{EN+12}, 18, v0")
    A(f"v_add_u32 v{EN+12}, 0x1000000, v{EN+12}")
    for r in range(13, 16):
        A(f"v_mov_b32 v{EN+r}, v{EN+12}")
    final_setup_v(A)

def gen_gather(A):
    srd(A, 8, 4, WS_PE, 0x800000)
    for j in range(3):
        A(f"v_mov_b32 v{PK+4*j+3}, s{SN}")
    A(f"s_cmp_ge_u32 s{SW}, {0 if 'y' in X else NB}")
    A("s_cbranch_scc1 B_X")
    srd(A, 16, 4, WS_H, N, stride=128)
    srd(A, 48, 6, 0, N * 2)
    A(f"s_mul_i32 s42, s{SW}, 80")
    A(f"s_mul_i32 s43, s{SV}, 20")
    A("s_add_u32 s42, s42, s43")
    for p in range(3):
        A(f"buffer_load_short_d16_hi v{DI+p}, v{DO}, s[48:51], s42 offen offset:{8*p}")
    A(f"s_lshl_b32 s44, s{SV}, 20")
    A(f"s_lshl_b32 s45, s{SW}, 6")
    A("s_add_u32 s44, s44, s45")
    A(f"s_cmp_eq_u32 s{SV}, 3")
    A("s_cselect_b32 s47, 0xff, -1")
    A(f"s_mov_b32 s45, {FS}")
    poll1(A, "B_PS", FO, "s45", t1)
    st(A, "bps")
    for it in range(4):
        if it == 3: A("s_mov_b32 exec_hi, s47")
        A(f"buffer_load_dwordx4 {vr(EN+4*it,4)}, v{t3}, s[28:31], s44 offen sc1")
        A("s_add_u32 s44, s44, 0x40000")
    A("s_mov_b64 exec, -1")
    A(f"s_add_u32 s44, s44, {E2 - 0x100000:#x}")
    def trip_a(k):
        A(f"v_add_u32_sdwa v{t1}, v{EN+k}, v{LBV} dst_sel:DWORD dst_unused:UNUSED_PAD src0_sel:WORD_1 src1_sel:DWORD")
        A(f"ds_add_rtn_u32 v{PS+k}, v{t1}, v{TWO}")
    A("s_waitcnt vmcnt(0)")
    for it in range(4):
        A(f"v_mov_b32_dpp v{C+it}, v{EN+4*it} quad_perm:[0,0,0,0] row_mask:0xf bank_mask:0xf")
    for it in range(4):
        A(f"v_and_b32 v{C+it}, 0xffff, v{C+it}")
    for it in range(4):
        A(f"v_cmp_gt_u32 s[{52+2*it}:{53+2*it}], v{C+it}, v{C16}")
    A(f"v_max3_u32 v{t1}, v{C}, v{C+1}, v{C+2}")
    A(f"v_max_u32 v{t1}, v{t1}, v{C+3}")
    A(f"v_cmp_lt_u32 vcc, 32, v{t1}")
    A(f"v_mov_b32 v{t1}, 0x101")
    A("s_cbranch_vccnz G_SYNC")
    for it in range(4):
        A(f"s_and_b64 exec, s[{52+2*it}:{53+2*it}], -1")
        A(f"s_cbranch_scc0 G_O{it}")
        A(f"buffer_load_dwordx4 {vr(EN+16+4*it,4)}, v{t3}, s[28:31], s44 offen sc1")
        A(f"G_O{it}:")
        A("s_add_u32 s44, s44, 0x40000")
    A("s_mov_b64 exec, -1")
    for k in range(16):
        trip_a(k)
    for k in range(16):
        if k % 4 == 0: A(f"s_waitcnt lgkmcnt(12)")
        A(f"ds_write_b16 v{PS+k}, v{EN+k}")
    A("s_waitcnt vmcnt(0)")
    for it in range(4):
        A(f"s_and_b64 exec, s[{52+2*it}:{53+2*it}], -1")
        A(f"s_cbranch_scc0 G_P{it}")
        for k in range(16+4*it, 20+4*it): trip_a(k)
        A(f"G_P{it}:")
    A("s_waitcnt lgkmcnt(0)")
    for it in range(4):
        A(f"s_and_b64 exec, s[{52+2*it}:{53+2*it}], -1")
        A(f"s_cbranch_scc0 G_Q{it}")
        for k in range(16+4*it, 20+4*it): A(f"ds_write_b16 v{PS+k}, v{EN+k}")
        A(f"G_Q{it}:")
    A("s_mov_b64 exec, -1")
    A(f"v_mov_b32 v{t1}, 1")
    A("G_SYNC:")
    A("s_waitcnt vmcnt(0)")
    lds_signal(A, 4, t1)
    lds_wait(A, "G_S1", 4, 4, t1, mask=0xff)
    st(A, "bl")
    A("s_cmp_gt_u32 s57, 0xff")
    A("s_cbranch_scc1 G_SLOW")
    A(f"ds_read_b32 v{t1}, v8")
    for i in range(10):
        A(f"ds_read_u16 v{PR+2*i}, v{LR2} offset:{256*i}")
    A(f"s_mul_i32 s43, s{SV}, 10")
    A("s_bfm_b64 s[52:53], 10, s43")
    A("s_waitcnt lgkmcnt(10)")
    A(f"v_sub_u32 v{t1}, v{t1}, v9")
    A(f"v_cmp_lt_u32 vcc, 0x100, v{t1}")
    A("s_cbranch_vccnz G_SLOW")
    def ld(i, it_off):
        A(f"buffer_load_dwordx4 {vr(BUF+4*i,4)}, {vr(PR+2*i,2)}, s[16:19], 0 idxen offen sc1")
        A(f"ds_read_u16 v{PR+2*i}, v{LR2} offset:{256*i+16*it_off}")
    def acc(p):
        A(f"v_smfmac_f32_16x16x64_f16 {vr(AC+4*p,4)}, {vr(SA,4)}, {vr(BUF+8*p,8)}, v{SX}")
    A(f"s_setprio {GP}")
    for i in range(10):
        A(f"s_waitcnt vmcnt({DG-1}) lgkmcnt(9)")
        ld(i, 1)
    A("s_mov_b32 s56, 16" if "z" not in X else "s_movk_i32 s56, 0x200")
    A("G_LOOP:")
    A(f"v_cmp_lt_u32 vcc, s56, v{t1}")
    A(f"v_readfirstlane_b32 s57, v{EV}")
    A(f"ds_read_b32 v{EV}, v{MB} offset:8")
    A("s_add_u32 s56, s56, 16")
    A("s_and_b64 vcc, vcc, s[52:53]")
    A("s_cbranch_scc0 G_DRAIN")
    A(f"s_cmp_ge_u32 s57, s{TH}")
    A("s_cbranch_scc1 G_H")
    A("G_RET:")
    for p in range(5):
        A(f"s_waitcnt vmcnt({DG-2}) lgkmcnt(8)")
        acc(p)
        ld(2*p, 2); ld(2*p+1, 2)
    A(f"v_add_u32 v{LR2}, 16, v{LR2}")
    A("s_branch G_LOOP")
    A("G_DRAIN:")
    for p in range(5):
        A(f"s_waitcnt vmcnt({8-2*p})")
        acc(p)
    A("s_nop 7")
    for p in range(5):
        for r in range(4):
            x = AC+4*p+r
            A(f"v_add_f32_dpp v{AC+8*(p>>1)+r}, v{x}, v{x} row_ror:8 row_mask:0xf bank_mask:{'0xc' if p & 1 else '0x3'}")
    A("G_FIN:")
    for k in range(3):
        x = AC+8*k
        for r in range(4):
            A(f"v_mul_f32 v{x+r}, v{x+r}, v{DI+k}")
        A(f"v_cvt_pk_bf16_f32 v{x}, v{x}, v{x+1}")
        A(f"v_cvt_pk_bf16_f32 v{x+1}, v{x+2}, v{x+3}")
        if k == 2:
            A("s_mov_b32 exec_lo, 0x00ff00ff")
            A("s_mov_b32 exec_hi, 0x00ff00ff")
        A(f"ds_write_b64 v{AO}, {vr(x,2)} offset:{4*ASTR*k}")
    A("s_mov_b64 exec, -1")
    A("B_X:")

def gen_slow(A):
    A("G_SLOW:")
    A("s_waitcnt vmcnt(0) lgkmcnt(0)")
    lds_signal(A, 16, 6)
    lds_wait(A, "G_S2", 16, 4, t1)
    A(f"v_add_u32 v{t0}, {LL}, v3")
    for r in range(4):
        A(f"v_mov_b32 v{AC+r}, 0")
    for i in range(3):
        A(f"ds_write_b128 v{t0}, {vr(AC,4)} offset:{4096*i}")
    A("s_waitcnt lgkmcnt(0)")
    lds_signal(A, 16, 6)
    lds_wait(A, "G_S3", 16, 8, t1)
    srd(A, 48, 4, WS_H, N * 128)
    A(f"v_lshlrev_b32 v{t0}, 2, v0")
    A(f"v_lshlrev_b32 v{t1}, 1, v0")
    A(f"v_add_u32 v{t3}, {LL}, v{t0}")
    A(f"s_mul_i32 s42, s{SW}, 40")
    A("s_mov_b64 s[44:45], 0")
    for it in range(4):
        A(f"v_cmp_lt_u32 vcc, 1, v{C+it}")
        A(f"s_and_b32 vcc_lo, vcc_lo, {0x11111111 << it:#x}")
        A(f"s_and_b32 vcc_hi, vcc_hi, {0x11111111 << it:#x}")
        A("s_or_b64 s[44:45], s[44:45], vcc")
    A("G_SC:")
    A("s_cmp_eq_u64 s[44:45], 0")
    A("s_cbranch_scc1 G_SE")
    A("s_ff1_i32_b64 s43, s[44:45]")
    A("s_bitset0_b64 s[44:45], s43")
    A("s_and_b32 s47, s43, 3")
    A("s_lshr_b32 s43, s43, 2")
    A(f"s_lshl2_add_u32 s47, s{SV}, s47")
    A("s_lshl4_add_u32 s43, s47, s43")
    A(f"s_mul_i32 s43, s43, {CH*4}")
    A(f"s_add_u32 s47, s43, {CH*4}")
    A("G_SS:")
    A(f"buffer_load_dword v{AC}, v{t0}, s[20:23], s43 offen")
    A(f"buffer_load_dword v{AC+1}, v{t0}, s[24:27], s43 offen")
    A("s_waitcnt vmcnt(0)")
    A(f"v_subrev_u32 v{AC}, s42, v{AC}")
    A(f"v_cmp_gt_u32 s[52:53], 40, v{AC}")
    A("G_SI:")
    A("s_cmp_eq_u64 s[52:53], 0")
    A("s_cbranch_scc1 G_SN")
    A("s_ff1_i32_b64 s56, s[52:53]")
    A("s_bitset0_b64 s[52:53], s56")
    A(f"v_readlane_b32 s57, v{AC+1}, s56")
    A(f"v_readlane_b32 s58, v{AC}, s56")
    A("s_lshl_b32 s57, s57, 7")
    A("s_lshl_b32 s58, s58, 8")
    A(f"buffer_load_ushort v{AC+2}, v{t1}, s[48:51], s57 offen sc1")
    A(f"v_add_u32 v{AC+3}, s58, v{t3}")
    A("s_waitcnt vmcnt(0)")
    A(f"v_cvt_f32_f16 v{AC+2}, v{AC+2}")
    A(f"ds_add_f32 v{AC+3}, v{AC+2}")
    A("s_waitcnt lgkmcnt(0)")
    A("s_branch G_SI")
    A("G_SN:")
    A("s_add_u32 s43, s43, 256")
    A("s_cmp_lt_u32 s43, s47")
    A("s_cbranch_scc1 G_SS")
    A("s_branch G_SC")
    A("G_SE:")
    lds_signal(A, 16, 6)
    lds_wait(A, "G_S4", 16, 12, t1)
    A(f"s_mul_i32 s43, s{SV}, 2560")
    A(f"s_add_u32 s43, s43, {LL}")
    A(f"v_lshl_add_u32 v{t0}, v{t2}, 1, s43")
    for k in range(3):
        A(f"ds_read_b128 {vr(AC+8*k,4)}, v{t0} offset:{1024*k}")
    A("s_waitcnt lgkmcnt(0)")
    A("s_branch G_FIN")

def gen_exchange(A):
    st(A, "bg")
    A("s_load_dwordx2 s[6:7], s[0:1], 0")
    A("s_load_dwordx2 s[28:29], s[0:1], 72")
    A("s_waitcnt lgkmcnt(0)")
    final_setup_s(A)
    A.many(final_loads())
    A(f"s_mov_b32 s{MD}, 1")
    A("s_setprio 0")
    A("X_D:")
    A(f"s_cmp_lg_u32 s{TH}, 4")
    A("s_cbranch_scc1 X_1")
    lds_wait(A, "X_WE", 8, 4, T)
    A("s_branch X_H")
    A("X_1:")
    A(f"s_cmp_eq_u32 s{MD}, 2")
    A("s_cbranch_scc1 X_2")
    A(f"ds_read_b32 v{T}, v{MB} offset:8")
    A("s_waitcnt lgkmcnt(0)")
    A(f"v_readfirstlane_b32 s57, v{T}")
    A(f"s_cmp_ge_u32 s57, s{TH}")
    A("s_cbranch_scc1 X_H")
    A(f"s_mov_b32 s{MD}, 2")
    for o in range(1, 4):
        A(f"s_xor_b32 s{41+o}, s{SW}, {o}")
        A(f"s_lshl_b32 s{41+o}, s{41+o}, 14")
    A(f"v_xor_b32 v{T}, s{SW}, v0")
    A(f"v_lshlrev_b32 v{T}, 14, v{T}")
    A(f"s_lshl_b32 s45, s{SV}, 12")
    A("s_mov_b64 exec, 14")
    poll1(A, "X_QE", T, "s45", T+1, 8, 3068)
    A("s_setprio 2")
    fetch(A, "X_PE", 3)
    for i in range(8):
        A(f"v_add_f32 v{T+POS[i]}, v{T+POS[i]}, v{EK+i}")
        A(f"v_add_f32 v{T+12+POS[i]}, v{T+12+POS[i]}, v{T+24+POS[i]}")
    for i in range(8):
        A(f"v_add_f32 v{ER+i}, v{T+POS[i]}, v{T+12+POS[i]}")
    put_le(A, T)
    A("s_setprio 0")
    st(A, "xe")
    A("X_2:")
    A(f"s_cmp_lg_u32 s{TH}, 8")
    A("s_cbranch_scc1 X_3")
    lds_wait(A, "X_WS", 8, 8, T)
    A("s_branch X_H")
    A("X_3:")
    A("s_setprio 2")
    A(f"s_xor_b32 s42, s{SW}, 1")
    A("s_lshl_b32 s42, s42, 14")
    A(f"s_add_u32 s42, s42, {WS_PS - WS_PE:#x}")
    st(A, "xs")
    A("s_mov_b64 exec, 1")
    poll1(A, "X_QP", PO, "s42", T+1, 8, 3068)
    fetch(A, "X_PP", 1)
    st(A, "xp")
    A(f"ds_write_b128 v{RS}, {vr(T,4)}")
    A(f"ds_write_b128 v{RS}, {vr(T+4,4)} offset:1024")
    A(f"ds_write_b64 v{RS}, {vr(T+8,2)} offset:8192")

POS = [0, 1, 2, 4, 5, 6, 8, 9]
def fetch(A, name, n):
    A(f"s_mov_b32 s58, {LIMIT}")
    A(f"{name}:")
    for o in range(n):
        for j in range(3):
            A(f"buffer_load_dwordx4 {vr(T+12*o+4*j,4)}, v{PO}, s[8:11], s{42+o} offen offset:{1024*j} sc1")
    A("s_waitcnt vmcnt(0)")
    A(f"v_cmp_ne_u32 vcc, s{SN}, v{T+3}")
    for g in range(1, 3*n):
        A(f"v_cmp_ne_u32 s[56:57], s{SN}, v{T+4*g+3}")
        A("s_or_b64 vcc, vcc, s[56:57]")
    A("s_sub_u32 s58, s58, 1")
    A(f"s_cbranch_scc1 {name}_X")
    A(f"s_cbranch_vccnz {name}")
    A(f"{name}_X:")

def gen_handler(A, nm):
    A(f"{nm}_H:")
    A("s_setprio 2")
    for k in range(4):
        A(f"ds_read_b128 {vr(T+8*k,4)}, v{RS} offset:{8192*k}")
        A(f"ds_read_b128 {vr(T+8*k+4,4)}, v{RS} offset:{8192*k+1024}")
    lds_signal(A, 20, 6)
    A(f"s_sub_u32 s44, s{TH}, 4")
    A(f"s_lshl_b32 s42, s{SW}, 14")
    A(f"s_mul_i32 s43, s44, {(WS_PS - WS_PE)//4:#x}")
    A("s_add_u32 s42, s42, s43")
    A("s_waitcnt lgkmcnt(5)")
    for i in range(8):
        A(f"v_add_f32 v{T+i}, v{T+i}, v{T+8+i}")
    A("s_waitcnt lgkmcnt(1)")
    for i in range(8):
        A(f"v_add_f32 v{T+16+i}, v{T+16+i}, v{T+24+i}")
    for i in range(8):
        A(f"v_add_f32 v{PK+POS[i]}, v{T+i}, v{T+16+i}")
        if i in (2, 5, 7):
            A(f"buffer_store_dwordx4 {vr(PK+4*(i//3),4)}, v{PO}, s[8:11], s42 offen offset:{1024*(i//3)} sc1")
    A(f"s_cmp_lg_u32 s{TH}, 4")
    A(f"s_cbranch_scc1 {nm}_H1")
    for i in range(8):
        A(f"v_mov_b32 v{EK+i}, v{PK+POS[i]}")
    st(A, "wE")
    A(f"{nm}_H1:")
    A(f"s_add_u32 s{TH}, s{TH}, 4")
    A(f"s_setprio {0 if nm == 'X' else GP}")
    A("s_branch X_D" if nm == "X" else "s_branch G_RET")

ER = 40
def put_le(A, t, name="X_LE"):
    A("s_cmp_lg_u32 s3, 7")
    A(f"s_cbranch_scc1 {name}")
    A(f"v_lshl_add_u32 v{t}, v0, 2, v{MB}")
    A(f"ds_write_b32 v{t}, v{ER+7} offset:{LE-MISC}")
    A(f"{name}:")

def gen_helper(A):
    A("HELP:")
    A("s_load_dwordx2 s[8:9], s[0:1], 32")
    A("s_load_dwordx4 s[28:31], s[0:1], 56")
    A("s_load_dwordx2 s[16:17], s[0:1], 80")
    A("s_memrealtime s[44:45]")
    A("v_and_b32 v1, 31, v0")
    A("v_lshrrev_b32 v2, 5, v0")
    pi_perm(A, 3, 1, 4)
    A("s_lshr_b32 s36, s3, 2")
    A("s_bfe_u32 s37, s3, 0x10001")
    A("s_and_b32 s38, s3, 1")
    A("s_cmp_eq_u32 s36, 0")
    A("s_cselect_b64 vcc, -1, 0")
    A("s_movk_i32 s39, 8064")
    A("s_cselect_b32 s39, 0x10000, s39")
    A("v_cndmask_b32 v4, v1, v3, vcc")
    A("v_lshlrev_b32 v4, 7, v4")
    A("v_lshl_add_u32 v4, v2, 4, v4")
    A("v_lshlrev_b32 v5, 4, v2")
    A("s_lshl_b32 s40, s37, 12")
    A("v_lshlrev_b32 v6, 10, v2")
    A("v_lshl_add_u32 v6, v3, 1, v6")
    A("s_lshl_b32 s41, s38, 6")
    A("s_add_u32 s42, s41, 0x1000")
    A("s_waitcnt lgkmcnt(0)")
    A("s_movk_i32 s18, 256")
    A("s_mov_b32 s19, 0x20000")
    A("s_mul_i32 s45, s45, 0x9e3779b1")
    A("s_xor_b32 s44, s44, s45")
    A(f"s_or_b32 s{SN}, s44, 1")
    A("s_cmp_lg_u32 s3, 0")
    A("s_cbranch_scc1 H_N")
    A(f"v_mov_b32 v7, s{SN}")
    A("s_mov_b64 exec, 1")
    A("buffer_store_dword v7, off, s[16:19], 0 sc1")
    A("s_mov_b64 exec, -1")
    A("H_N:")
    flag_srd(A)
    A("s_cmp_eq_u32 s36, 0")
    A("s_cselect_b32 s48, s8, s28")
    A("s_cselect_b32 s49, s9, s29")
    A("s_mov_b32 s50, 8192")
    A("s_mov_b32 s51, 0x20000")
    srd(A, 20, 30, 0, 8192)
    srd(A, 24, 4, WS_W, 16384)
    AF, A2, BF, D = 16, 32, 48, 64
    for j in range(4):
        A(f"buffer_load_dwordx4 {vr(AF+4*j,4)}, v4, s[48:51], s40 offen offset:{32*j}")
        A(f"buffer_load_dwordx4 {vr(A2+4*j,4)}, v5, s[48:51], s39 offen offset:{32*j}")
    for hi in range(2):
        for j in range(4):
            for k in range(4):
                jj = 2*k + hi
                A(f"buffer_load_ushort v{BF+4*j+k+32*hi}, v6, s[20:23], {'s41' if j < 2 else 's42'} offen offset:{(16*(j&1)+jj)*128}")
    A("s_waitcnt vmcnt(0)")
    st(A, "hn")
    for r in range(16):
        A(f"v_lshl_or_b32 v{BF+r}, v{BF+32+r}, 16, v{BF+r}")
    for r in range(16):
        A(f"v_xor_b32 v{A2+r}, 0x80008000, v{A2+r}")
    A("s_nop 1")
    for j in range(4):
        A(f"v_mfma_f32_32x32x16_bf16 {vr(D,16)}, {vr(AF+4*j,4)}, {vr(BF+4*j,4)}, {'0' if j == 0 else vr(D,16)}")
    for j in range(4):
        A(f"v_mfma_f32_32x32x16_bf16 {vr(D,16)}, {vr(A2+4*j,4)}, {vr(BF+4*j,4)}, {vr(D,16)}")
    A("s_lshl_b32 s43, s36, 13")
    A("s_lshl_b32 s44, s38, 12")
    A("s_add_u32 s43, s43, s44")
    A("s_lshl_b32 s44, s37, 11")
    A("s_add_u32 s43, s43, s44")
    A("s_nop 7")
    A("s_nop 7")
    for r in range(8):
        A(f"v_cvt_pk_bf16_f32 v{AF+r}, v{D+2*r}, v{D+2*r+1}")
    A(f"buffer_store_dwordx4 {vr(AF,4)}, v{DV}, s[24:27], s43 offen sc1")
    A(f"buffer_store_dwordx4 {vr(AF+4,4)}, v{DV}, s[24:27], s43 offen offset:1024 sc1")
    A("s_waitcnt vmcnt(0)")
    st(A, "hw")
    A("s_barrier")
    A("s_cmp_lg_u32 s3, 0")
    A("s_cbranch_scc1 FIN_X")
    A(f"s_mov_b32 s43, {FS+252*128}")
    flag_store(A, "s43", 17, 4)
    A("s_branch FIN_X")
```

```python
from common import Asm, vr, sr, srd, f2u, interleave, kernel_begin, descriptor, stamp, stamp_init, stamp_dump, PROF, LOG2E, N, E
import os
X = os.environ.get("X", "")
WS_G = 0x000000
WS_H = 0x140000
WS_W = 0x280000
WS_F = 0x290000
FG, FS = 0, 0x8000
WS_PE = 0x300000
WS_PS = 0x700000
WS_E = 0xB00000
E2 = 0x400000
NB = 250
CH = 2560
RING = 20480
STG = 4 * RING
CELL = 144
QX = STG + 256 * CELL
AL = QX + 12288
ASTR = 144
MISC = AL + 40 * ASTR
LE = MISC + 64
DUM = LE + 256
LST = DUM + 512
LL = LST + 512
MTL = LL + 12288
LDS = 163840
assert LL + 39 * 256 + 2 * 250 * 31 <= LDS, LL
HELPER = 231
LIMIT = int(os.environ.get("LIMIT", "40000"))
SW, SI, SN, SV, SHF, SP = 33, 34, 35, 39, 41, 46
KA = 2; VA = 6; IDX = 10; DV = 11
S0 = 16; KF = 64; VF = 80; O = 96; Q = 192
MB = 15

_ST = {}
for _i, _g in enumerate(os.environ.get("ST", "lnx:pg:bpub:hn,lnq:n3:bsort:hw,a3:bps,a4:bl,a5:bg,fs").split(",")):
    for _n in _g.split(":"): _ST[_n] = _i + 1
def st(A, name):
    if name in _ST: stamp(A, _ST[name])

def flag_srd(A):
    srd(A, 12, 4, WS_F, 0x10000)

def poll1(A, name, voff, soff, t, sd=12, off=0):
    A(f"s_mov_b32 s58, {LIMIT}")
    A(f"{name}:")
    A(f"buffer_load_dword v{t}, v{voff}, s[{sd}:{sd+3}], {soff} offen offset:{off} sc1")
    A("s_waitcnt vmcnt(0)")
    A(f"v_cmpx_ne_u32 vcc, s{SN}, v{t}")
    A("s_sub_u32 s58, s58, 1")
    A(f"s_cbranch_scc1 {name}_X")
    A(f"s_cbranch_execnz {name}")
    A(f"{name}_X:")
    A("s_mov_b64 exec, -1")

def lds_wait(A, name, off, target, t, mask=None):
    A(f"s_mov_b32 s58, {LIMIT*8}")
    A(f"{name}:")
    A(f"ds_read_b32 v{t}, v{MB} offset:{off}")
    A("s_waitcnt lgkmcnt(0)")
    A(f"v_readfirstlane_b32 s57, v{t}")
    A("s_sub_u32 s58, s58, 1")
    A(f"s_cbranch_scc1 {name}_X")
    if mask:
        A(f"s_and_b32 s59, s57, {mask:#x}")
    A(f"s_cmp_lt_u32 s{59 if mask else 57}, {target}")
    A(f"s_cbranch_scc1 {name}")
    A(f"{name}_X:")

def lds_signal(A, off, val):
    A("s_mov_b64 exec, 1")
    A(f"ds_add_u32 v{MB}, v{val} offset:{off}")
    A("s_mov_b64 exec, -1")

def flag_store(A, soff, t, n=1):
    A(f"v_mov_b32 v{t}, s{SN}")
    A("s_mov_b64 exec, 1")
    for i in range(n):
        A(f"buffer_store_dword v{t}, off, s[12:15], {soff} offset:{128*i} sc1")
    A("s_mov_b64 exec, -1")

def pi_perm(A, d, n, t):
    A(f"v_and_b32 v{d}, 0x13, v{n}")
    A(f"v_and_b32 v{t}, 4, v{n}")
    A(f"v_lshl_or_b32 v{d}, v{t}, 1, v{d}")
    A(f"v_and_b32 v{t}, 8, v{n}")
    A(f"v_lshrrev_b32 v{t}, 1, v{t}")
    A(f"v_or_b32 v{d}, v{d}, v{t}")

def frag_addrs(A, lane, sbase, t0, t1):
    A(f"v_and_b32 v{t0}, 2, v{lane}")
    A(f"v_lshlrev_b32 v{t0}, 1, v{t0}")
    A(f"v_bfe_u32 v{t1}, v{lane}, 2, 2")
    A(f"v_or_b32 v{t0}, v{t0}, v{t1}")
    A(f"v_lshrrev_b32 v{t1}, 5, v{lane}")
    A(f"v_xor_b32 v{t0}, v{t0}, v{t1}")
    A(f"v_and_b32 v{t1}, 31, v{lane}")
    A(f"v_lshlrev_b32 v{t1}, 7, v{t1}")
    A(f"v_lshl_add_u32 v{t0}, v{t0}, 4, v{t1}")
    A(f"v_add_u32 v{KA}, s{sbase}, v{t0}")
    for j in range(1, 4):
        A(f"v_xor_b32 v{KA+j}, {32*j}, v{KA}")
    A(f"v_lshrrev_b32 v{t0}, 5, v{lane}")
    A(f"v_bfe_u32 v{t1}, v{lane}, 2, 2")
    A(f"v_lshl_add_u32 v{VA}, v{t0}, 3, v{t1}")
    A(f"v_lshlrev_b32 v{VA}, 7, v{VA}")
    A(f"v_bfe_u32 v{t1}, v{lane}, 4, 1")
    A(f"v_xor_b32 v{t0}, v{t0}, v{t1}")
    A(f"v_lshl_add_u32 v{VA}, v{t0}, 5, v{VA}")
    A(f"v_bfe_u32 v{t0}, v{lane}, 3, 1")
    A(f"v_lshl_add_u32 v{VA}, v{t0}, 6, v{VA}")
    A(f"v_and_b32 v{t0}, 3, v{lane}")
    A(f"v_lshl_add_u32 v{VA}, v{t0}, 3, v{VA}")
    A(f"v_add_u32 v{VA}, s{sbase}, v{VA}")
    A(f"v_xor_b32 v{VA+1}, 16, v{VA}")
    A(f"v_add_u32 v{VA+1}, 0x200, v{VA+1}")
    A(f"v_xor_b32 v{VA+2}, 64, v{VA}")
    A(f"v_xor_b32 v{VA+3}, 64, v{VA+1}")
    A(f"v_mov_b32 v{IDX}, 0xdddddddd")

def dma_ld(i):
    return f"buffer_load_dwordx4 v{DV}, s[8:11], s37 offen offset:{1024*i}{'' if 'n' in X else ' sc1'} lds"
def kread(j, slot):
    return f"ds_read_b128 {vr(KF+4*j,4)}, v{KA+j} offset:{slot*4096}"
def vread(ks, dh, slot):
    d = VF + 4*(2*ks + dh)
    return [f"ds_read_b64_tr_b16 {vr(d+2*i,2)}, v{VA+2*dh+i} offset:{slot*4096+2048*ks}" for i in range(2)]
def qk(sb, j, t):
    s = S0 + 16*sb
    c = "0" if j == 0 else vr(s, 16)
    return f"v_mfma_f32_32x32x16_bf16 {vr(s,16)}, {vr(KF+4*j,4)}, {vr(Q+16*t+4*j,4)}, {c}"
def pv(sb, t, ks, dh):
    o = O + 32*t + 16*dh
    return f"v_smfmac_f32_32x32x32_bf16 {vr(o,16)}, {vr(VF+4*(2*ks+dh),4)}, {vr(S0+16*sb+8*ks,8)}, v{IDX}"
```

```python
import sys, os
sys.path.insert(0, os.path.dirname(os.path.abspath(__file__)))
from fc import *
import fa, fb
from fa import WF, XF, XO, WO, RA
NAME = "gather_scatter__hybrid_graph_tf_graphgps__graph"
NQT = 313

def gen_final(A):
    SL, LA = 36, 37; LR = 38; PR = fb.ER; AF = 88; D = 96; SW_, SR_ = 92, 93; LP = 224
    def scratch_addrs():
        A(f"s_mul_i32 s42, s{SV}, {RING}")
        A(f"s_lshl_b32 s43, s{SV}, 13")
        A(f"s_add_u32 s43, s43, {STG+8192}")
        A("s_cmp_ge_u32 s3, 4")
        A("s_cselect_b32 s42, s43, s42")
        A(f"v_add_u32 v{SW_}, s42, v{DV}")
    A("FINAL:")
    A(f"s_cmp_ge_u32 s{SW}, {NB}")
    A("s_cbranch_scc1 FIN_X")
    A(f"s_lshl_b32 s42, s{SV}, 11")
    A(f"v_add_u32 v{SL}, s42, v{DV}")
    A(f"v_add_u32 v{SR_}, {STG}, v{SL}")
    A(f"v_or_b32 v{LA}, 32, v0")
    A(f"v_lshl_add_u32 v{LA+1}, v{LA}, 2, v{MB}")
    A(f"v_lshlrev_b32 v{LA}, 4, v{LA}")
    A(f"v_add_u32 v{LA}, {7*1024+12}, v{LA}")
    A(f"v_add_u32 v{LA+2}, {STG+8192+3*2048+4-(7*1024+12)}, v{LA}")
    scratch_addrs()
    A("s_cselect_b64 s[58:59], -1, 0")
    A("s_mov_b64 s[56:57], -1")
    A("s_mov_b32 s48, 0xffff0000")
    A("F_SYNC:")
    A("s_waitcnt vmcnt(0) lgkmcnt(0)")
    A("s_barrier")
    st(A, "fs")
    for k in range(4):
        A(f"ds_read_b32 v{LP+k}, v{LA} offset:{RING*k}")
    A(f"ds_read_b32 v{LP+4}, v{LA+2}")
    A(f"ds_read_b32 v{LP+5}, v{LA+1} offset:{LE-MISC}")
    A(f"ds_read_b128 {vr(AF,4)}, v1")
    A("s_cmp_ge_u32 s3, 4")
    A("s_cbranch_scc1 F_B")
    for k in range(4):
        A(f"ds_read_b128 {vr(PR+8*k,4)}, v{SL} offset:{RING*k}")
        A(f"ds_read_b128 {vr(PR+8*k+4,4)}, v{SL} offset:{RING*k+1024}")
    A(f"ds_read_b128 {vr(PR+32,4)}, v{SR_}")
    A(f"ds_read_b128 {vr(PR+36,4)}, v{SR_} offset:1024")
    A(f"ds_read_b64 {vr(PR+40,2)}, v{SR_} offset:8192")
    A("s_waitcnt lgkmcnt(7)")
    for i in range(4):
        A(f"v_pk_add_f32 {vr(PR+2*i,2)}, {vr(PR+2*i,2)}, {vr(PR+8+2*i,2)}")
    A("s_waitcnt lgkmcnt(3)")
    for i in range(4):
        A(f"v_pk_add_f32 {vr(PR+16+2*i,2)}, {vr(PR+16+2*i,2)}, {vr(PR+24+2*i,2)}")
    for i in range(4):
        A(f"v_pk_add_f32 {vr(PR+2*i,2)}, {vr(PR+2*i,2)}, {vr(PR+16+2*i,2)}")
    A("s_waitcnt lgkmcnt(0)")
    for i in range(8):
        A(f"v_add_f32 v{PR+i}, v{PR+i}, v{PR+32+fb.POS[i]}")
    A("F_B:")
    lo, hi = f2u(2.0**-64), f2u(2.0**100)
    A("s_waitcnt lgkmcnt(0)")
    A(f"v_mfma_f32_32x32x16_bf16 {vr(D,16)}, {vr(WF,4)}, {vr(AF,4)}, 0")
    A(f"v_pk_add_f32 {vr(LP,2)}, {vr(LP,2)}, {vr(LP+2,2)}")
    A(f"v_add_f32 v{LP}, v{LP}, v{LP+4}")
    A(f"v_add_f32 v{LP}, v{LP}, v{LP+1}")
    A(f"v_mfma_f32_32x32x16_bf16 {vr(D+16,16)}, {vr(WF+4,4)}, {vr(AF,4)}, 0")
    A(f"v_cndmask_b32 v{LP+2}, v{LP}, v{LP+5}, s[58:59]")
    A(f"v_cndmask_b32 v{LP+1}, v{LP}, v{LP+5}, s[54:55]")
    A(f"v_rcp_f32 v{LP+2}, v{LP+2}")
    A(f"v_subrev_u32 v{LP}, {lo:#x}, v{LP}")
    A(f"v_subrev_u32 v{LP+1}, {lo:#x}, v{LP+1}")
    A(f"v_max_u32 v{LP}, v{LP}, v{LP+1}")
    A(f"v_cmp_lt_u32 vcc, {hi-lo:#x}, v{LP}")
    A(f"v_mov_b32 v{LP+3}, v{LP+2}")
    A("s_and_b64 vcc, vcc, s[56:57]")
    A("s_cbranch_scc1 F_FB")
    for i in range(4):
        A(f"v_pk_mul_f32 {vr(PR+2*i,2)}, {vr(PR+2*i,2)}, {vr(LP+2,2)}")
    for i in range(4):
        A(f"v_cvt_pk_bf16_f32 v{PR+8+i}, v{PR+2*i}, v{PR+2*i+1}")
    A("s_nop 1")
    A(f"v_mfma_f32_32x32x16_bf16 {vr(D,16)}, {vr(WF+8,4)}, {vr(PR+8,4)}, {vr(D,16)}")
    A(f"v_mfma_f32_32x32x16_bf16 {vr(D+16,16)}, {vr(WF+12,4)}, {vr(PR+8,4)}, {vr(D+16,16)}")
    XE = 80
    for i in range(4):
        A(f"v_lshlrev_b32 v{XE+2*i}, 16, v{XF+i}")
        A(f"v_and_b32 v{XE+2*i+1}, s48, v{XF+i}")
    A("s_nop 3")
    for q in range(8):
        if q == 4: A("s_nop 3")
        A(f"ds_write_b128 v{SW_}, {vr(D+4*q,4)} offset:{8192+1024*q}")
    A(f"v_add_u32 v{SR_}, 0x2000, v{SR_}")
    A(f"v_cndmask_b32 v{SL}, v{SL}, v{SR_}, s[58:59]")
    A(f"s_movk_i32 s42, {RING}")
    A("s_cmp_ge_u32 s3, 4")
    A("s_cselect_b32 s42, 0x2000, s42")
    for k in range(1, 4):
        A(f"v_add_u32 v{SL+k}, s42, v{SL+k-1}")
    A("s_waitcnt lgkmcnt(0)")
    A("s_barrier")
    for s in range(4):
        A(f"ds_read_b128 {vr(PR+8*s,4)}, v{SL+s} offset:8192")
        A(f"ds_read_b128 {vr(PR+8*s+4,4)}, v{SL+s} offset:{8192+1024}")
    A("s_waitcnt lgkmcnt(4)")
    for i in range(4):
        A(f"v_pk_add_f32 {vr(PR+2*i,2)}, {vr(PR+2*i,2)}, {vr(PR+8+2*i,2)}")
    A("s_waitcnt lgkmcnt(0)")
    for i in range(4):
        A(f"v_pk_add_f32 {vr(PR+16+2*i,2)}, {vr(PR+16+2*i,2)}, {vr(PR+24+2*i,2)}")
    for i in range(4):
        A(f"v_pk_add_f32 {vr(PR+2*i,2)}, {vr(PR+2*i,2)}, {vr(PR+16+2*i,2)}")
    for i in range(4):
        A(f"v_cvt_pk_bf16_f32 v{PR+8+i}, v{PR+2*i}, v{PR+2*i+1}")
    for i in range(4):
        A(f"v_lshlrev_b32 v{PR+2*i}, 16, v{PR+8+i}")
        A(f"v_and_b32 v{PR+2*i+1}, s48, v{PR+8+i}")
    for i in range(4):
        A(f"v_pk_add_f32 {vr(PR+2*i,2)}, {vr(PR+2*i,2)}, {vr(XE+2*i,2)}")
    for i in range(4):
        A(f"v_cvt_pk_bf16_f32 v{PR+8+i}, v{PR+2*i}, v{PR+2*i+1}")
    A(f"buffer_store_dwordx4 {vr(PR+8,4)}, v{XO}, s[24:27], 0 offen")
    A("FIN_X:")
    stamp_dump(A, 0, 4, 3, 8)
    A("END:")
    A("s_endpgm")
    MX = 40; CI = S0 + 32; t0, t1 = 41, 42
    A("F_FB:")
    A("s_barrier")
    A("s_mov_b64 s[56:57], 0")
    srd(A, 8, 4, WS_G, N * 128)
    A("s_lshr_b32 s42, s3, 2")
    A("s_lshl_b32 s43, s42, 12")
    A(f"s_add_u32 s43, s43, {QX}")
    A(f"v_add_u32 v{t0}, s43, v{DV}")
    for j in range(4):
        A(f"ds_read_b128 {vr(Q+4*j,4)}, v{t0} offset:{1024*j}")
    A("s_lshl_b32 s36, s3, 12")
    frag_addrs(A, 0, 36, t0, t1)
    dma_addr(A, t0)
    A("s_mov_b32 m0, s36")
    A(f"v_mov_b32 v{MX}, 0xff800000")
    A("v_cmp_lt_u32 vcc, 31, v0")
    A("s_waitcnt lgkmcnt(0)")
    A(f"v_and_b32 v{t0}, 0xffff, v{Q+15}")
    A(f"v_cndmask_b32 v{Q+15}, v{Q+15}, v{t0}, vcc")
    for ps in range(2):
        A(f"s_lshl_b32 s37, s{SV}, 12")
        A(f"F_P{ps}:")
        for i in range(4):
            A(dma_ld(i))
        A("s_waitcnt vmcnt(0)")
        for j in range(4):
            A(kread(j, 0))
        if ps:
            for ks in range(2):
                for dh in range(2):
                    A.many(vread(ks, dh, 0))
        A("s_waitcnt lgkmcnt(0)")
        for j in range(4):
            c = ("0" if ps == 0 else vr(CI, 16)) if j == 0 else vr(S0, 16)
            A(f"v_mfma_f32_32x32x16_bf16 {vr(S0,16)}, {vr(KF+4*j,4)}, {vr(Q+4*j,4)}, {c}")
        A("s_nop 7")
        A("s_nop 7")
        A(f"s_cmp_eq_u32 s37, {(NQT-1)*4096}")
        for ks in range(2):
            if ks:
                A(f"s_cbranch_scc1 F_S{ps}")
            if ps == 0:
                for r in range(4):
                    A(f"v_max3_f32 v{MX}, v{MX}, v{S0+8*ks+2*r}, v{S0+8*ks+2*r+1}")
            else:
                for r in range(8):
                    A(f"v_exp_f32 v{S0+8*ks+r}, v{S0+8*ks+r}")
                A("s_nop 2")
                A(pv(0, 0, ks, 0)); A(pv(0, 0, ks, 1))
        A(f"F_S{ps}:")
        A("s_add_u32 s37, s37, 0x4000")
        A(f"s_cmp_lt_u32 s37, {NQT*4096}")
        A(f"s_cbranch_scc1 F_P{ps}")
        if ps == 0:
            A(f"v_mov_b32 v{t0}, v{MX}")
            A(f"v_mov_b32 v{t1}, v{MX}")
            A("s_lshl_b32 s43, s3, 8")
            A("s_add_u32 s43, s43, 0x10000")
            A(f"v_permlane32_swap_b32 v{t0}, v{t1}")
            A("s_nop 1")
            A(f"v_max_f32 v{MX}, v{t0}, v{t1}")
            A(f"v_lshl_add_u32 v{t0}, v0, 2, s43")
            A(f"ds_write_b32 v{t0}, v{MX}")
            A("s_and_b32 s43, s43, 0x10400")
            A(f"v_lshl_add_u32 v{t0}, v0, 2, s43")
            A("s_waitcnt lgkmcnt(0)")
            A("s_barrier")
            for s in range(4):
                A(f"ds_read_b32 v{CI+s}, v{t0} offset:{256*s}")
            for r in range(32):
                A(f"v_mov_b32 v{O+r}, 0")
            A(f"v_add_u32 v{t1}, {STG}, v{SL}")
            A(f"ds_write_b128 v{t1}, {vr(O,4)}")
            A(f"ds_write_b128 v{t1}, {vr(O,4)} offset:1024")
            A(f"ds_write_b128 v{t1}, {vr(O,4)} offset:8192")
            A("s_waitcnt lgkmcnt(0)")
            A(f"v_max3_f32 v{MX}, v{CI}, v{CI+1}, v{CI+2}")
            A(f"v_max_f32 v{MX}, v{MX}, v{CI+3}")
            for r in range(16):
                A(f"v_sub_f32 v{CI+r}, 0, v{MX}")
    scratch_addrs()
    A(f"v_add_u32 v{SR_}, {STG}, v{SL}")
    A("s_cselect_b32 s42, 0x2000, 0")
    A(f"v_add_u32 v{t0}, s42, v{SW_}")
    A("s_nop 7")
    A("s_nop 7")
    A("s_barrier")
    A.many(fa.dump(0, t0))
    A("s_waitcnt lgkmcnt(0)")
    A("s_barrier")
    A("s_cmp_lt_u32 s3, 4")
    A("s_cbranch_scc1 F_SYNC")
    T = 48
    for k in range(4):
        A(f"ds_read_b128 {vr(T+8*k,4)}, v{SR_} offset:{16384+8192*k}")
        A(f"ds_read_b128 {vr(T+8*k+4,4)}, v{SR_} offset:{16384+8192*k+1024}")
    A("s_waitcnt lgkmcnt(0)")
    for i in range(4):
        A(f"v_pk_add_f32 {vr(T+2*i,2)}, {vr(T+2*i,2)}, {vr(T+8+2*i,2)}")
        A(f"v_pk_add_f32 {vr(T+16+2*i,2)}, {vr(T+16+2*i,2)}, {vr(T+24+2*i,2)}")
    for i in range(4):
        A(f"v_pk_add_f32 {vr(PR+2*i,2)}, {vr(T+2*i,2)}, {vr(T+16+2*i,2)}")
    fb.put_le(A, T, "F_LE")
    A("s_branch F_SYNC")

def gen(A):
    name = NAME + "_kernel"
    kernel_begin(A, name)
    A("s_cmp_ge_u32 s2, 256")
    A("s_cbranch_scc1 END")
    A("s_load_dwordx2 s[4:5], s[0:1], 88")
    A("v_lshrrev_b32 v1, 6, v0")
    A("v_and_b32 v0, 63, v0")
    A("v_readfirstlane_b32 s3, v1")
    A("s_lshr_b32 s42, s2, 5")
    A("s_lshl_b32 s42, s42, 3")
    A("s_and_b32 s43, s2, 7")
    A("s_add_u32 s42, s42, s43")
    A(f"s_bfe_u32 s{SI}, s2, 0x20003")
    A(f"s_lshl2_add_u32 s{SW}, s42, s{SI}")
    A(f"s_and_b32 s{SHF}, s{SI}, 1")
    A(f"s_lshr_b32 s{SP}, s{SI}, 1")
    A(f"s_and_b32 s{SV}, s3, 3")
    A(f"v_lshlrev_b32 v{DV}, 4, v0")
    A(f"v_mov_b32 v{MB}, {MISC}")
    stamp_init(A)
    A(f"s_cmp_eq_u32 s{SW}, 252")
    A("s_cbranch_scc1 HELP")
    A(f"s_cmp_gt_u32 s{SW}, 252")
    A("s_cbranch_scc1 END")
    A("s_cmp_ge_u32 s3, 4")
    A("s_cbranch_scc1 B_MAIN")
    A("s_cmp_eq_u32 s3, 3")
    A("s_cbranch_scc1 A3")
    fa.gen_ln_q(A)
    fa.gen_attn(A)
    A("A3:")
    fa.gen_w3(A)
    A("s_branch A_MAIN")
    A("B_MAIN:")
    fb.gen_sort(A)
    fb.gen_gather(A)
    fb.gen_exchange(A)
    gen_final(A)
    fb.gen_handler(A, "X")
    fb.gen_handler(A, "G")
    fb.gen_slow(A)
    fb.gen_helper(A)
    return name

def build(out):
    ref = open(f"cdna_kernels/{NAME}.s.ref").read().split("\n")
    hdr = [l for l in ref if l.startswith(";") and "@launch" not in l and "Override" not in l and "Harness parses" not in l]
    A = Asm()
    name = gen(A)
    txt = "\n".join(hdr) + "\n"
    txt += f"; @launch grid=(256,1,1) block=(512,1,1) lds={LDS}\n"
    txt += '.amdgcn_target "amdgcn-amd-amdhsa--gfx950"\n.text\n' + A.text()
    txt += '.section .rodata,"a"\n'
    txt += descriptor(name, 256, 72)
    open(out, "w").write(txt)
if __name__ == "__main__":
    build(sys.argv[1] if len(sys.argv) > 1 else "f.s")
```

```python
from fc import *
from fa import WF, XF, XO, WO, RA, final_setup_v, final_setup_s, final_loads

T = 140; RS = 176; PO = 177; EV = 178; PK = 180; EK = 192
TH = 60; MD = 40
GP = int(os.environ.get("GP", "0"))
DG = int(os.environ.get("DG", "6"))
def gen_sort(A):
    A("s_load_dwordx4 s[28:31], s[0:1], 8")
    A(f"s_lshl_b32 s42, s{SV}, 6")
    A("v_add_u32 v2, s42, v0")
    A("v_lshlrev_b32 v3, 4, v2")
    A("v_lshlrev_b32 v4, 3, v2")
    A(f"s_mul_i32 s50, s{SW}, {CH*4}")
    A("s_add_u32 s43, s50, 0x1000")
    A("s_add_u32 s44, s50, 0x2000")
    A("s_waitcnt lgkmcnt(0)")
    srd(A, 20, 30, 0, E * 4)
    srd(A, 24, 28, 0, E * 4)
    D = 16; S = 28; R = 40; B = 52
    def eloads(base, sd):
        A(f"buffer_load_dwordx4 {vr(base,4)}, v3, {sr(sd,4)}, s50 offen")
        A(f"buffer_load_dwordx4 {vr(base+4,4)}, v3, {sr(sd,4)}, s43 offen")
        A(f"buffer_load_dwordx2 {vr(base+8,2)}, v4, {sr(sd,4)}, s44 offen")
    Z = 64
    A(f"s_mov_b32 s49, {STG}")
    A(f"v_mov_b32 v10, {CELL}")
    A("v_lshrrev_b32 v5, 2, v2")
    A("v_and_b32 v7, 3, v2")
    A(f"v_mad_u32_u24 v73, v5, v10, s49")
    A("v_lshl_add_u32 v73, v7, 4, v73")
    A(f"s_and_b32 s42, s{SW}, 15")
    A("s_lshl_b32 s42, s42, 20")
    A("s_add_u32 s42, s42, 0x1000000")
    A(f"v_lshl_add_u32 v{Z+1}, v7, 18, s42")
    A("v_cmp_eq_u32 vcc, 0, v7")
    for r in range(2, 6):
        A(f"v_mov_b32 v{Z+r}, v{Z+1}")
    A(f"v_addc_co_u32 v{Z}, vcc, 0, v{Z+1}, vcc")
    for it in range(4):
        A(f"ds_write_b128 v73, {vr(Z,4)} offset:{64*CELL*it}")
        A(f"ds_write_b128 v73, {vr(Z+2,4)} offset:{64*CELL*it+64}")
    for r in range(4):
        A(f"v_mov_b32 v{Z+16+r}, -1")
        A(f"v_mov_b32 v{Z+20+r}, 0")
    A(f"v_add_u32 v5, {LL}, v3")
    for i in range(3):
        A(f"ds_write_b128 v5, {vr(Z+16,4)} offset:{4096*i}")
    A("v_mov_b32 v6, 1")
    A(f"v_lshlrev_b32 v5, 2, v0")
    A(f"v_add_u32 v8, {LST}, v5")
    A(f"v_add_u32 v5, {DUM}, v5")
    A(f"v_lshlrev_b32 v9, 8, v0")
    A(f"v_add_u32 v9, {LL}, v9")
    A("ds_write2st64_b32 v8, v9, v5 offset0:0 offset1:1")
    for i in range(3):
        A(f"ds_write_b128 v{MB}, {vr(Z+20,4)} offset:{16*i}")
    srd(A, 28, 4, WS_E, 2 * E2)
    flag_srd(A)
    A("s_mov_b32 s47, 52429")
    A("v_mov_b32 v7, 31")
    gather_setup(A)
    A("s_barrier")
    if "g" not in X: eloads(D, 20)
    if "a" in X: eloads(S, 24)
    A("s_waitcnt lgkmcnt(0)")
    A("s_barrier")
    if "p" in X: A("s_setprio 2")
    A("s_load_dwordx2 s[6:7], s[0:1], 24")
    A(f"s_cmp_ge_u32 s{SW}, {0 if 'x' in X else NB}")
    A("s_cbranch_scc1 B_3")
    if "g" in X:
        lds_wait(A, "B_WG", 40, 4, 5)
        eloads(D, 20); eloads(S, 24)
    A(f"s_waitcnt vmcnt({3 if 'g' in X or 'a' in X else 0}) lgkmcnt(0)")
    if "b" in X: eloads(S, 24)
    st(A, "bld")
    for i in range(10):
        A(f"v_mul_u32_u24 v{B+i}, s47, v{D+i}")
        A(f"v_lshrrev_b32 v72, 21, v{B+i}")
        A(f"v_mad_u32_u24 v{B+i}, v72, v10, s49")
        A(f"ds_add_rtn_u32 v{R+i}, v{B+i}, v6")
        A(f"v_mul_u32_u24 v72, 40, v72")
        A(f"v_sub_u32 v{D+i}, v{D+i}, v72")
    for i in range(10):
        A(f"s_waitcnt lgkmcnt({9-i})")
        A(f"v_min_u32_sdwa v{R+i}, v{R+i}, v7 dst_sel:DWORD dst_unused:UNUSED_PAD src0_sel:WORD_0 src1_sel:DWORD")
        A(f"v_lshl_add_u32 v{B+i}, v{R+i}, 2, v{B+i}")
    if not set("gab") & set(X):
        lds_wait(A, "B_WG", 40, 4, 5)
        st(A, "bgo")
        eloads(S, 24)
    A("s_waitcnt vmcnt(0)")
    st(A, "bsrc")
    for i in range(10):
        A(f"v_lshl_or_b32 v{S+i}, v{D+i}, 18, v{S+i}")
        A(f"ds_write_b32 v{B+i}, v{S+i}")
    lds_signal(A, 32, 6)
    A(f"s_lshl_b32 s42, s{SW}, 14")
    A(f"s_add_u32 s43, s42, {E2:#x}")
    lds_wait(A, "B_W1", 32, 4, 5)
    st(A, "bsort")
    for it in range(4):
        A(f"ds_read_b128 {vr(16+4*it,4)}, v73 offset:{64*CELL*it}")
    for it in range(4):
        A(f"ds_read_b128 {vr(32+4*it,4)}, v73 offset:{64*CELL*it+64}")
    A("v_mov_b32 v7, 16")
    for it in range(4):
        A(f"s_waitcnt lgkmcnt({7-it})")
        A(f"buffer_store_dwordx4 {vr(16+4*it,4)}, v3, s[28:31], s42 offen sc1")
        A(f"v_mov_b32_dpp v{48+it}, v{16+4*it} quad_perm:[0,0,0,0] row_mask:0xf bank_mask:0xf")
        A("s_add_u32 s42, s42, 0x1000")
    A("s_waitcnt lgkmcnt(0)")
    for it in range(4):
        A(f"v_cmp_gt_u32_sdwa vcc, v{48+it}, v7 src0_sel:WORD_0 src1_sel:DWORD")
        A("s_and_b64 exec, vcc, -1")
        A(f"s_cbranch_scc0 B_O{it}")
        A(f"buffer_store_dwordx4 {vr(32+4*it,4)}, v3, s[28:31], s43 offen sc1")
        A(f"B_O{it}:")
        A("s_mov_b64 exec, -1")
        A("s_add_u32 s43, s43, 0x1000")
    A("B_3:")
    A("s_waitcnt vmcnt(0) lgkmcnt(0)")
    st(A, "bpub")
    lds_signal(A, 36, 6)
    lds_wait(A, "B_W2", 0, 1, 5)
    A(f"s_mov_b32 s{SN}, s57")
    lds_wait(A, "B_W3", 36, 7, 5)
    A("s_cmp_lg_u32 s3, 4")
    A("s_cbranch_scc1 B_4")
    A(f"s_lshl_b32 s42, s{SW}, 7")
    A(f"s_add_u32 s42, s42, {FS}")
    flag_store(A, "s42", 16)
    A("B_4:")

EN = 140; PS = 16; BUF = 48; PR = 88; AC = 108; SA = 128; SX = 132
DI = 228; DO = 231; FO = 232; LR2 = 233; C16 = 234; LBV = 235; TWO = 236; AO = 237; C = 244
t0, t1, t2, t3 = 238, 239, 241, 242
def gather_setup(A):
    A(f"s_lshl_b32 s42, s{SV}, 12")
    A(f"v_add_u32 v{PO}, s42, v{DV}")
    A(f"s_lshl_b32 s42, s{SV}, 11")
    A(f"s_add_u32 s42, s42, {STG}")
    A(f"v_add_u32 v{RS}, s42, v{DV}")
    A(f"s_mov_b32 s{TH}, 4")
    A(f"v_mov_b32 v{EV}, 0")
    A(f"v_bfe_u32 v{t0}, v0, 3, 1")
    A(f"v_lshrrev_b32 v{t1}, 5, v0")
    A(f"v_cmp_eq_u32 vcc, v{t0}, v{t1}")
    A(f"v_lshl_add_u32 v{t0}, v{t0}, 1, v{t1}")
    A(f"v_lshlrev_b32 v{DO}, 1, v{t0}")
    A(f"v_and_b32 v{t1}, 1, v0")
    A(f"v_lshlrev_b32 v{t1}, 4, v{t1}")
    A(f"v_mov_b32 v{t2}, 0x3c00")
    A(f"v_lshlrev_b32 v{t1}, v{t1}, v{t2}")
    A(f"v_cndmask_b32 v{t1}, 0, v{t1}, vcc")
    A("s_mov_b32 vcc_lo, 0xf0f0f0f0")
    A("s_mov_b32 vcc_hi, vcc_lo")
    A(f"v_cndmask_b32 v{SA+1}, 0, v{t1}, vcc")
    A(f"v_sub_u32 v{SA}, v{t1}, v{SA+1}")
    A(f"v_mov_b32 v{SA+3}, v{SA+1}")
    A(f"v_mov_b32 v{SA+2}, v{SA}")
    A("s_mov_b32 vcc_lo, 0xcccccccc")
    A("s_mov_b32 vcc_hi, vcc_lo")
    A(f"v_mov_b32 v{t1}, 0xeeeeeeee")
    A(f"v_mov_b32 v{SX}, 0x44444444")
    A(f"v_cndmask_b32 v{SX}, v{SX}, v{t1}, vcc")
    for p in range(3):
        A(f"v_mov_b32 v{DI+p}, 0")
    for r in range(20):
        A(f"v_mov_b32 v{AC+r}, 0")
    A(f"v_and_b32 v{t1}, 7, v0")
    A(f"v_lshlrev_b32 v{PR+1}, 4, v{t1}")
    A(f"v_bfe_u32 v{t2}, v0, 4, 1")
    A(f"v_lshl_add_u32 v{t2}, v{t2}, 3, v{PR+1}")
    A(f"v_mul_u32_u24 v{AO}, {ASTR}, v{t0}")
    A(f"s_mul_i32 s42, s{SV}, {10*ASTR}")
    A(f"s_add_u32 s42, s42, {AL}")
    A(f"v_add3_u32 v{AO}, v{AO}, v{t2}, s42")
    A(f"v_lshl_add_u32 v{t2}, v{t0}, 7, v{t2}")
    for i in range(1, 10):
        A(f"v_mov_b32 v{PR+2*i+1}, v{PR+1}")
    A(f"v_mov_b32 v{LBV}, {LST}")
    A(f"s_mul_i32 s42, s{SV}, 2560")
    A(f"s_add_u32 s42, s42, {LL}")
    A(f"v_lshrrev_b32 v{t0}, 3, v0")
    A(f"v_lshl_add_u32 v{LR2}, v{t0}, 1, s42")
    A(f"v_mov_b32 v{TWO}, 2")
    A(f"v_mov_b32 v{C16}, 16")
    A(f"v_lshlrev_b32 v{FO}, 7, v2")
    A(f"v_lshrrev_b32 v{t3}, 2, v0")
    A(f"v_lshlrev_b32 v{t3}, 14, v{t3}")
    A(f"v_and_b32 v{t1}, 3, v0")
    A(f"v_lshl_add_u32 v{t3}, v{t1}, 4, v{t3}")
    A(f"v_lshlrev_b32 v{EN+12}, 18, v0")
    A(f"v_add_u32 v{EN+12}, 0x1000000, v{EN+12}")
    for r in range(13, 16):
        A(f"v_mov_b32 v{EN+r}, v{EN+12}")
    final_setup_v(A)

def gen_gather(A):
    srd(A, 8, 4, WS_PE, 0x800000)
    for j in range(3):
        A(f"v_mov_b32 v{PK+4*j+3}, s{SN}")
    A(f"s_cmp_ge_u32 s{SW}, {0 if 'y' in X else NB}")
    A("s_cbranch_scc1 B_X")
    srd(A, 16, 4, WS_H, N, stride=128)
    srd(A, 48, 6, 0, N * 2)
    A(f"s_mul_i32 s42, s{SW}, 80")
    A(f"s_mul_i32 s43, s{SV}, 20")
    A("s_add_u32 s42, s42, s43")
    for p in range(3):
        A(f"buffer_load_short_d16_hi v{DI+p}, v{DO}, s[48:51], s42 offen offset:{8*p}")
    A(f"s_lshl_b32 s44, s{SV}, 20")
    A(f"s_lshl_b32 s45, s{SW}, 6")
    A("s_add_u32 s44, s44, s45")
    A(f"s_cmp_eq_u32 s{SV}, 3")
    A("s_cselect_b32 s47, 0xff, -1")
    A(f"s_mov_b32 s45, {FS}")
    poll1(A, "B_PS", FO, "s45", t1)
    st(A, "bps")
    for it in range(4):
        if it == 3: A("s_mov_b32 exec_hi, s47")
        A(f"buffer_load_dwordx4 {vr(EN+4*it,4)}, v{t3}, s[28:31], s44 offen sc1")
        A("s_add_u32 s44, s44, 0x40000")
    A("s_mov_b64 exec, -1")
    A(f"s_add_u32 s44, s44, {E2 - 0x100000:#x}")
    def trip_a(k):
        A(f"v_add_u32_sdwa v{t1}, v{EN+k}, v{LBV} dst_sel:DWORD dst_unused:UNUSED_PAD src0_sel:WORD_1 src1_sel:DWORD")
        A(f"ds_add_rtn_u32 v{PS+k}, v{t1}, v{TWO}")
    A("s_waitcnt vmcnt(0)")
    for it in range(4):
        A(f"v_mov_b32_dpp v{C+it}, v{EN+4*it} quad_perm:[0,0,0,0] row_mask:0xf bank_mask:0xf")
    for it in range(4):
        A(f"v_and_b32 v{C+it}, 0xffff, v{C+it}")
    for it in range(4):
        A(f"v_cmp_gt_u32 s[{52+2*it}:{53+2*it}], v{C+it}, v{C16}")
    A(f"v_max3_u32 v{t1}, v{C}, v{C+1}, v{C+2}")
    A(f"v_max_u32 v{t1}, v{t1}, v{C+3}")
    A(f"v_cmp_lt_u32 vcc, 32, v{t1}")
    A(f"v_mov_b32 v{t1}, 0x101")
    A("s_cbranch_vccnz G_SYNC")
    for it in range(4):
        A(f"s_and_b64 exec, s[{52+2*it}:{53+2*it}], -1")
        A(f"s_cbranch_scc0 G_O{it}")
        A(f"buffer_load_dwordx4 {vr(EN+16+4*it,4)}, v{t3}, s[28:31], s44 offen sc1")
        A(f"G_O{it}:")
        A("s_add_u32 s44, s44, 0x40000")
    A("s_mov_b64 exec, -1")
    for k in range(16):
        trip_a(k)
    for k in range(16):
        if k % 4 == 0: A(f"s_waitcnt lgkmcnt(12)")
        A(f"ds_write_b16 v{PS+k}, v{EN+k}")
    A("s_waitcnt vmcnt(0)")
    for it in range(4):
        A(f"s_and_b64 exec, s[{52+2*it}:{53+2*it}], -1")
        A(f"s_cbranch_scc0 G_P{it}")
        for k in range(16+4*it, 20+4*it): trip_a(k)
        A(f"G_P{it}:")
    A("s_waitcnt lgkmcnt(0)")
    for it in range(4):
        A(f"s_and_b64 exec, s[{52+2*it}:{53+2*it}], -1")
        A(f"s_cbranch_scc0 G_Q{it}")
        for k in range(16+4*it, 20+4*it): A(f"ds_write_b16 v{PS+k}, v{EN+k}")
        A(f"G_Q{it}:")
    A("s_mov_b64 exec, -1")
    A(f"v_mov_b32 v{t1}, 1")
    A("G_SYNC:")
    A("s_waitcnt vmcnt(0)")
    lds_signal(A, 4, t1)
    lds_wait(A, "G_S1", 4, 4, t1, mask=0xff)
    st(A, "bl")
    A("s_cmp_gt_u32 s57, 0xff")
    A("s_cbranch_scc1 G_SLOW")
    A(f"ds_read_b32 v{t1}, v8")
    for i in range(10):
        A(f"ds_read_u16 v{PR+2*i}, v{LR2} offset:{256*i}")
    A(f"s_mul_i32 s43, s{SV}, 10")
    A("s_bfm_b64 s[52:53], 10, s43")
    A("s_waitcnt lgkmcnt(10)")
    A(f"v_sub_u32 v{t1}, v{t1}, v9")
    A(f"v_cmp_lt_u32 vcc, 0x100, v{t1}")
    A("s_cbranch_vccnz G_SLOW")
    def ld(i, it_off):
        A(f"buffer_load_dwordx4 {vr(BUF+4*i,4)}, {vr(PR+2*i,2)}, s[16:19], 0 idxen offen sc1")
        A(f"ds_read_u16 v{PR+2*i}, v{LR2} offset:{256*i+16*it_off}")
    def acc(p):
        A(f"v_smfmac_f32_16x16x64_f16 {vr(AC+4*p,4)}, {vr(SA,4)}, {vr(BUF+8*p,8)}, v{SX}")
    A(f"s_setprio {GP}")
    for i in range(10):
        A(f"s_waitcnt vmcnt({DG-1}) lgkmcnt(9)")
        ld(i, 1)
    A("s_mov_b32 s56, 16" if "z" not in X else "s_movk_i32 s56, 0x200")
    A("G_LOOP:")
    A(f"v_cmp_lt_u32 vcc, s56, v{t1}")
    A(f"v_readfirstlane_b32 s57, v{EV}")
    A(f"ds_read_b32 v{EV}, v{MB} offset:8")
    A("s_add_u32 s56, s56, 16")
    A("s_and_b64 vcc, vcc, s[52:53]")
    A("s_cbranch_scc0 G_DRAIN")
    A(f"s_cmp_ge_u32 s57, s{TH}")
    A("s_cbranch_scc1 G_H")
    A("G_RET:")
    for p in range(5):
        A(f"s_waitcnt vmcnt({DG-2}) lgkmcnt(8)")
        acc(p)
        ld(2*p, 2); ld(2*p+1, 2)
    A(f"v_add_u32 v{LR2}, 16, v{LR2}")
    A("s_branch G_LOOP")
    A("G_DRAIN:")
    for p in range(5):
        A(f"s_waitcnt vmcnt({8-2*p})")
        acc(p)
    A("s_nop 7")
    for p in range(5):
        for r in range(4):
            x = AC+4*p+r
            A(f"v_add_f32_dpp v{AC+8*(p>>1)+r}, v{x}, v{x} row_ror:8 row_mask:0xf bank_mask:{'0xc' if p & 1 else '0x3'}")
    A("G_FIN:")
    for k in range(3):
        x = AC+8*k
        for r in range(4):
            A(f"v_mul_f32 v{x+r}, v{x+r}, v{DI+k}")
        A(f"v_cvt_pk_bf16_f32 v{x}, v{x}, v{x+1}")
        A(f"v_cvt_pk_bf16_f32 v{x+1}, v{x+2}, v{x+3}")
        if k == 2:
            A("s_mov_b32 exec_lo, 0x00ff00ff")
            A("s_mov_b32 exec_hi, 0x00ff00ff")
        A(f"ds_write_b64 v{AO}, {vr(x,2)} offset:{4*ASTR*k}")
    A("s_mov_b64 exec, -1")
    A("B_X:")

def gen_slow(A):
    A("G_SLOW:")
    A("s_waitcnt vmcnt(0) lgkmcnt(0)")
    lds_signal(A, 16, 6)
    lds_wait(A, "G_S2", 16, 4, t1)
    A(f"v_add_u32 v{t0}, {LL}, v3")
    for r in range(4):
        A(f"v_mov_b32 v{AC+r}, 0")
    for i in range(3):
        A(f"ds_write_b128 v{t0}, {vr(AC,4)} offset:{4096*i}")
    A("s_waitcnt lgkmcnt(0)")
    lds_signal(A, 16, 6)
    lds_wait(A, "G_S3", 16, 8, t1)
    srd(A, 48, 4, WS_H, N * 128)
    A(f"v_lshlrev_b32 v{t0}, 2, v0")
    A(f"v_lshlrev_b32 v{t1}, 1, v0")
    A(f"v_add_u32 v{t3}, {LL}, v{t0}")
    A(f"s_mul_i32 s42, s{SW}, 40")
    A("s_mov_b64 s[44:45], 0")
    for it in range(4):
        A(f"v_cmp_lt_u32 vcc, 1, v{C+it}")
        A(f"s_and_b32 vcc_lo, vcc_lo, {0x11111111 << it:#x}")
        A(f"s_and_b32 vcc_hi, vcc_hi, {0x11111111 << it:#x}")
        A("s_or_b64 s[44:45], s[44:45], vcc")
    A("G_SC:")
    A("s_cmp_eq_u64 s[44:45], 0")
    A("s_cbranch_scc1 G_SE")
    A("s_ff1_i32_b64 s43, s[44:45]")
    A("s_bitset0_b64 s[44:45], s43")
    A("s_and_b32 s47, s43, 3")
    A("s_lshr_b32 s43, s43, 2")
    A(f"s_lshl2_add_u32 s47, s{SV}, s47")
    A("s_lshl4_add_u32 s43, s47, s43")
    A(f"s_mul_i32 s43, s43, {CH*4}")
    A(f"s_add_u32 s47, s43, {CH*4}")
    A("G_SS:")
    A(f"buffer_load_dword v{AC}, v{t0}, s[20:23], s43 offen")
    A(f"buffer_load_dword v{AC+1}, v{t0}, s[24:27], s43 offen")
    A("s_waitcnt vmcnt(0)")
    A(f"v_subrev_u32 v{AC}, s42, v{AC}")
    A(f"v_cmp_gt_u32 s[52:53], 40, v{AC}")
    A("G_SI:")
    A("s_cmp_eq_u64 s[52:53], 0")
    A("s_cbranch_scc1 G_SN")
    A("s_ff1_i32_b64 s56, s[52:53]")
    A("s_bitset0_b64 s[52:53], s56")
    A(f"v_readlane_b32 s57, v{AC+1}, s56")
    A(f"v_readlane_b32 s58, v{AC}, s56")
    A("s_lshl_b32 s57, s57, 7")
    A("s_lshl_b32 s58, s58, 8")
    A(f"buffer_load_ushort v{AC+2}, v{t1}, s[48:51], s57 offen sc1")
    A(f"v_add_u32 v{AC+3}, s58, v{t3}")
    A("s_waitcnt vmcnt(0)")
    A(f"v_cvt_f32_f16 v{AC+2}, v{AC+2}")
    A(f"ds_add_f32 v{AC+3}, v{AC+2}")
    A("s_waitcnt lgkmcnt(0)")
    A("s_branch G_SI")
    A("G_SN:")
    A("s_add_u32 s43, s43, 256")
    A("s_cmp_lt_u32 s43, s47")
    A("s_cbranch_scc1 G_SS")
    A("s_branch G_SC")
    A("G_SE:")
    lds_signal(A, 16, 6)
    lds_wait(A, "G_S4", 16, 12, t1)
    A(f"s_mul_i32 s43, s{SV}, 2560")
    A(f"s_add_u32 s43, s43, {LL}")
    A(f"v_lshl_add_u32 v{t0}, v{t2}, 1, s43")
    for k in range(3):
        A(f"ds_read_b128 {vr(AC+8*k,4)}, v{t0} offset:{1024*k}")
    A("s_waitcnt lgkmcnt(0)")
    A("s_branch G_FIN")

def gen_exchange(A):
    st(A, "bg")
    A("s_load_dwordx2 s[6:7], s[0:1], 0")
    A("s_load_dwordx2 s[28:29], s[0:1], 72")
    A("s_load_dwordx2 s[48:49], s[0:1], 80")
    A("s_movk_i32 s50, 256")
    A("s_mov_b32 s51, 0x20000")
    A(f"s_or_b32 s42, s{SW}, s{SV}")
    A("s_waitcnt lgkmcnt(0)")
    A("s_cbranch_scc1 X_Z")
    A(f"v_mov_b32 v{T}, 0")
    A("s_mov_b64 exec, 1")
    A(f"buffer_store_dword v{T}, off, s[48:51], 0 sc1")
    A("s_mov_b64 exec, -1")
    A("X_Z:")
    final_setup_s(A)
    A.many(final_loads())
    A(f"s_mov_b32 s{MD}, 1")
    A("s_setprio 0")
    A("X_D:")
    A(f"s_cmp_lg_u32 s{TH}, 4")
    A("s_cbranch_scc1 X_1")
    lds_wait(A, "X_WE", 8, 4, T)
    A("s_branch X_H")
    A("X_1:")
    A(f"s_cmp_eq_u32 s{MD}, 2")
    A("s_cbranch_scc1 X_2")
    A(f"ds_read_b32 v{T}, v{MB} offset:8")
    A("s_waitcnt lgkmcnt(0)")
    A(f"v_readfirstlane_b32 s57, v{T}")
    A(f"s_cmp_ge_u32 s57, s{TH}")
    A("s_cbranch_scc1 X_H")
    A(f"s_mov_b32 s{MD}, 2")
    for o in range(1, 4):
        A(f"s_xor_b32 s{41+o}, s{SW}, {o}")
        A(f"s_lshl_b32 s{41+o}, s{41+o}, 14")
    A(f"v_xor_b32 v{T}, s{SW}, v0")
    A(f"v_lshlrev_b32 v{T}, 14, v{T}")
    A(f"s_lshl_b32 s45, s{SV}, 12")
    A("s_mov_b64 exec, 14")
    poll1(A, "X_QE", T, "s45", T+1, 8, 3068)
    A("s_setprio 2")
    fetch(A, "X_PE", 3)
    for i in range(8):
        A(f"v_add_f32 v{T+POS[i]}, v{T+POS[i]}, v{EK+i}")
        A(f"v_add_f32 v{T+12+POS[i]}, v{T+12+POS[i]}, v{T+24+POS[i]}")
    for i in range(8):
        A(f"v_add_f32 v{ER+i}, v{T+POS[i]}, v{T+12+POS[i]}")
    put_le(A, T)
    A("s_setprio 0")
    st(A, "xe")
    A("X_2:")
    A(f"s_cmp_lg_u32 s{TH}, 8")
    A("s_cbranch_scc1 X_3")
    lds_wait(A, "X_WS", 8, 8, T)
    A("s_branch X_H")
    A("X_3:")
    A("s_setprio 2")
    A(f"s_xor_b32 s42, s{SW}, 1")
    A("s_lshl_b32 s42, s42, 14")
    A(f"s_add_u32 s42, s42, {WS_PS - WS_PE:#x}")
    st(A, "xs")
    A("s_mov_b64 exec, 1")
    poll1(A, "X_QP", PO, "s42", T+1, 8, 3068)
    fetch(A, "X_PP", 1)
    st(A, "xp")
    A(f"ds_write_b128 v{RS}, {vr(T,4)}")
    A(f"ds_write_b128 v{RS}, {vr(T+4,4)} offset:1024")
    A(f"ds_write_b64 v{RS}, {vr(T+8,2)} offset:8192")

POS = [0, 1, 2, 4, 5, 6, 8, 9]
def fetch(A, name, n):
    A(f"s_mov_b32 s58, {LIMIT}")
    A(f"{name}:")
    for o in range(n):
        for j in range(3):
            A(f"buffer_load_dwordx4 {vr(T+12*o+4*j,4)}, v{PO}, s[8:11], s{42+o} offen offset:{1024*j} sc1")
    A("s_waitcnt vmcnt(0)")
    A(f"v_cmp_ne_u32 vcc, s{SN}, v{T+3}")
    for g in range(1, 3*n):
        A(f"v_cmp_ne_u32 s[56:57], s{SN}, v{T+4*g+3}")
        A("s_or_b64 vcc, vcc, s[56:57]")
    A("s_sub_u32 s58, s58, 1")
    A(f"s_cbranch_scc1 {name}_X")
    A(f"s_cbranch_vccnz {name}")
    A(f"{name}_X:")

def gen_handler(A, nm):
    A(f"{nm}_H:")
    A("s_setprio 2")
    for k in range(4):
        A(f"ds_read_b128 {vr(T+8*k,4)}, v{RS} offset:{8192*k}")
        A(f"ds_read_b128 {vr(T+8*k+4,4)}, v{RS} offset:{8192*k+1024}")
    lds_signal(A, 20, 6)
    A(f"s_sub_u32 s44, s{TH}, 4")
    A(f"s_lshl_b32 s42, s{SW}, 14")
    A(f"s_mul_i32 s43, s44, {(WS_PS - WS_PE)//4:#x}")
    A("s_add_u32 s42, s42, s43")
    A("s_waitcnt lgkmcnt(5)")
    for i in range(8):
        A(f"v_add_f32 v{T+i}, v{T+i}, v{T+8+i}")
    A("s_waitcnt lgkmcnt(1)")
    for i in range(8):
        A(f"v_add_f32 v{T+16+i}, v{T+16+i}, v{T+24+i}")
    for i in range(8):
        A(f"v_add_f32 v{PK+POS[i]}, v{T+i}, v{T+16+i}")
        if i in (2, 5, 7):
            A(f"buffer_store_dwordx4 {vr(PK+4*(i//3),4)}, v{PO}, s[8:11], s42 offen offset:{1024*(i//3)} sc1")
    A(f"s_cmp_lg_u32 s{TH}, 4")
    A(f"s_cbranch_scc1 {nm}_H1")
    for i in range(8):
        A(f"v_mov_b32 v{EK+i}, v{PK+POS[i]}")
    st(A, "wE")
    A(f"{nm}_H1:")
    A(f"s_add_u32 s{TH}, s{TH}, 4")
    A(f"s_setprio {0 if nm == 'X' else GP}")
    A("s_branch X_D" if nm == "X" else "s_branch G_RET")

ER = 40
def put_le(A, t, name="X_LE"):
    A("s_cmp_lg_u32 s3, 7")
    A(f"s_cbranch_scc1 {name}")
    A(f"v_lshl_add_u32 v{t}, v0, 2, v{MB}")
    A(f"ds_write_b32 v{t}, v{ER+7} offset:{LE-MISC}")
    A(f"{name}:")

def gen_helper(A):
    A("HELP:")
    A("s_load_dwordx2 s[8:9], s[0:1], 32")
    A("s_load_dwordx4 s[28:31], s[0:1], 56")
    A("s_load_dwordx2 s[16:17], s[0:1], 80")
    A("s_memrealtime s[44:45]")
    A("v_and_b32 v1, 31, v0")
    A("v_lshrrev_b32 v2, 5, v0")
    pi_perm(A, 3, 1, 4)
    A("s_lshr_b32 s36, s3, 2")
    A("s_bfe_u32 s37, s3, 0x10001")
    A("s_and_b32 s38, s3, 1")
    A("s_cmp_eq_u32 s36, 0")
    A("s_cselect_b64 vcc, -1, 0")
    A("s_movk_i32 s39, 8064")
    A("s_cselect_b32 s39, 0x10000, s39")
    A("v_cndmask_b32 v4, v1, v3, vcc")
    A("v_lshlrev_b32 v4, 7, v4")
    A("v_lshl_add_u32 v4, v2, 4, v4")
    A("v_lshlrev_b32 v5, 4, v2")
    A("s_lshl_b32 s40, s37, 12")
    A("v_lshlrev_b32 v6, 10, v2")
    A("v_lshl_add_u32 v6, v3, 1, v6")
    A("s_lshl_b32 s41, s38, 6")
    A("s_add_u32 s42, s41, 0x1000")
    A("s_waitcnt lgkmcnt(0)")
    A("s_movk_i32 s18, 256")
    A("s_mov_b32 s19, 0x20000")
    A("s_mul_i32 s45, s45, 0x9e3779b1")
    A("s_xor_b32 s44, s44, s45")
    A(f"s_or_b32 s{SN}, s44, 1")
    A("s_cmp_lg_u32 s3, 0")
    A("s_cbranch_scc1 H_N")
    A(f"v_mov_b32 v7, s{SN}")
    A("s_mov_b64 exec, 1")
    A("buffer_store_dword v7, off, s[16:19], 0 sc1")
    A("s_mov_b64 exec, -1")
    A("H_N:")
    flag_srd(A)
    A("s_cmp_eq_u32 s36, 0")
    A("s_cselect_b32 s48, s8, s28")
    A("s_cselect_b32 s49, s9, s29")
    A("s_mov_b32 s50, 8192")
    A("s_mov_b32 s51, 0x20000")
    srd(A, 20, 30, 0, 8192)
    srd(A, 24, 4, WS_W, 16384)
    AF, A2, BF, D = 16, 32, 48, 64
    for j in range(4):
        A(f"buffer_load_dwordx4 {vr(AF+4*j,4)}, v4, s[48:51], s40 offen offset:{32*j}")
        A(f"buffer_load_dwordx4 {vr(A2+4*j,4)}, v5, s[48:51], s39 offen offset:{32*j}")
    for hi in range(2):
        for j in range(4):
            for k in range(4):
                jj = 2*k + hi
                A(f"buffer_load_ushort v{BF+4*j+k+32*hi}, v6, s[20:23], {'s41' if j < 2 else 's42'} offen offset:{(16*(j&1)+jj)*128}")
    A("s_waitcnt vmcnt(0)")
    st(A, "hn")
    for r in range(16):
        A(f"v_lshl_or_b32 v{BF+r}, v{BF+32+r}, 16, v{BF+r}")
    for r in range(16):
        A(f"v_xor_b32 v{A2+r}, 0x80008000, v{A2+r}")
    A("s_nop 1")
    for j in range(4):
        A(f"v_mfma_f32_32x32x16_bf16 {vr(D,16)}, {vr(AF+4*j,4)}, {vr(BF+4*j,4)}, {'0' if j == 0 else vr(D,16)}")
    for j in range(4):
        A(f"v_mfma_f32_32x32x16_bf16 {vr(D,16)}, {vr(A2+4*j,4)}, {vr(BF+4*j,4)}, {vr(D,16)}")
    A("s_lshl_b32 s43, s36, 13")
    A("s_lshl_b32 s44, s38, 12")
    A("s_add_u32 s43, s43, s44")
    A("s_lshl_b32 s44, s37, 11")
    A("s_add_u32 s43, s43, s44")
    A("s_nop 7")
    A("s_nop 7")
    for r in range(8):
        A(f"v_cvt_pk_bf16_f32 v{AF+r}, v{D+2*r}, v{D+2*r+1}")
    A(f"buffer_store_dwordx4 {vr(AF,4)}, v{DV}, s[24:27], s43 offen sc1")
    A(f"buffer_store_dwordx4 {vr(AF+4,4)}, v{DV}, s[24:27], s43 offen offset:1024 sc1")
    A("s_waitcnt vmcnt(0)")
    st(A, "hw")
    A("s_barrier")
    A("s_cmp_lg_u32 s3, 0")
    A("s_cbranch_scc1 FIN_X")
    A(f"s_mov_b32 s43, {FS+252*128}")
    flag_store(A, "s43", 17, 4)
    A("s_branch FIN_X")
```

```python
from fc import *
WF = Q + 16
XF = S0 + 16
ONE = 240
XO, WO, RA = 12, 13, 14

def xhalf_sum(A, x, t0, t1):
    A(f"v_mov_b32 v{t0}, v{x}")
    A(f"v_mov_b32 v{t1}, v{x}")
    A("s_nop 1")
    A(f"v_permlane32_swap_b32 v{t0}, v{t1}")
    A("s_nop 1")
    A(f"v_add_f32 v{x}, v{t0}, v{t1}")
def bfround(A, x):
    A(f"v_cvt_pk_bf16_f32 v{x}, v{x}, v{x}")
    A(f"v_lshlrev_b32 v{x}, 16, v{x}")

def gen_ln_q(A):
    A("s_load_dwordx2 s[16:17], s[0:1], 0")
    A("v_and_b32 v3, 31, v0")
    A("v_lshrrev_b32 v4, 5, v0")
    A(f"s_lshr_b32 s42, s3, 1")
    A(f"s_xor_b32 s42, s{SW}, s42")
    A("s_mul_i32 s42, s42, 40")
    A(f"s_and_b32 s43, s{SW}, -4")
    A("s_mul_i32 s43, s43, 40")
    A("s_add_u32 s43, s43, 32")
    A("v_lshrrev_b32 v7, 3, v3")
    A("v_and_b32 v8, 7, v3")
    A("v_mad_u32_u24 v8, v7, 40, v8")
    A("s_cmp_eq_u32 s3, 1")
    A("s_cselect_b32 s42, s43, s42")
    A("s_cselect_b64 vcc, -1, 0")
    A("v_cndmask_b32 v8, v3, v8, vcc")
    A("v_add_u32 v8, s42, v8")
    A("v_lshlrev_b32 v5, 7, v8")
    A("v_lshl_add_u32 v5, v4, 4, v5")
    A(f"v_cmp_eq_u32 s[44:45], s{SI}, v7")
    A(f"s_mov_b32 s18, {N*128}")
    A("s_mov_b32 s19, 0x20000")
    Xr = 16; F = 96; HB = 192; HH = 208; MT = 32; QT = 64
    A("s_waitcnt lgkmcnt(0)")
    for j in range(4):
        A(f"buffer_load_dwordx4 {vr(Xr+4*j,4)}, v5, s[16:19], 0 offen offset:{32*j}")
    st(A, "lni")
    flag_srd(A)
    if "t" in X:
        srd(A, 48, 4, WS_G, 0x300000)
        A("v_lshlrev_b32 v7, 20, v0")
        A("buffer_load_dword v10, v7, s[48:51], 0 offen sc1")
    A(f"v_mov_b32 v{ONE}, 1")
    A("s_cmp_eq_u32 s3, 0")
    A("s_cselect_b64 s[44:45], -1, s[44:45]")
    A("s_cmp_eq_u32 s3, 2")
    A("s_cselect_b64 s[44:45], 0, s[44:45]")
    A("v_mov_b32 v7, 0x70000000")
    A("v_cndmask_b32 v5, v7, v5, s[44:45]")
    if not NH:
        A("v_and_b32 v7, 2, v8")
        A("v_lshlrev_b32 v7, 1, v7")
        A("v_bfe_u32 v8, v8, 2, 2")
        if M16: A("v_and_b32 v8, 2, v8")
        A("v_or_b32 v7, v7, v8")
        A("v_lshlrev_b32 v7, 4, v7")
        A("v_xor_b32 v8, v5, v7")
        srd(A, 52, 4, WS_H, N * 128)
    srd(A, 48, 4, WS_G, N * 128)
    A("v_cmp_eq_u32 s[44:45], 1, v4")
    A("s_mov_b32 s47, 0xffff0000")
    A(f"s_lshl_b32 s42, s3, 12")
    A(f"s_add_u32 s42, s42, {QX}")
    A(f"v_add_u32 v9, s42, v{DV}")
    A(f"v_add_u32 v6, {MTL}, v{DV}")
    A(f"s_lshl_b32 s43, s{SW}, 7")
    A("s_waitcnt vmcnt(1)" if "t" in X else "s_waitcnt vmcnt(0)")
    st(A, "lnx")
    T0 = 228
    for i in range(16):
        A(f"v_lshlrev_b32 v{F+2*i}, 16, v{Xr+i}")
        A(f"v_and_b32 v{F+2*i+1}, s47, v{Xr+i}")
    p0, p1 = vr(T0, 2), vr(T0+2, 2)
    A(f"v_pk_add_f32 {p0}, {vr(F,2)}, {vr(F+2,2)}")
    A(f"v_pk_add_f32 {p1}, {vr(F+4,2)}, {vr(F+6,2)}")
    for i in range(4, 16, 2):
        A(f"v_pk_add_f32 {p0}, {p0}, {vr(F+2*i,2)}")
        A(f"v_pk_add_f32 {p1}, {p1}, {vr(F+2*i+2,2)}")
    A(f"v_pk_add_f32 {p0}, {p0}, {p1}")
    A(f"v_add_f32 v{T0}, v{T0}, v{T0+1}")
    xhalf_sum(A, T0, T0+2, T0+3)
    A(f"v_mul_f32 v{T0}, {f2u(-1.0/64):#x}, v{T0}")
    A(f"v_mov_b32 v{T0+1}, v{T0}")
    for i in range(16):
        A(f"v_pk_add_f32 {vr(F+2*i,2)}, {vr(F+2*i,2)}, {p0}")
    def sumsq(B):
        A(f"v_pk_mul_f32 {p0}, {vr(B,2)}, {vr(B,2)}")
        A(f"v_pk_mul_f32 {p1}, {vr(B+2,2)}, {vr(B+2,2)}")
        for i in range(2, 16, 2):
            A(f"v_pk_fma_f32 {p0}, {vr(B+2*i,2)}, {vr(B+2*i,2)}, {p0}")
            A(f"v_pk_fma_f32 {p1}, {vr(B+2*i+2,2)}, {vr(B+2*i+2,2)}, {p1}")
        A(f"v_pk_add_f32 {p0}, {p0}, {p1}")
        A(f"v_add_f32 v{T0}, v{T0}, v{T0+1}")
        xhalf_sum(A, T0, T0+2, T0+3)
    sumsq(F)
    A(f"v_mul_f32 v{T0}, {f2u(1.0/64):#x}, v{T0}")
    bfround(A, T0)
    A(f"v_add_f32 v{T0}, {f2u(1e-5):#x}, v{T0}")
    bfround(A, T0)
    A(f"v_sqrt_f32 v{T0}, v{T0}")
    A("s_nop 0")
    bfround(A, T0)
    A(f"v_rcp_f32 v{T0}, v{T0}")
    A("s_nop 0")
    A(f"v_mov_b32 v{T0+1}, v{T0}")
    for i in range(16):
        A(f"v_pk_mul_f32 {vr(F+2*i,2)}, {vr(F+2*i,2)}, {p0}")
    for i in range(16):
        A(f"v_cvt_pk_bf16_f32 v{HB+i}, v{F+2*i}, v{F+2*i+1}")
    A(f"v_and_b32 v{T0}, 0xffff, v{HB+15}")
    A(f"v_or_b32 v{T0}, 0x3f800000, v{T0}")
    for k in range(3):
        A(f"v_mov_b32 v{224+k}, v{HB+12+k}")
    A(f"v_cndmask_b32 v227, v{HB+15}, v{T0}, s[44:45]")
    st(A, "lnv")
    for j in range(4):
        src = vr(HB+4*j, 4) if j < 3 else "v[224:227]"
        if NH:
            A(f"buffer_store_dwordx4 {src}, v5, s[48:51], 0 offen offset:{32*j} sc1")
            continue
        if j:
            A(f"v_xor_b32 v{T0+j}, {32*j}, v8")
        A(f"buffer_store_dwordx4 {src}, v{8 if j == 0 else T0+j}, s[48:51], 0 offen sc1")
    st(A, "lng")
    for i in range(0 if NH else 16):
        A(f"v_cvt_pk_f16_f32 v{HH+i}, v{F+2*i}, v{F+2*i+1}")
    for j in range(0 if NH else 4):
        A(f"buffer_store_dwordx4 {vr(HH+4*j,4)}, v5, s[52:55], 0 offen offset:{32*j} sc1")
    A("s_barrier")
    A("s_barrier")
    for q in range(8):
        A(f"ds_read_b128 {vr(MT+4*q,4)}, v6 offset:{1024*q}")
    A("s_waitcnt lgkmcnt(0)")
    st(A, "lnw")
    for b in range(2):
        for j in range(4):
            c = "0" if j == 0 else vr(QT+16*b, 16)
            A(f"v_mfma_f32_32x32x16_bf16 {vr(QT+16*b,16)}, {vr(MT+16*b+4*j,4)}, {vr(HB+4*j,4)}, {c}")
    lds_wait(A, "L_WN", 0, 1, T0)
    A(f"s_mov_b32 s{SN}, s57")
    A("s_cmp_eq_u32 s3, 2")
    A("s_cbranch_scc1 L_F")
    A("s_mov_b64 exec, 1")
    A(f"s_waitcnt vmcnt({0 if NH else 4})")
    st(A, "lnd")
    A(f"ds_add_rtn_u32 v{T0+1}, v{MB}, v{ONE} offset:28")
    A("s_waitcnt lgkmcnt(0)")
    A(f"v_cmpx_eq_u32 vcc, 1, v{T0+1}")
    A("s_cbranch_execz L_G")
    A(f"buffer_store_dword v{T0}, off, s[12:15], s43 sc1")
    A("L_G:")
    A("s_mov_b64 exec, -1")
    A("L_F:")
    A("s_nop 7")
    sumsq(QT)
    A(f"v_sqrt_f32 v{T0}, v{T0}")
    A(f"v_mov_b32 v{T0+2}, v{QT+31}")
    A(f"v_mov_b32 v{T0+3}, v{QT+31}")
    A(f"s_mov_b32 s42, {f2u(LOG2E/8):#x}")
    A(f"s_mov_b32 s43, {f2u(LOG2E/8):#x}")
    A(f"v_permlane32_swap_b32 v{T0+2}, v{T0+3}")
    A(f"v_mul_f32 v{T0}, {f2u(-LOG2E):#x}, v{T0}")
    A(f"v_add_f32 v{T0}, {f2u(64.0):#x}, v{T0}")
    A(f"v_mul_f32 v{T0+2}, {f2u(-LOG2E/8):#x}, v{T0+3}")
    A(f"v_mov_b32 v{T0+3}, v{T0+2}")
    for i in range(16):
        A(f"v_pk_fma_f32 {vr(QT+2*i,2)}, {vr(QT+2*i,2)}, s[42:43], {p1}")
    A(f"v_cndmask_b32 v{QT+31}, v{QT+31}, v{T0}, s[44:45]")
    for i in range(16):
        A(f"v_cvt_pk_bf16_f32 v{Xr+i}, v{QT+2*i}, v{QT+2*i+1}")
    for j in range(4):
        A(f"ds_write_b128 v9, {vr(Xr+4*j,4)} offset:{1024*j}")
    lds_signal(A, 24, ONE)
    st(A, "lnc")
    if not NH:
        A("s_waitcnt vmcnt(0)")
        lds_signal(A, 36, ONE)
    st(A, "lnq")

def gen_w3(A):
    A("s_load_dwordx4 s[28:31], s[0:1], 40")
    A("s_load_dwordx2 s[16:17], s[0:1], 80")
    A("v_and_b32 v3, 31, v0")
    A("v_lshrrev_b32 v4, 5, v0")
    pi_perm(A, 6, 3, 7)
    A("v_lshlrev_b32 v6, 7, v6")
    A("v_lshl_add_u32 v6, v4, 4, v6")
    A("s_movk_i32 s18, 256")
    A("s_mov_b32 s19, 0x20000")
    A("s_movk_i32 s47, 0x1000")
    A(f"v_mov_b32 v{ONE}, 1")
    A(f"v_add_u32 v5, {MTL}, v{DV}")
    A("s_waitcnt lgkmcnt(0)")
    srd(A, 20, 28, 0, 8192)
    srd(A, 24, 30, 0, 8192)
    WQ = 32; WK = 64; M = 128; MT = 192
    for a in range(2):
        so = "0" if a == 0 else "s47"
        for j in range(4):
            A(f"buffer_load_dwordx4 {vr(WQ+16*a+4*j,4)}, v6, s[20:23], {so} offen offset:{32*j}")
        for j in range(4):
            A(f"buffer_load_dwordx4 {vr(WK+16*a+4*j,4)}, v6, s[24:27], {so} offen offset:{32*j}")
    A("buffer_load_dword v16, off, s[16:19], 0 sc1")
    flag_srd(A)
    A("s_barrier")
    A("s_waitcnt vmcnt(1)")
    for j in range(4):
        for a in range(2):
            for b in range(2):
                d = M + 32*b + 16*a
                c = "0" if j == 0 else vr(d, 16)
                A(f"v_mfma_f32_32x32x16_bf16 {vr(d,16)}, {vr(WQ+16*a+4*j,4)}, {vr(WK+16*b+4*j,4)}, {c}")
    A("s_nop 7")
    A("s_nop 3")
    for a in range(2):
        for b in range(2):
            for j in range(2*a, 2*a+2):
                s = M + 32*b + 16*a + 8*(j & 1)
                for k in range(4):
                    A(f"v_cvt_pk_bf16_f32 v{MT+16*b+4*j+k}, v{s+2*k}, v{s+2*k+1}")
                A(f"ds_write_b128 v5, {vr(MT+16*b+4*j,4)} offset:{1024*(4*b+j)}")
    A("s_waitcnt lgkmcnt(0)")
    st(A, "m3")
    A("s_barrier")
    A(f"s_mov_b32 s58, {LIMIT}")
    A("N_L:")
    A("s_waitcnt vmcnt(0)")
    A(f"v_readfirstlane_b32 s{SN}, v16")
    A("s_sub_u32 s58, s58, 1")
    A("s_cbranch_scc1 N_X")
    A(f"s_cmp_lg_u32 s{SN}, 0")
    A("s_cbranch_scc1 N_X")
    A("buffer_load_dword v16, off, s[16:19], 0 sc1")
    A("s_branch N_L")
    A("N_X:")
    A(f"s_or_b32 s{SN}, s{SN}, 1")
    A(f"v_mov_b32 v16, s{SN}")
    A(f"ds_write_b32 v{MB}, v16")
    st(A, "n3")

DS = int(os.environ.get("DS", "0"))
def emit_step(A, M, pre, post, sb):
    for g in range(8):
        A.many(pre[g])
        if M[g]: A(M[g])
        A.many(post[g])
        s = S0 + 16*sb + 2*g
        A(f"v_exp_f32 v{s}, v{s}")
        if g == 7: A.many(pre[8])
        A(f"v_exp_f32 v{s+1}, v{s+1}")

def gen_loop(A, tl, iters, name):
    T = len(tl)
    A(f"s_mov_b32 s38, {iters-1}")
    A(".p2align 6")
    A(f"{name}:")
    if PROF:
        for it in range(1, iters):
            A(f"s_cmp_lg_u32 s38, {iters-1-it}")
            A(f"s_cbranch_scc1 {name}_s{it}")
            st(A, f"i{T}{it}")
            A(f"{name}_s{it}:")
    U = 5*T
    for u in range(U):
        k, t = divmod(u, T)
        tp = tl[(u - 1) % T]; tn = tl[(u + 1) % T]; tc = tl[t]
        M = [pv(tp, tp, 0, 1), pv(tp, tp, 1, 0), pv(tp, tp, 1, 1)] + [qk(tn, j, tn) for j in range(4)] + [pv(tc, tc, 0, 0)]
        pre = [[] for _ in range(9)]
        post = [[] for _ in range(8)]
        if t == 0:
            vs = vread(0, 0, k)[1:] + vread(0, 1, k) + vread(1, 0, k) + vread(1, 1, k)
            for g in range(7):
                post[g].append(vs[g])
            pre[7].append(f"s_waitcnt lgkmcnt({2 if T > 2 else 5})")
        if t == 1:
            pre[2].append("s_waitcnt vmcnt(12) lgkmcnt(0)" if T == 3 else "s_waitcnt lgkmcnt(0)")
            pre[(1 if DS else 3) if T == 2 else 5].append(f"s_mov_b32 m0, s{48+k}")
            if k == 3 and T == 3: post[0].append(f"ds_read_b32 v{ONE+1}, v{MB} offset:36")
        if t == T - 2:
            if T == 2:
                pre[3].append(f"s_waitcnt vmcnt({11 if DS else 12})")
            for j in range(4):
                post[3+j].append(kread(j, (k + 1) % 5))
        if t == T - 1:
            if T == 3:
                pre[3].append("s_waitcnt lgkmcnt(0)")
            for j in range(0 if DS else 4):
                post[3+j].append(dma_ld(j))
            if not DS: pre[7].append("s_add_u32 s37, s37, s45")
            post[7] += vread(0, 0, (k + 1) % 5)[:1]
        if DS:
            pos = [(1, 7), (2, 5), (0, 3), (1, 1)] if T == 3 else [(1, 2), (1, 6), (0, 2), (0, 7)]
            for j, (a, b) in enumerate(pos):
                if a == t: post[b].append(dma_ld(j))
            if t == 1: (post[2] if T == 3 else post[0]).append("s_add_u32 s37, s37, s45")
        if u == U - 1:
            pre[8].append("s_sub_u32 s38, s38, 1")
        if "w" in X:
            pre = [[x.replace("vmcnt(12)", "vmcnt(63)") for x in p] for p in pre]
        if "l" in X:
            import re
            pre = [[re.sub(r"lgkmcnt\(\d+\)", "lgkmcnt(15)", x) for x in p] for p in pre]
        emit_step(A, M, pre, post, tc)
    A(f"s_cbranch_scc0 {name}")

W2 = int(os.environ.get("W2", "1"))
ORD = int(os.environ.get("ORD", "0"))
PK2 = int(os.environ.get("PK2", "0"))
def gen_loop16(A, tl, iters, name):
    T = len(tl)
    A(f"s_mov_b32 s38, {iters-1}")
    A(".p2align 6")
    A(f"{name}:")
    U = 5*T
    for u in range(U):
        k, t = divmod(u, T)
        tp = tl[(u - 1) % T]; tn = tl[(u + 1) % T]; tc = tl[t]
        M = unit16(tp, tp, tn, tn, tc, tc)
        pre = [[] for _ in range(17)]
        post = [[] for _ in range(16)]
        kk = 4 if T == 2 else 0
        if t == 0:
            for i, v in enumerate(vread16(k)): post[2+i].append(v)
            pre[14].append(f"s_waitcnt lgkmcnt({kk + 4*W2})")
        if t == 1:
            if W2: pre[0].append(f"s_waitcnt lgkmcnt({kk})")
            post[1].append(f"s_mov_b32 m0, s{48+k}")
            if k == 3 and T == 3: post[0].append(f"ds_read_b32 v{ONE+1}, v{MB} offset:36")
        if t == T - 2:
            post[9].append("s_waitcnt vmcnt(12)")
            for j in range(4):
                post[10+j].append(kread16(j, (k + 1) % 5))
        if t == T - 1:
            pre[6].append("s_waitcnt lgkmcnt(0)")
            for j in range(4):
                post[7+2*j].append(dma_ld(j))
            post[14].append("s_add_u32 s37, s37, s45")
        if u == U - 1:
            post[15].append("s_sub_u32 s38, s38, 1")
        if PK2:
            pre = [[] for _ in range(17)]; post = [[] for _ in range(16)]
            if t == 0:
                for i, v in enumerate(vread16(k)): post[2 + PK2*(i >> 1)].append(v)
                post[13].append(f"s_waitcnt lgkmcnt({kk})")
            if t == 1 and k == 3 and T == 3: post[0].append(f"ds_read_b32 v{ONE+1}, v{MB} offset:36")
            if t == T - 2:
                kr = [kread16(j, (k + 1) % 5) for j in range(4)]
                post[9] = ["s_waitcnt vmcnt(12)", kr[0]]
                post[11] = kr[1:3]
                post[13] = [kr[3]] + post[13]
                if T == 3: post[13].append(f"s_mov_b32 m0, s{48+k}")
            if t == T - 1:
                post[5] = ["s_waitcnt lgkmcnt(0)"] + ([f"s_mov_b32 m0, s{48+k}"] if T == 2 else [dma_ld(0)])
                post[7] = [dma_ld(1), dma_ld(2)]
                post[9] = [dma_ld(3)] + ([dma_ld(0)] if T == 2 else ["s_add_u32 s37, s37, s45"])
                if T == 2: post[11] = ["s_add_u32 s37, s37, s45"]
            if u == U - 1: post[11].append("s_sub_u32 s38, s38, 1")
        if "d" in X: post = [[x for x in p if "buffer_load" not in x] for p in post]
        if "r" in X: post = [[x for x in p if "ds_read_b" not in x or "b32" in x] for p in post]
        for h in range(16):
            r = S0 + 16*tc + h
            ex = f"v_exp_f32{'_e64' if 'e' in X else ''} v{r}, v{r}"
            if ORD == 0:
                A.many(pre[h]); A(M[h]); A.many(post[h]); A(ex)
            elif ORD == 1:
                A.many(pre[h]); A(M[h]); A(ex); A.many(post[h])
            elif h & 1:
                A.many(pre[h-1] + pre[h]); A(M[h-1]); A.many(post[h-1]); A(M[h]); A.many(post[h])
                A(ex.replace(f"v{r}", f"v{r-1}")); A(ex)
    A(f"s_cbranch_scc0 {name}")

def dump16(t):
    return [f"ds_write_b128 v{RA}, {vr(O+32*t+4*q,4)} offset:{2048*(q>>1)+256*(q&1)}" for q in range(8)]

def gen_t16(A):
    seq = [(int(w[1:]), 0 if w[0] == "O" else 2) for w in SEQS[os.environ.get("SEQ", "2")].split()]
    n = len(seq); P = [a for a, _ in seq]; last = max(P)
    ms = max(i for i in range(n) if seq[i][1] == 2)
    assert P[0] == 35 and P[1] == 35
    L = []
    def ins(s, tag=None): L.append((s, tag))
    def wait(l=None, v=None): L.append(("WAIT", (l, v)))
    pre_v = [f"D{k}" for k in (36, 37, 38, 39) for _ in range(4)]
    ins("s_add_u32 s37, s37, s47")
    dl = dump16(2); fl = final_loads()
    newv = lambda i: i == 0 or P[i] != P[i-1]
    nd = 40
    for i in range(n):
        sb = 0 if i % 2 == 0 else 2; so = 2 - sb
        tp = 2 if i == 0 else seq[i-1][1]
        M = unit16(so, tp, so, seq[i+1][1] if i + 1 < n else None, sb, seq[i][1])
        vs = vread16(P[i] % 5)
        rk = i + 2 < n and P[i+2] != P[i+1]
        free = nd <= last and all(not (P[j] == nd - 5 and newv(j)) for j in range(i, n))
        for h in range(16):
            if h == 0 and i and newv(i-1): wait(l=[f"W{i-1}"])
            if h == 6 and i + 1 < n: wait(l=[f"K{i+1}", f"C{i-1}"])
            if h == 14 and newv(i): wait(l=[f"V{i}"])
            if M[h]: ins(M[h])
            if h == 0 and free: ins(f"s_mov_b32 m0, s{48+nd%5}")
            if 2 <= h < 10 and newv(i): ins(vs[h-2], f"V{i}" if h < 6 else f"W{i}")
            if h == 9 and rk: wait(v=[f"D{P[i+2]}"])
            if 10 <= h < 14 and rk: ins(kread16(h-10, P[i+2] % 5), f"K{i+2}")
            if h in (1, 3, 5, 7) and free: ins(dma_ld(h//2), f"D{nd}")
            if h == 8 and free: ins("s_add_u32 s37, s37, s45")
            if i == ms + 3 and h in (0, 1, 14, 15): ins(fl.pop(0), "F")
            if i == ms + 4 and h == 0: ins(fl.pop(0), "F")
            if i == ms and h == 0: ins(f"ds_read_b32 v{ONE+1}, v{MB} offset:20", f"C{i}")
            if i == ms + 1 and h == 6: ins(f"v_readfirstlane_b32 s57, v{ONE+1}")
            if i == ms + 1 and h == 8:
                ins("s_cmp_lt_u32 s57, 4"); ins("s_cbranch_scc1 A_WC"); ins("A_WR:")
            if dl and (i, h) >= (ms + 1, 9):
                ins(dl.pop(0), "X")
                if not dl:
                    ins("s_mov_b64 exec, 1"); ins(f"ds_add_u32 v{MB}, v{ONE} offset:8", "X"); ins("s_mov_b64 exec, -1")
            r = S0 + 16*sb + h
            ins(f"v_exp_f32 v{r}, v{r}")
        if free: nd += 1
    assert not dl and not fl and nd == last + 1
    wait(l=[f"W{n-1}"])
    for m in unit16(2, 0, 0, None, 0, 0)[:6]: ins(m)
    T = Track(); T.q["v"] = pre_v
    for s_, tag in L:
        if s_ == "WAIT":
            l, v = tag; w = "s_waitcnt"
            if v: w += f" vmcnt({T.cnt('v', v)})"
            if l: w += f" lgkmcnt({T.cnt('l', l)})"
            A(w)
        else:
            if tag: T.add(s_, tag)
            A(s_)

def dump(t, a=None):
    return [f"ds_write_b128 v{RA if a is None else a}, {vr(O+32*t+4*q,4)} offset:{1024*q}" for q in range(8)]

def final_loads():
    L = []
    for i in range(4):
        L.append(f"buffer_load_dwordx4 {vr(WF+4*i,4)}, v{WO}, s[20:23], {'0' if i == 0 else 's%d' % (60+i)} offen sc1")
    L.append(f"buffer_load_dwordx4 {vr(XF,4)}, v{XO}, s[16:19], 0 offen")
    return L

def final_setup_v(A):
    A("v_and_b32 v16, 31, v0")
    A("v_lshrrev_b32 v17, 5, v0")
    A("v_and_b32 v18, 7, v16")
    A("v_add_u32 v18, 32, v18")
    A("v_lshrrev_b32 v19, 3, v16")
    A("s_cmp_ge_u32 s3, 4")
    A("s_cselect_b64 vcc, -1, 0")
    A(f"v_cmp_eq_u32 s[54:55], s{SI}, v19")
    A("v_cndmask_b32 v16, v16, v18, vcc")
    A(f"s_lshl_b32 s42, s{SV}, 5")
    A("v_lshl_add_u32 v17, v17, 4, s42")
    A(f"v_mul_u32_u24 v1, {ASTR}, v16")
    A("v_add_u32 v1, v1, v17")
    A(f"v_add_u32 v1, {AL}, v1")
    A(f"s_mul_i32 s42, s{SW}, {40*128}")
    A(f"v_lshl_add_u32 v{XO}, v16, 7, v17")
    A(f"v_add_u32 v{XO}, s42, v{XO}")
    A("s_andn2_b64 vcc, vcc, s[54:55]")
    A("v_mov_b32 v18, 0x70000000")
    A(f"v_cndmask_b32 v{XO}, v{XO}, v18, vcc")
    A(f"s_lshl_b32 s42, s{SV}, 10")
    A(f"v_add_u32 v{WO}, s42, v{DV}")
    A(f"s_lshl_b32 s42, s{SV}, 13")
    A(f"s_add_u32 s42, s42, {STG}")
    A(f"v_add_u32 v{RA}, s42, v{DV}")

def final_setup_s(A):
    A(f"s_lshl_b32 s54, s{SI}, 3")
    A("s_lshl_b32 s54, 0xff, s54")
    A("s_mov_b32 s55, s54")
    srd(A, 16, 6, 0, N * 128)
    srd(A, 20, 4, WS_W, 16384)
    srd(A, 24, 28, 0, N * 128)
    A("s_movk_i32 s61, 0x1000")
    A("s_movk_i32 s62, 0x2000")
    A("s_movk_i32 s63, 0x3000")

class Track:
    def __init__(self): self.q = {"l": [], "v": []}
    def add(self, ins, tag):
        self.q["l" if ins.startswith("ds_") else "v"].append(tag); return ins
    def cnt(self, c, tags):
        q = self.q[c]; last = max([i for i, t in enumerate(q) if t in tags], default=-1)
        return min(len(q) - 1 - last, 15 if c == "l" else 63)

SEQS = {
 "2": "O35 S35 S36 S37 S38 O36 O37 O38 O39 O40",
 "4": "O35 S35 O36 S36 S37 O37 O38 O39 O40 O41",
 "4b": "O35 S35 S36 S37 O36 O37 O38 O39 O40 O41",
 "6": "O35 S35 S36 O36 O37 O38 O39 O40 O41 O42",
 "8": "O35 S35 O36 O37 O38 O39 O40 O41 O42 O43",
}
def gen_t1(A):
    seq = [(int(w[1:]), 0 if w[0] == "O" else 2) for w in SEQS[os.environ.get("SEQ", "2")].split()]
    n = len(seq); P = [a for a, _ in seq]; last = max(P)
    ms = max(i for i in range(n) if seq[i][1] == 2)
    assert P[0] == 35 and P[1] == 35
    L = []
    def ins(s, tag=None): L.append((s, tag))
    def wait(l=None, v=None): L.append(("WAIT", (l, v)))
    pre_l = ["V0"]; pre_v = [f"D{k}" for k in (36, 37, 38, 39) for _ in range(4)]
    if DS: pre_v = pre_v[:-2]
    else: ins("s_add_u32 s37, s37, s47")
    dl = dump(2); fl = final_loads()
    newv = lambda i: i == 0 or P[i] != P[i-1]
    nd = 40
    for i in range(n):
        sb = 0 if i % 2 == 0 else 2; so = 2 - sb
        tp = 2 if i == 0 else seq[i-1][1]
        M = [pv(so, tp, 0, 1), pv(so, tp, 1, 0), pv(so, tp, 1, 1)] + [qk(so, j, seq[i+1][1]) if i + 1 < n else None for j in range(4)] + [pv(sb, seq[i][1], 0, 0)]
        k = P[i] % 5
        vs = vread(0, 0, k)[1:] + vread(0, 1, k) + vread(1, 0, k) + vread(1, 1, k)
        vt = [f"V{i}"]*5 + [f"W{i}"]*2
        rk = i + 2 < n and P[i+2] != P[i+1]
        free = nd <= last and all(not (P[j] == nd - 5 and newv(j)) for j in range(i, n))
        for g in range(8):
            if g == 2:
                wait(l=[f"W{i-1}", f"K{i+1}"], v=[f"D{P[i+2]}"] if rk else None)
                if free: ins(f"s_mov_b32 m0, s{48+nd%5}")
            if g == 7 and newv(i): wait(l=[f"V{i}"])
            if M[g]: ins(M[g])
            if g < 7 and newv(i): ins(vs[g], vt[g])
            if 3 <= g <= 6 and rk: ins(kread(g-3, P[i+2] % 5), f"K{i+2}")
            if DS and i == 0 and g in (2, 7): ins(dma_ld(2 if g == 2 else 3), "D39")
            if DS and i == 1 and g < 2: ins(f"s_add_u32 s37, s37, s{45+2*g}")
            if 2 <= g <= 5 and free: ins(dma_ld(g-2), f"D{nd}")
            if g == 6 and free: ins("s_add_u32 s37, s37, s45")
            if g == 7 and i + 1 < n and newv(i+1): ins(vread(0, 0, P[i+1] % 5)[0], f"V{i+1}")
            if i == ms + 3 and g in (0, 1, 6, 7): ins(fl.pop(0), "F")
            if i == ms + 4 and g == 0: ins(fl.pop(0), "F")
            if i == ms and g == 0: ins(f"ds_read_b32 v{ONE+1}, v{MB} offset:20", f"W{i}")
            if i == ms + 1 and g == 2: ins(f"v_readfirstlane_b32 s57, v{ONE+1}")
            if i == ms + 1 and g == 4:
                ins("s_cmp_lt_u32 s57, 4"); ins("s_cbranch_scc1 A_WC"); ins("A_WR:")
            if dl and (i, g) >= (ms + 1, 5):
                ins(dl.pop(0), "X"); ins(dl.pop(0), "X")
                if not dl:
                    ins("s_mov_b64 exec, 1"); ins(f"ds_add_u32 v{MB}, v{ONE} offset:8", "X"); ins("s_mov_b64 exec, -1")
            r = S0 + 16*sb + 2*g
            ins(f"v_exp_f32 v{r}, v{r}"); ins(f"v_exp_f32 v{r+1}, v{r+1}")
        if free: nd += 1
    assert not dl and not fl and nd == last + 1
    wait(l=[f"W{n-1}"])
    ins(pv(2, 0, 0, 1)); ins("s_nop 0"); ins(pv(2, 0, 1, 0)); ins(pv(2, 0, 1, 1))
    T = Track(); T.q["l"] = pre_l; T.q["v"] = pre_v
    for s_, tag in L:
        if s_ == "WAIT":
            l, v = tag; w = "s_waitcnt"
            if v: w += f" vmcnt({T.cnt('v', v)})"
            if l: w += f" lgkmcnt({T.cnt('l', l)})"
            A(w)
        else:
            if tag: T.add(s_, tag)
            A(s_)

def gen_attn(A):
    A("A_MAIN:")
    A("s_load_dwordx2 s[6:7], s[0:1], 0")
    A("s_load_dwordx2 s[28:29], s[0:1], 72")
    A(f"s_mul_i32 s42, s{SV}, {80*4096}")
    A(f"s_sub_u32 s10, {N*128}, s42")
    A(f"s_min_u32 s10, s10, {80*4096}")
    A("s_mov_b32 s11, 0x20000")
    A("s_add_u32 s8, s4, s42")
    A("s_addc_u32 s9, s5, 0")
    A(f"s_mul_i32 s36, s{SV}, {RING}")
    for k in range(5):
        A(f"s_add_u32 s{48+k}, s36, {4096*k}")
    A(f"s_lshl_b32 s45, s{SHF}, 13")
    A("s_sub_u32 s45, 0x1000, s45")
    A(f"s_mul_i32 s37, s{SHF}, {79*4096}")
    A(f"s_lshl_b32 s42, s{SHF}, 12")
    A(f"s_sub_u32 s42, {40*4096}, s42")
    A("s_mul_i32 s47, s45, -80")
    A(f"s_cmp_eq_u32 s{SP}, 0")
    A("s_cselect_b32 s37, s37, s42")
    A("s_cselect_b32 s47, 0, s47")
    (frag16 if M16 else frag_addrs)(A, 0, 36, 18, 19)
    dma_addr(A, 18)
    A("s_waitcnt lgkmcnt(0)")
    final_setup_v(A)
    if M16: A(f"v_add_u32 v{RA}, s42, v{D2}")
    final_setup_s(A)
    for r in list(range(O, O + 96, 2)) + list(range(S0+32, S0+48, 2)) + list(range(VF+(0 if M16 else 4), VF+16, 2)):
        A(f"v_mov_b64 {vr(r,2)}, 0")
    A("v_lshlrev_b32 v17, 7, v0")
    A(f"s_lshl_b32 s42, s{SV}, 13")
    lds_wait(A, "A_WF", 28, 2, 16)
    st(A, "fg")
    A("s_cmp_eq_u32 s3, 3")
    A("s_cselect_b32 exec_hi, 0x03ffffff, -1")
    poll1(A, "A_PG", 17, "s42", 16)
    st(A, "a3")
    A("s_setprio 1")
    for k in range(5):
        A(f"s_mov_b32 m0, s{48+k}")
        A("s_nop 0")
        if DS and k == 4:
            for i in range(2): A(dma_ld(i))
            continue
        for i in range(4): A(dma_ld(i))
        A("s_add_u32 s37, s37, s45")
    lds_signal(A, 40, ONE)
    lds_wait(A, "A_WQ", 24, 3, 16)
    A(f"v_add_u32 v17, {QX}, v{D2 if M16 else DV}")
    for q in range(12):
        A(f"ds_read_b128 {vr(Q+4*q,4)}, v17 offset:{4096*(q>>2)+2048*(q&1)+256*((q>>1)&1) if M16 else 1024*q}")
    A(f"s_waitcnt vmcnt({14 if DS else 16})")
    if M16:
        for j in range(4): A(kread16(j, 0))
        A("s_waitcnt lgkmcnt(0)")
        A.many(qk16(0, 0))
    else:
        for j in range(4): A(kread(j, 0))
        A(vread(0, 0, 0)[0])
        A("s_waitcnt lgkmcnt(1)")
        for j in range(4): A(qk(0, j, 0))
    A("s_nop 7")
    st(A, "a4")
    (gen_loop16 if M16 else gen_loop)(A, [0, 1, 2], 4, "A_L3")
    st(A, "l3")
    A(f"v_readfirstlane_b32 s57, v{ONE+1}")
    A(f"s_cmp_lt_u32 s57, {4 if NH else 7}")
    A("s_cbranch_scc1 A_WP")
    A("A_WPR:")
    A.many(dump16(1) if M16 else dump(1))
    A("s_mov_b64 exec, 1")
    A(f"ds_add_u32 v{MB}, v{ONE} offset:8")
    A("s_mov_b64 exec, -1")
    (gen_loop16 if M16 else gen_loop)(A, [0, 2], 3, "A_L2")
    st(A, "l2")
    (gen_t16 if M16 else gen_t1)(A)
    st(A, "a5")
    A(f"v_add_u32 v{RA}, s36, v{D2 if M16 else DV}")
    if M16:
        dl = dump16(0)
        A("s_nop 1")
        A.many(dl[0::2]); A.many(dl[1::2][:3]); A("s_nop 0"); A(dl[7])
    else:
        A("s_nop 7")
        A("s_nop 2")
        A.many(dump(0))
    A("s_branch FINAL")
    A("A_WC:")
    lds_wait(A, "A_WC1", 20, 4, ONE+1)
    A("s_branch A_WR")

    A("A_WP:")
    lds_wait(A, "A_WP1", 36, 4 if NH else 7, ONE+1)
    A("s_branch A_WPR")
```

```python
from fc import *
from fa import WF, XF, XO, WO, RA, final_setup_v, final_setup_s, final_loads

T = 140; RS = 176; PO = 177; EV = 178; PK = 180; EK = 192
TH = 60; MD = 40
GP = int(os.environ.get("GP", "0"))
DG = int(os.environ.get("DG", "6"))
SPL = int(os.environ.get("SPL", "1"))
HF = int(os.environ.get("HF", "1"))
WP = int(os.environ.get("WP", "0"))
def gen_sort(A):
    A("s_load_dwordx4 s[28:31], s[0:1], 8")
    A(f"s_lshl_b32 s42, s{SV}, 6")
    A("v_add_u32 v2, s42, v0")
    A("v_lshlrev_b32 v3, 4, v2")
    A("v_lshlrev_b32 v4, 3, v2")
    A(f"s_mul_i32 s50, s{SW}, {CH*4}")
    A("s_add_u32 s43, s50, 0x1000")
    A("s_add_u32 s44, s50, 0x2000")
    A("s_waitcnt lgkmcnt(0)")
    srd(A, 20, 30, 0, E * 4)
    srd(A, 24, 28, 0, E * 4)
    D = 16; S = 28; R = 40; B = 52
    def eloads(base, sd):
        A(f"buffer_load_dwordx4 {vr(base,4)}, v3, {sr(sd,4)}, s50 offen")
        A(f"buffer_load_dwordx4 {vr(base+4,4)}, v3, {sr(sd,4)}, s43 offen")
        A(f"buffer_load_dwordx2 {vr(base+8,2)}, v4, {sr(sd,4)}, s44 offen")
    Z = 64
    A(f"s_mov_b32 s49, {STG}")
    A(f"v_mov_b32 v10, {CELL}")
    A("v_lshrrev_b32 v5, 2, v2")
    A("v_and_b32 v7, 3, v2")
    A(f"v_mad_u32_u24 v73, v5, v10, s49")
    A("v_lshl_add_u32 v73, v7, 4, v73")
    A(f"s_and_b32 s42, s{SW}, 15")
    A("s_lshl_b32 s42, s42, 20")
    A("s_add_u32 s42, s42, 0x1000000")
    A(f"v_lshl_add_u32 v{Z+1}, v7, 18, s42")
    A("v_cmp_eq_u32 vcc, 0, v7")
    for r in range(2, 6):
        A(f"v_mov_b32 v{Z+r}, v{Z+1}")
    A(f"v_addc_co_u32 v{Z}, vcc, 0, v{Z+1}, vcc")
    for it in range(4):
        A(f"ds_write_b128 v73, {vr(Z,4)} offset:{64*CELL*it}")
        A(f"ds_write_b128 v73, {vr(Z+2,4)} offset:{64*CELL*it+64}")
    for r in range(4):
        A(f"v_mov_b32 v{Z+16+r}, -1")
        A(f"v_mov_b32 v{Z+20+r}, 0")
    A(f"v_add_u32 v5, {LL}, v3")
    for i in range(3):
        A(f"ds_write_b128 v5, {vr(Z+16,4)} offset:{4096*i}")
    A("v_mov_b32 v6, 1")
    A(f"v_lshlrev_b32 v5, 2, v0")
    A(f"v_add_u32 v8, {LST}, v5")
    A(f"v_add_u32 v5, {DUM}, v5")
    A(f"v_lshlrev_b32 v9, 8, v0")
    A(f"v_add_u32 v9, {LL}, v9")
    A("ds_write2st64_b32 v8, v9, v5 offset0:0 offset1:1")
    for i in range(3):
        A(f"ds_write_b128 v{MB}, {vr(Z+20,4)} offset:{16*i}")
    srd(A, 28, 4, WS_E, 2 * E2)
    flag_srd(A)
    A("s_mov_b32 s47, 52429")
    A("v_mov_b32 v7, 31")
    gather_setup(A)
    A("s_barrier")
    if "g" not in X: eloads(D, 20)
    if "a" in X: eloads(S, 24)
    A("s_waitcnt lgkmcnt(0)")
    A("s_barrier")
    if "p" in X: A("s_setprio 2")
    A("s_load_dwordx2 s[6:7], s[0:1], 24")
    A(f"s_cmp_ge_u32 s{SW}, {0 if 'x' in X else NB}")
    A("s_cbranch_scc1 B_3")
    if "g" in X:
        lds_wait(A, "B_WG", 40, 4, 5)
        eloads(D, 20); eloads(S, 24)
    A(f"s_waitcnt vmcnt({3 if 'g' in X or 'a' in X else 0}) lgkmcnt(0)")
    if "b" in X: eloads(S, 24)
    st(A, "bld")
    for i in range(10):
        A(f"v_mul_u32_u24 v{B+i}, s47, v{D+i}")
        A(f"v_lshrrev_b32 v72, 21, v{B+i}")
        A(f"v_mad_u32_u24 v{B+i}, v72, v10, s49")
        A(f"ds_add_rtn_u32 v{R+i}, v{B+i}, v6")
        A(f"v_mul_u32_u24 v72, 40, v72")
        A(f"v_sub_u32 v{D+i}, v{D+i}, v72")
    for i in range(10):
        A(f"s_waitcnt lgkmcnt({9-i})")
        A(f"v_min_u32_sdwa v{R+i}, v{R+i}, v7 dst_sel:DWORD dst_unused:UNUSED_PAD src0_sel:WORD_0 src1_sel:DWORD")
        A(f"v_lshl_add_u32 v{B+i}, v{R+i}, 2, v{B+i}")
    if not set("gab") & set(X):
        lds_wait(A, "B_WG", 40, 4, 5)
        st(A, "bgo")
        eloads(S, 24)
    A("s_waitcnt vmcnt(0)")
    st(A, "bsrc")
    for i in range(10):
        A(f"v_lshl_or_b32 v{S+i}, v{D+i}, 18, v{S+i}")
        A(f"ds_write_b32 v{B+i}, v{S+i}")
    lds_signal(A, 32, 6)
    A(f"s_lshl_b32 s42, s{SW}, 14")
    A(f"s_add_u32 s43, s42, {E2:#x}")
    lds_wait(A, "B_W1", 32, 4, 5)
    st(A, "bsort")
    for it in range(4):
        A(f"ds_read_b128 {vr(16+4*it,4)}, v73 offset:{64*CELL*it}")
    for it in range(4):
        A(f"ds_read_b128 {vr(32+4*it,4)}, v73 offset:{64*CELL*it+64}")
    A("v_mov_b32 v7, 16")
    for it in range(4):
        A(f"s_waitcnt lgkmcnt({7-it})")
        A(f"buffer_store_dwordx4 {vr(16+4*it,4)}, v3, s[28:31], s42 offen sc1")
        A(f"v_mov_b32_dpp v{48+it}, v{16+4*it} quad_perm:[0,0,0,0] row_mask:0xf bank_mask:0xf")
        A("s_add_u32 s42, s42, 0x1000")
    A("s_waitcnt lgkmcnt(0)")
    for it in range(4):
        A(f"v_cmp_gt_u32_sdwa vcc, v{48+it}, v7 src0_sel:WORD_0 src1_sel:DWORD")
        A("s_and_b64 exec, vcc, -1")
        A(f"s_cbranch_scc0 B_O{it}")
        A(f"buffer_store_dwordx4 {vr(32+4*it,4)}, v3, s[28:31], s43 offen sc1")
        A(f"B_O{it}:")
        A("s_mov_b64 exec, -1")
        A("s_add_u32 s43, s43, 0x1000")
    A("B_3:")
    A("s_waitcnt vmcnt(0) lgkmcnt(0)")
    st(A, "bpub")
    lds_signal(A, 36, 6)
    lds_wait(A, "B_W2", 0, 1, 5)
    A(f"s_mov_b32 s{SN}, s57")
    lds_wait(A, "B_W3", 36, 4 if NH else 7, 5)
    A("s_cmp_lg_u32 s3, 4")
    A("s_cbranch_scc1 B_4")
    A(f"s_lshl_b32 s42, s{SW}, 7")
    A(f"s_add_u32 s42, s42, {FS}")
    flag_store(A, "s42", 16)
    A("B_4:")

EN = 140; PS = 16; BUF = 48; PR = 88; AC = 108; SA = 128; SX = 132
DI = 228; DO = 231; FO = 232; LR2 = 233; C16 = 234; LBV = 235; TWO = 236; AO = 237; C = 244
t0, t1, t2, t3 = 238, 239, 241, 242
def gather_setup(A):
    A(f"s_lshl_b32 s42, s{SV}, 12")
    A(f"v_add_u32 v{PO}, s42, v{DV}")
    A(f"s_lshl_b32 s42, s{SV}, 11")
    A(f"s_add_u32 s42, s42, {STG}")
    A(f"v_add_u32 v{RS}, s42, v{DV}")
    A(f"s_mov_b32 s{TH}, 4")
    A(f"v_mov_b32 v{EV}, 0")
    A(f"v_bfe_u32 v{t0}, v0, 3, 1")
    A(f"v_lshrrev_b32 v{t1}, 5, v0")
    A(f"v_cmp_eq_u32 vcc, v{t0}, v{t1}")
    A(f"v_lshl_add_u32 v{t0}, v{t0}, 1, v{t1}")
    A(f"v_lshlrev_b32 v{DO}, 1, v{t0}")
    A(f"v_and_b32 v{t1}, 1, v0")
    A(f"v_lshlrev_b32 v{t1}, 4, v{t1}")
    A(f"v_mov_b32 v{t2}, {0x3f80 if NH else 0x3c00:#x}")
    A(f"v_lshlrev_b32 v{t1}, v{t1}, v{t2}")
    A(f"v_cndmask_b32 v{t1}, 0, v{t1}, vcc")
    A("s_mov_b32 vcc_lo, 0xf0f0f0f0")
    A("s_mov_b32 vcc_hi, vcc_lo")
    A(f"v_cndmask_b32 v{SA+1}, 0, v{t1}, vcc")
    A(f"v_sub_u32 v{SA}, v{t1}, v{SA+1}")
    A(f"v_mov_b32 v{SA+3}, v{SA+1}")
    A(f"v_mov_b32 v{SA+2}, v{SA}")
    A("s_mov_b32 vcc_lo, 0xcccccccc")
    A("s_mov_b32 vcc_hi, vcc_lo")
    A(f"v_mov_b32 v{t1}, 0xeeeeeeee")
    A(f"v_mov_b32 v{SX}, 0x44444444")
    A(f"v_cndmask_b32 v{SX}, v{SX}, v{t1}, vcc")
    for p in range(3):
        A(f"v_mov_b32 v{DI+p}, 0")
    for r in range(20):
        A(f"v_mov_b32 v{AC+r}, 0")
    A(f"v_and_b32 v{t1}, 7, v0")
    A(f"v_lshlrev_b32 v{PR+1}, 4, v{t1}")
    A(f"v_bfe_u32 v{t2}, v0, 4, 1")
    A(f"v_lshl_add_u32 v{t2}, v{t2}, 3, v{PR+1}")
    A(f"v_mul_u32_u24 v{AO}, {ASTR}, v{t0}")
    A(f"s_mul_i32 s42, s{SV}, {10*ASTR}")
    A(f"s_add_u32 s42, s42, {AL}")
    A(f"v_add3_u32 v{AO}, v{AO}, v{t2}, s42")
    A(f"v_lshl_add_u32 v{t2}, v{t0}, 7, v{t2}")
    for i in range(1, 10):
        A(f"v_mov_b32 v{PR+2*i+1}, v{PR+1}")
    A(f"v_mov_b32 v{LBV}, {LST}")
    A(f"s_mul_i32 s42, s{SV}, 2560")
    A(f"s_add_u32 s42, s42, {LL}")
    A(f"v_lshrrev_b32 v{t0}, 3, v0")
    A(f"v_lshl_add_u32 v{LR2}, v{t0}, 1, s42")
    A(f"v_mov_b32 v{TWO}, 2")
    A(f"v_mov_b32 v{C16}, 16")
    A(f"v_lshlrev_b32 v{FO}, 7, v2")
    A(f"v_lshrrev_b32 v{t3}, 2, v0")
    A(f"v_lshlrev_b32 v{t3}, 14, v{t3}")
    A(f"v_and_b32 v{t1}, 3, v0")
    A(f"v_lshl_add_u32 v{t3}, v{t1}, 4, v{t3}")
    A(f"v_lshlrev_b32 v{EN+12}, 18, v0")
    A(f"v_add_u32 v{EN+12}, 0x1000000, v{EN+12}")
    for r in range(13, 16):
        A(f"v_mov_b32 v{EN+r}, v{EN+12}")
    final_setup_v(A)

def gen_gather(A):
    srd(A, 8, 4, WS_PE, 0x800000)
    for j in range(3):
        A(f"v_mov_b32 v{PK+4*j+3}, s{SN}")
    A(f"s_cmp_ge_u32 s{SW}, {0 if 'y' in X else NB}")
    A("s_cbranch_scc1 B_X")
    srd(A, 16, 4, WS_G if NH else WS_H, N, stride=128)
    srd(A, 48, 6, 0, N * 2)
    A(f"s_mul_i32 s42, s{SW}, 80")
    A(f"s_mul_i32 s43, s{SV}, 20")
    A("s_add_u32 s42, s42, s43")
    for p in range(3):
        A(f"buffer_load_short_d16_hi v{DI+p}, v{DO}, s[48:51], s42 offen offset:{8*p}")
    A(f"s_lshl_b32 s44, s{SV}, 20")
    A(f"s_lshl_b32 s45, s{SW}, 6")
    A("s_add_u32 s44, s44, s45")
    A(f"s_cmp_eq_u32 s{SV}, 3")
    A("s_cselect_b32 s47, 0xff, -1")
    if HF:
        A("s_and_b32 s45, s2, 31")
        A("s_lshl_b32 s45, s45, 7")
        spoll(A, "B_PS", [45], FB, 12)
    else:
        A(f"s_mov_b32 s45, {FS}")
        poll1(A, "B_PS", FO, "s45", t1)
    st(A, "bps")
    if "1" in X: A("s_branch B_X")
    for it in range(4):
        if it == 3: A("s_mov_b32 exec_hi, s47")
        A(f"buffer_load_dwordx4 {vr(EN+4*it,4)}, v{t3}, s[28:31], s44 offen sc1")
        A("s_add_u32 s44, s44, 0x40000")
    A("s_mov_b64 exec, -1")
    A(f"s_add_u32 s44, s44, {E2 - 0x100000:#x}")
    def trip_a(k):
        A(f"v_add_u32_sdwa v{t1}, v{EN+k}, v{LBV} dst_sel:DWORD dst_unused:UNUSED_PAD src0_sel:WORD_1 src1_sel:DWORD")
        A(f"ds_add_rtn_u32 v{PS+k}, v{t1}, v{TWO}")
    A("s_waitcnt vmcnt(0)")
    for it in range(4):
        A(f"v_mov_b32_dpp v{C+it}, v{EN+4*it} quad_perm:[0,0,0,0] row_mask:0xf bank_mask:0xf")
    for it in range(4):
        A(f"v_and_b32 v{C+it}, 0xffff, v{C+it}")
    for it in range(4):
        A(f"v_cmp_gt_u32 s[{52+2*it}:{53+2*it}], v{C+it}, v{C16}")
    A(f"v_max3_u32 v{t1}, v{C}, v{C+1}, v{C+2}")
    A(f"v_max_u32 v{t1}, v{t1}, v{C+3}")
    A(f"v_cmp_lt_u32 vcc, 32, v{t1}")
    A(f"v_mov_b32 v{t1}, 0x101")
    A("s_cbranch_vccnz G_SYNC")
    for it in range(4):
        A(f"s_and_b64 exec, s[{52+2*it}:{53+2*it}], -1")
        A(f"s_cbranch_scc0 G_O{it}")
        A(f"buffer_load_dwordx4 {vr(EN+16+4*it,4)}, v{t3}, s[28:31], s44 offen sc1")
        A(f"G_O{it}:")
        A("s_add_u32 s44, s44, 0x40000")
    A("s_mov_b64 exec, -1")
    if "2" in X:
        A("s_waitcnt vmcnt(0)"); st(A, "bl"); A("s_branch B_X")
    for k in range(16):
        trip_a(k)
    for k in range(16):
        if k % 4 == 0: A(f"s_waitcnt lgkmcnt(12)")
        A(f"ds_write_b16 v{PS+k}, v{EN+k}")
    A("s_waitcnt vmcnt(0)")
    for it in range(4):
        A(f"s_and_b64 exec, s[{52+2*it}:{53+2*it}], -1")
        A(f"s_cbranch_scc0 G_P{it}")
        for k in range(16+4*it, 20+4*it): trip_a(k)
        A(f"G_P{it}:")
    A("s_waitcnt lgkmcnt(0)")
    for it in range(4):
        A(f"s_and_b64 exec, s[{52+2*it}:{53+2*it}], -1")
        A(f"s_cbranch_scc0 G_Q{it}")
        for k in range(16+4*it, 20+4*it): A(f"ds_write_b16 v{PS+k}, v{EN+k}")
        A(f"G_Q{it}:")
    A("s_mov_b64 exec, -1")
    A(f"v_mov_b32 v{t1}, 1")
    A("G_SYNC:")
    A("s_waitcnt vmcnt(0)")
    lds_signal(A, 4, t1)
    lds_wait(A, "G_S1", 4, 4, t1, mask=0xff)
    st(A, "bl")
    A("s_cmp_gt_u32 s57, 0xff")
    A("s_cbranch_scc1 G_SLOW")
    A(f"ds_read_b32 v{t1}, v8")
    for i in range(10):
        A(f"ds_read_u16 v{PR+2*i}, v{LR2} offset:{256*i}")
    A(f"s_mul_i32 s43, s{SV}, 10")
    A("s_bfm_b64 s[52:53], 10, s43")
    A("s_waitcnt lgkmcnt(10)")
    A(f"v_sub_u32 v{t1}, v{t1}, v9")
    A(f"v_cmp_lt_u32 vcc, 0x100, v{t1}")
    A("s_cbranch_vccnz G_SLOW")
    def ld(i, it_off):
        A(f"buffer_load_dwordx4 {vr(BUF+4*i,4)}, {vr(PR+2*i,2)}, s[16:19], 0 idxen offen sc1")
        A(f"ds_read_u16 v{PR+2*i}, v{LR2} offset:{256*i+16*it_off}")
    def acc(p):
        A(f"v_smfmac_f32_16x16x64_{'bf16' if NH else 'f16'} {vr(AC+4*p,4)}, {vr(SA,4)}, {vr(BUF+8*p,8)}, v{SX}")
    A(f"s_setprio {GP}")
    for i in range(10):
        A(f"s_waitcnt vmcnt({DG-1}) lgkmcnt(9)")
        ld(i, 1)
    A("s_mov_b32 s56, 16" if "z" not in X else "s_movk_i32 s56, 0x200")
    A("G_LOOP:")
    A(f"v_cmp_lt_u32 vcc, s56, v{t1}")
    A(f"v_readfirstlane_b32 s57, v{EV}")
    A(f"ds_read_b32 v{EV}, v{MB} offset:8")
    A("s_add_u32 s56, s56, 16")
    A("s_and_b64 vcc, vcc, s[52:53]")
    A("s_cbranch_scc0 G_DRAIN")
    A(f"s_cmp_ge_u32 s57, s{TH}")
    A("s_cbranch_scc1 G_H")
    A("G_RET:")
    for p in range(5):
        A(f"s_waitcnt vmcnt({DG-2}) lgkmcnt(8)")
        acc(p)
        ld(2*p, 2); ld(2*p+1, 2)
    A(f"v_add_u32 v{LR2}, 16, v{LR2}")
    A("s_branch G_LOOP")
    A("G_DRAIN:")
    for p in range(5):
        A(f"s_waitcnt vmcnt({8-2*p})")
        acc(p)
    A("s_nop 7")
    for p in range(5):
        for r in range(4):
            x = AC+4*p+r
            A(f"v_add_f32_dpp v{AC+8*(p>>1)+r}, v{x}, v{x} row_ror:8 row_mask:0xf bank_mask:{'0xc' if p & 1 else '0x3'}")
    A("G_FIN:")
    for k in range(3):
        x = AC+8*k
        for r in range(4):
            A(f"v_mul_f32 v{x+r}, v{x+r}, v{DI+k}")
        A(f"v_cvt_pk_bf16_f32 v{x}, v{x}, v{x+1}")
        A(f"v_cvt_pk_bf16_f32 v{x+1}, v{x+2}, v{x+3}")
        if k == 2:
            A("s_mov_b32 exec_lo, 0x00ff00ff")
            A("s_mov_b32 exec_hi, 0x00ff00ff")
        A(f"ds_write_b64 v{AO}, {vr(x,2)} offset:{4*ASTR*k}")
    A("s_mov_b64 exec, -1")
    A("B_X:")

def gen_slow(A):
    A("G_SLOW:")
    A("s_waitcnt vmcnt(0) lgkmcnt(0)")
    lds_signal(A, 16, 6)
    lds_wait(A, "G_S2", 16, 4, t1)
    A(f"v_add_u32 v{t0}, {LL}, v3")
    for r in range(4):
        A(f"v_mov_b32 v{AC+r}, 0")
    for i in range(3):
        A(f"ds_write_b128 v{t0}, {vr(AC,4)} offset:{4096*i}")
    A("s_waitcnt lgkmcnt(0)")
    lds_signal(A, 16, 6)
    lds_wait(A, "G_S3", 16, 8, t1)
    srd(A, 48, 4, WS_G if NH else WS_H, N * 128)
    A(f"v_lshlrev_b32 v{t0}, 2, v0")
    A(f"v_lshlrev_b32 v{t1}, 1, v0")
    A(f"v_add_u32 v{t3}, {LL}, v{t0}")
    A(f"s_mul_i32 s42, s{SW}, 40")
    A("s_mov_b64 s[44:45], 0")
    for it in range(4):
        A(f"v_cmp_lt_u32 vcc, 1, v{C+it}")
        A(f"s_and_b32 vcc_lo, vcc_lo, {0x11111111 << it:#x}")
        A(f"s_and_b32 vcc_hi, vcc_hi, {0x11111111 << it:#x}")
        A("s_or_b64 s[44:45], s[44:45], vcc")
    A("G_SC:")
    A("s_cmp_eq_u64 s[44:45], 0")
    A("s_cbranch_scc1 G_SE")
    A("s_ff1_i32_b64 s43, s[44:45]")
    A("s_bitset0_b64 s[44:45], s43")
    A("s_and_b32 s47, s43, 3")
    A("s_lshr_b32 s43, s43, 2")
    A(f"s_lshl2_add_u32 s47, s{SV}, s47")
    A("s_lshl4_add_u32 s43, s47, s43")
    A(f"s_mul_i32 s43, s43, {CH*4}")
    A(f"s_add_u32 s47, s43, {CH*4}")
    A("G_SS:")
    A(f"buffer_load_dword v{AC}, v{t0}, s[20:23], s43 offen")
    A(f"buffer_load_dword v{AC+1}, v{t0}, s[24:27], s43 offen")
    A("s_waitcnt vmcnt(0)")
    A(f"v_subrev_u32 v{AC}, s42, v{AC}")
    A(f"v_cmp_gt_u32 s[52:53], 40, v{AC}")
    A("G_SI:")
    A("s_cmp_eq_u64 s[52:53], 0")
    A("s_cbranch_scc1 G_SN")
    A("s_ff1_i32_b64 s56, s[52:53]")
    A("s_bitset0_b64 s[52:53], s56")
    A(f"v_readlane_b32 s57, v{AC+1}, s56")
    A(f"v_readlane_b32 s58, v{AC}, s56")
    A("s_lshl_b32 s57, s57, 7")
    A("s_lshl_b32 s58, s58, 8")
    A(f"buffer_load_ushort v{AC+2}, v{t1}, s[48:51], s57 offen sc1")
    A(f"v_add_u32 v{AC+3}, s58, v{t3}")
    A("s_waitcnt vmcnt(0)")
    A(f"v_lshlrev_b32 v{AC+2}, 16, v{AC+2}" if NH else f"v_cvt_f32_f16 v{AC+2}, v{AC+2}")
    A(f"ds_add_f32 v{AC+3}, v{AC+2}")
    A("s_waitcnt lgkmcnt(0)")
    A("s_branch G_SI")
    A("G_SN:")
    A("s_add_u32 s43, s43, 256")
    A("s_cmp_lt_u32 s43, s47")
    A("s_cbranch_scc1 G_SS")
    A("s_branch G_SC")
    A("G_SE:")
    lds_signal(A, 16, 6)
    lds_wait(A, "G_S4", 16, 12, t1)
    A(f"s_mul_i32 s43, s{SV}, 2560")
    A(f"s_add_u32 s43, s43, {LL}")
    A(f"v_lshl_add_u32 v{t0}, v{t2}, 1, s43")
    for k in range(3):
        A(f"ds_read_b128 {vr(AC+8*k,4)}, v{t0} offset:{1024*k}")
    A("s_waitcnt lgkmcnt(0)")
    A("s_branch G_FIN")

def gen_exchange(A):
    st(A, "bg")
    A("s_load_dwordx2 s[6:7], s[0:1], 0")
    A("s_load_dwordx2 s[28:29], s[0:1], 72")
    if HF:
        A("s_waitcnt lgkmcnt(0)")
    else:
        A("s_load_dwordx2 s[48:49], s[0:1], 80")
        A("s_movk_i32 s50, 256")
        A("s_mov_b32 s51, 0x20000")
        A(f"s_or_b32 s42, s{SW}, s{SV}")
        A("s_waitcnt lgkmcnt(0)")
        A("s_cbranch_scc1 X_Z")
        A(f"v_mov_b32 v{T}, 0")
        A("s_mov_b64 exec, 1")
        A(f"buffer_store_dword v{T}, off, s[48:51], 0 sc1")
        A("s_mov_b64 exec, -1")
        A("X_Z:")
    final_setup_s(A)
    A.many(final_loads())
    A(f"s_mov_b32 s{MD}, 1")
    A("s_setprio 0")
    A("X_D:")
    A(f"s_cmp_lg_u32 s{TH}, 4")
    A("s_cbranch_scc1 X_1")
    lds_wait(A, "X_WE", 8, 4, T)
    A("s_branch X_H")
    A("X_1:")
    A(f"s_cmp_eq_u32 s{MD}, 2")
    A("s_cbranch_scc1 X_2")
    A(f"ds_read_b32 v{T}, v{MB} offset:8")
    A("s_waitcnt lgkmcnt(0)")
    A(f"v_readfirstlane_b32 s57, v{T}")
    A(f"s_cmp_ge_u32 s57, s{TH}")
    A("s_cbranch_scc1 X_H")
    A(f"s_mov_b32 s{MD}, 2")
    for o in range(1, 4):
        A(f"s_xor_b32 s{41+o}, s{SW}, {o}")
        A(f"s_lshl_b32 s{41+o}, s{41+o}, 14")
    A(f"s_lshl_b32 s45, s{SV}, 12")
    if SPL:
        for o in range(3): A(f"s_add_u32 s{48+o}, s{42+o}, s45")
        spoll(A, "X_QE", [48, 49, 50], 3068)
    else:
        A(f"v_xor_b32 v{T}, s{SW}, v0")
        A(f"v_lshlrev_b32 v{T}, 14, v{T}")
        A("s_mov_b64 exec, 14")
        poll1(A, "X_QE", T, "s45", T+1, 8, 3068)
    A("s_setprio 2")
    fetch(A, "X_PE", 3)
    for i in range(8):
        A(f"v_add_f32 v{T+POS[i]}, v{T+POS[i]}, v{EK+i}")
        A(f"v_add_f32 v{T+12+POS[i]}, v{T+12+POS[i]}, v{T+24+POS[i]}")
    for i in range(8):
        A(f"v_add_f32 v{ER+i}, v{T+POS[i]}, v{T+12+POS[i]}")
    put_le(A, T)
    A("s_setprio 0")
    st(A, "xe")
    A("X_2:")
    A(f"s_cmp_lg_u32 s{TH}, 8")
    A("s_cbranch_scc1 X_3")
    if WP: A(f"s_setprio {WP}")
    lds_wait(A, "X_WS", 8, 8, T)
    A("s_branch X_H")
    A("X_3:")
    A("s_setprio 2")
    A(f"s_xor_b32 s42, s{SW}, 1")
    A("s_lshl_b32 s42, s42, 14")
    A(f"s_add_u32 s42, s42, {WS_PS - WS_PE:#x}")
    st(A, "xs")
    if SPL:
        A(f"s_lshl_b32 s45, s{SV}, 12")
        A("s_add_u32 s48, s42, s45")
        spoll(A, "X_QP", [48], 3068)
    else:
        A("s_mov_b64 exec, 1")
        poll1(A, "X_QP", PO, "s42", T+1, 8, 3068)
    fetch(A, "X_PP", 1)
    st(A, "xp")
    A(f"ds_write_b128 v{RS}, {vr(T,4)}")
    A(f"ds_write_b128 v{RS}, {vr(T+4,4)} offset:1024")
    A(f"ds_write_b64 v{RS}, {vr(T+8,2)} offset:8192")

POS = [0, 1, 2, 4, 5, 6, 8, 9]
def fetch(A, name, n):
    A(f"s_mov_b32 s58, {LIMIT}")
    A(f"{name}:")
    for o in range(n):
        for j in range(3):
            A(f"buffer_load_dwordx4 {vr(T+12*o+4*j,4)}, v{PO}, s[8:11], s{42+o} offen offset:{1024*j} sc1")
    A("s_waitcnt vmcnt(0)")
    A(f"v_cmp_ne_u32 vcc, s{SN}, v{T+3}")
    for g in range(1, 3*n):
        A(f"v_cmp_ne_u32 s[56:57], s{SN}, v{T+4*g+3}")
        A("s_or_b64 vcc, vcc, s[56:57]")
    A("s_sub_u32 s58, s58, 1")
    A(f"s_cbranch_scc1 {name}_X")
    A(f"s_cbranch_vccnz {name}")
    A(f"{name}_X:")

def gen_handler(A, nm):
    A(f"{nm}_H:")
    A("s_setprio 2")
    for k in range(4):
        A(f"ds_read_b128 {vr(T+8*k,4)}, v{RS} offset:{8192*k}")
        A(f"ds_read_b128 {vr(T+8*k+4,4)}, v{RS} offset:{8192*k+1024}")
    lds_signal(A, 20, 6)
    A(f"s_sub_u32 s44, s{TH}, 4")
    A(f"s_lshl_b32 s42, s{SW}, 14")
    A(f"s_mul_i32 s43, s44, {(WS_PS - WS_PE)//4:#x}")
    A("s_add_u32 s42, s42, s43")
    A("s_waitcnt lgkmcnt(5)")
    for i in range(8):
        A(f"v_add_f32 v{T+i}, v{T+i}, v{T+8+i}")
    A("s_waitcnt lgkmcnt(1)")
    for i in range(8):
        A(f"v_add_f32 v{T+16+i}, v{T+16+i}, v{T+24+i}")
    for i in range(8):
        A(f"v_add_f32 v{PK+POS[i]}, v{T+i}, v{T+16+i}")
        if i in (2, 5, 7):
            A(f"buffer_store_dwordx4 {vr(PK+4*(i//3),4)}, v{PO}, s[8:11], s42 offen offset:{1024*(i//3)} sc1")
    A(f"s_cmp_lg_u32 s{TH}, 4")
    A(f"s_cbranch_scc1 {nm}_H1")
    for i in range(8):
        A(f"v_mov_b32 v{EK+i}, v{PK+POS[i]}")
    st(A, "wE")
    A(f"{nm}_H1:")
    A(f"s_add_u32 s{TH}, s{TH}, 4")
    A(f"s_setprio {0 if nm == 'X' else GP}")
    A("s_branch X_D" if nm == "X" else "s_branch G_RET")

ER = 40
def put_le(A, t, name="X_LE"):
    A("s_cmp_lg_u32 s3, 7")
    A(f"s_cbranch_scc1 {name}")
    A(f"v_lshl_add_u32 v{t}, v0, 2, v{MB}")
    A(f"ds_write_b32 v{t}, v{ER+7} offset:{LE-MISC}")
    A(f"{name}:")

def gen_helper(A):
    A("HELP:")
    A("s_load_dwordx2 s[8:9], s[0:1], 32")
    A("s_load_dwordx4 s[28:31], s[0:1], 56")
    A("s_load_dwordx2 s[16:17], s[0:1], 80")
    A("s_memrealtime s[44:45]")
    A("v_and_b32 v1, 31, v0")
    A("v_lshrrev_b32 v2, 5, v0")
    pi_perm(A, 3, 1, 4)
    A("s_lshr_b32 s36, s3, 2")
    A("s_bfe_u32 s37, s3, 0x10001")
    A("s_and_b32 s38, s3, 1")
    A("s_cmp_eq_u32 s36, 0")
    A("s_cselect_b64 vcc, -1, 0")
    A("s_movk_i32 s39, 8064")
    if not NH: A("s_cselect_b32 s39, 0x10000, s39")
    A("v_cndmask_b32 v4, v1, v3, vcc")
    A("v_lshlrev_b32 v4, 7, v4")
    A("v_lshl_add_u32 v4, v2, 4, v4")
    A("v_lshlrev_b32 v5, 4, v2")
    A("s_lshl_b32 s40, s37, 12")
    A("v_lshlrev_b32 v6, 10, v2")
    A("v_lshl_add_u32 v6, v3, 1, v6")
    A("s_lshl_b32 s41, s38, 6")
    A("s_add_u32 s42, s41, 0x1000")
    A("s_waitcnt lgkmcnt(0)")
    A("s_movk_i32 s18, 256")
    A("s_mov_b32 s19, 0x20000")
    A("s_mul_i32 s45, s45, 0x9e3779b1")
    A("s_xor_b32 s44, s44, s45")
    A(f"s_or_b32 s{SN}, s44, 1")
    A("s_cmp_lg_u32 s3, 0")
    A("s_cbranch_scc1 H_N")
    A(f"v_mov_b32 v7, s{SN}")
    A("s_mov_b64 exec, 1")
    A("buffer_store_dword v7, off, s[16:19], 0 sc1")
    A(f"ds_write_b32 v{MB}, v7")
    A("s_mov_b64 exec, -1")
    A("H_N:")
    flag_srd(A)
    A("s_cmp_eq_u32 s36, 0")
    A("s_cselect_b32 s48, s8, s28")
    A("s_cselect_b32 s49, s9, s29")
    A("s_mov_b32 s50, 8192")
    A("s_mov_b32 s51, 0x20000")
    srd(A, 20, 30, 0, 8192)
    srd(A, 24, 4, WS_W, 16384)
    AF, A2, BF, D = 16, 32, 48, 64
    for j in range(4):
        A(f"buffer_load_dwordx4 {vr(AF+4*j,4)}, v4, s[48:51], s40 offen offset:{32*j}")
        A(f"buffer_load_dwordx4 {vr(A2+4*j,4)}, v5, s[48:51], s39 offen offset:{32*j}")
    for hi in range(2):
        for j in range(4):
            for k in range(4):
                jj = 2*k + hi
                A(f"buffer_load_ushort v{BF+4*j+k+32*hi}, v6, s[20:23], {'s41' if j < 2 else 's42'} offen offset:{(16*(j&1)+jj)*128}")
    A("s_waitcnt vmcnt(0)")
    st(A, "hn")
    for r in range(16):
        A(f"v_lshl_or_b32 v{BF+r}, v{BF+32+r}, 16, v{BF+r}")
    for r in range(16):
        A(f"v_xor_b32 v{A2+r}, 0x80008000, v{A2+r}")
    A("s_nop 1")
    for j in range(4):
        A(f"v_mfma_f32_32x32x16_bf16 {vr(D,16)}, {vr(AF+4*j,4)}, {vr(BF+4*j,4)}, {'0' if j == 0 else vr(D,16)}")
    for j in range(4):
        A(f"v_mfma_f32_32x32x16_bf16 {vr(D,16)}, {vr(A2+4*j,4)}, {vr(BF+4*j,4)}, {vr(D,16)}")
    A("s_lshl_b32 s43, s36, 13")
    A("s_lshl_b32 s44, s38, 12")
    A("s_add_u32 s43, s43, s44")
    A("s_lshl_b32 s44, s37, 11")
    A("s_add_u32 s43, s43, s44")
    A("s_nop 7")
    A("s_nop 7")
    for r in range(8):
        A(f"v_cvt_pk_bf16_f32 v{AF+r}, v{D+2*r}, v{D+2*r+1}")
    A(f"buffer_store_dwordx4 {vr(AF,4)}, v{DV}, s[24:27], s43 offen sc1")
    A(f"buffer_store_dwordx4 {vr(AF+4,4)}, v{DV}, s[24:27], s43 offen offset:1024 sc1")
    A("s_waitcnt vmcnt(0)")
    st(A, "hw")
    A("s_waitcnt lgkmcnt(0)")
    A("s_barrier")
    if HF:
        A("s_cmp_ge_u32 s3, 4")
        A("s_cbranch_scc1 H_B")
        A(f"ds_read_b32 v16, v{MB}")
        A("v_lshlrev_b32 v17, 7, v0")
        A("s_lshl_b32 s42, s3, 13")
        A(f"s_add_u32 s42, s42, {FS}")
        A("s_waitcnt lgkmcnt(0)")
        A(f"v_readfirstlane_b32 s{SN}, v16")
        A("s_cmp_eq_u32 s3, 3")
        A("s_cselect_b32 exec_hi, 0x0fffffff, -1")
        poll1(A, "H_PS", 17, "s42", 18)
        A("H_B:")
        A("s_barrier")
        A("s_cmp_lg_u32 s3, 0")
        A("s_cbranch_scc1 FIN_X")
        A(f"s_mov_b32 s42, {FB}")
        A("s_mov_b32 exec_hi, 0")
        A("buffer_store_dword v16, v17, s[12:15], s42 offen sc1")
        A("v_mov_b32 v18, 0")
        A("s_mov_b64 exec, 1")
        A("buffer_store_dword v18, off, s[16:19], 0 sc1")
        A("s_mov_b64 exec, -1")
        A("s_branch FIN_X")
        return
    A("s_cmp_lg_u32 s3, 0")
    A("s_cbranch_scc1 FIN_X")
    A(f"s_mov_b32 s43, {FS+252*128}")
    flag_store(A, "s43", 17, 4)
    A("s_branch FIN_X")
```

```python
from common import Asm, vr, sr, srd, f2u, interleave, kernel_begin, descriptor, stamp, stamp_init, stamp_dump, PROF, LOG2E, N, E
import os
X = os.environ.get("X", "")
M16 = int(os.environ.get("M16", "0"))
NH = int(os.environ.get("NH", "1"))
DM = 242
WS_G = 0x000000
WS_H = 0x140000
WS_W = 0x280000
WS_F = 0x290000
FG, FS, FB = 0, 0x8000, 0x10000
WS_PE = 0x300000
WS_PS = 0x700000
WS_E = 0xB00000
E2 = 0x400000
NB = 250
CH = 2560
RING = 20480
STG = 4 * RING
CELL = 144
QX = STG + 256 * CELL
AL = QX + 12288
ASTR = 144
MISC = AL + 40 * ASTR
LE = MISC + 64
DUM = LE + 256
LST = DUM + 512
LL = LST + 512
MTL = LL + 12288
LDS = 163840
assert LL + 39 * 256 + 2 * 250 * 31 <= LDS, LL
HELPER = 231
LIMIT = int(os.environ.get("LIMIT", "40000"))
SW, SI, SN, SV, SHF, SP = 33, 34, 35, 39, 41, 46
KA = 2; VA = 6; IDX = 10; DV = 11
S0 = 16; KF = 64; VF = 80; O = 96; Q = 192
MB = 15

_ST = {}
for _i, _g in enumerate(os.environ.get("ST", "lnx:pg:bpub:hn,lnq:n3:bsort:hw,a3:bps,a4:bl,a5:bg,fs").split(",")):
    for _n in _g.split(":"): _ST[_n] = _i + 1
def st(A, name):
    if name in _ST: stamp(A, _ST[name])

def flag_srd(A):
    srd(A, 12, 4, WS_F, 0x11000)

def poll1(A, name, voff, soff, t, sd=12, off=0):
    A(f"s_mov_b32 s58, {LIMIT}")
    A(f"{name}:")
    A(f"buffer_load_dword v{t}, v{voff}, s[{sd}:{sd+3}], {soff} offen offset:{off} sc1")
    A("s_waitcnt vmcnt(0)")
    A(f"v_cmpx_ne_u32 vcc, s{SN}, v{t}")
    A("s_sub_u32 s58, s58, 1")
    A(f"s_cbranch_scc1 {name}_X")
    A(f"s_cbranch_execnz {name}")
    A(f"{name}_X:")
    A("s_mov_b64 exec, -1")

def spoll(A, name, soffs, off, sd=8):
    A(f"s_mov_b32 s58, {LIMIT}")
    A(f"{name}:")
    for i, so in enumerate(soffs):
        A(f"s_buffer_load_dword s{(52, 53, 59)[i]}, s[{sd}:{sd+3}], s{so} offset:{off} glc")
    A("s_sub_u32 s58, s58, 1")
    A(f"s_cbranch_scc1 {name}_X")
    A("s_waitcnt lgkmcnt(0)")
    for i in range(len(soffs)):
        A(f"s_cmp_lg_u32 s{(52, 53, 59)[i]}, s{SN}")
        A(f"s_cbranch_scc1 {name}")
    A(f"{name}_X:")
    A("s_waitcnt lgkmcnt(0)")

def lds_wait(A, name, off, target, t, mask=None):
    A(f"s_mov_b32 s58, {LIMIT*8}")
    A(f"{name}:")
    if "s" in X and name.startswith("X_"): A("s_sleep 16")
    A(f"ds_read_b32 v{t}, v{MB} offset:{off}")
    A("s_waitcnt lgkmcnt(0)")
    A(f"v_readfirstlane_b32 s57, v{t}")
    A("s_sub_u32 s58, s58, 1")
    A(f"s_cbranch_scc1 {name}_X")
    if mask:
        A(f"s_and_b32 s59, s57, {mask:#x}")
    A(f"s_cmp_lt_u32 s{59 if mask else 57}, {target}")
    A(f"s_cbranch_scc1 {name}")
    A(f"{name}_X:")

def lds_signal(A, off, val):
    A("s_mov_b64 exec, 1")
    A(f"ds_add_u32 v{MB}, v{val} offset:{off}")
    A("s_mov_b64 exec, -1")

def flag_store(A, soff, t, n=1):
    A(f"v_mov_b32 v{t}, s{SN}")
    A("s_mov_b64 exec, 1")
    for i in range(n):
        A(f"buffer_store_dword v{t}, off, s[12:15], {soff} offset:{128*i} sc1")
    A("s_mov_b64 exec, -1")

def pi_perm(A, d, n, t):
    A(f"v_and_b32 v{d}, 0x13, v{n}")
    A(f"v_and_b32 v{t}, 4, v{n}")
    A(f"v_lshl_or_b32 v{d}, v{t}, 1, v{d}")
    A(f"v_and_b32 v{t}, 8, v{n}")
    A(f"v_lshrrev_b32 v{t}, 1, v{t}")
    A(f"v_or_b32 v{d}, v{d}, v{t}")

def frag_addrs(A, lane, sbase, t0, t1):
    A(f"v_and_b32 v{t0}, 2, v{lane}")
    A(f"v_lshlrev_b32 v{t0}, 1, v{t0}")
    A(f"v_bfe_u32 v{t1}, v{lane}, 2, 2")
    if M16: A(f"v_and_b32 v{t1}, 2, v{t1}")
    A(f"v_or_b32 v{t0}, v{t0}, v{t1}")
    A(f"v_lshrrev_b32 v{t1}, 5, v{lane}")
    A(f"v_xor_b32 v{t0}, v{t0}, v{t1}")
    A(f"v_and_b32 v{t1}, 31, v{lane}")
    A(f"v_lshlrev_b32 v{t1}, 7, v{t1}")
    A(f"v_lshl_add_u32 v{t0}, v{t0}, 4, v{t1}")
    A(f"v_add_u32 v{KA}, s{sbase}, v{t0}")
    for j in range(1, 4):
        A(f"v_xor_b32 v{KA+j}, {32*j}, v{KA}")
    A(f"v_lshrrev_b32 v{t0}, 5, v{lane}")
    A(f"v_bfe_u32 v{t1}, v{lane}, 2, 2")
    A(f"v_lshl_add_u32 v{VA}, v{t0}, 3, v{t1}")
    A(f"v_lshlrev_b32 v{VA}, 7, v{VA}")
    A(f"v_bfe_u32 v{t1}, v{lane}, 4, 1")
    A(f"v_xor_b32 v{t0}, v{t0}, v{t1}")
    A(f"v_lshl_add_u32 v{VA}, v{t0}, 5, v{VA}")
    A(f"v_bfe_u32 v{t0}, v{lane}, 3, 1")
    A(f"v_lshl_add_u32 v{VA}, v{t0}, 6, v{VA}")
    A(f"v_and_b32 v{t0}, 3, v{lane}")
    A(f"v_lshl_add_u32 v{VA}, v{t0}, 3, v{VA}")
    A(f"v_add_u32 v{VA}, s{sbase}, v{VA}")
    A(f"v_xor_b32 v{VA+1}, {0 if M16 else 16}, v{VA}")
    A(f"v_add_u32 v{VA+1}, 0x200, v{VA+1}")
    A(f"v_xor_b32 v{VA+2}, 64, v{VA}")
    A(f"v_xor_b32 v{VA+3}, 64, v{VA+1}")
    A(f"v_mov_b32 v{IDX}, 0xdddddddd")

def dma_ld(i):
    return f"buffer_load_dwordx4 v{DM+(i&1) if NH else DV}, s[8:11], s37 offen offset:{1024*i}{'' if 'n' in X else ' sc1'} lds"
def dma_addr(A, t):
    if not NH: return
    A(f"v_and_b32 v{t}, 16, v0")
    A(f"v_lshlrev_b32 v{t}, 2, v{t}")
    A(f"v_xor_b32 v{DM}, v{t}, v{DV}")
    if not M16:
        A(f"v_and_b32 v{t}, 32, v0")
        A(f"v_lshrrev_b32 v{t}, 1, v{t}")
        A(f"v_xor_b32 v{DM}, v{t}, v{DM}")
    A(f"v_xor_b32 v{DM+1}, 32, v{DM}")
def kread(j, slot):
    return f"ds_read_b128 {vr(KF+4*j,4)}, v{KA+j} offset:{slot*4096}"
def vread(ks, dh, slot):
    d = VF + 4*(2*ks + dh)
    return [f"ds_read_b64_tr_b16 {vr(d+2*i,2)}, v{VA+2*dh+i} offset:{slot*4096+2048*ks}" for i in range(2)]
def qk(sb, j, t):
    s = S0 + 16*sb
    c = "0" if j == 0 else vr(s, 16)
    return f"v_mfma_f32_32x32x16_bf16 {vr(s,16)}, {vr(KF+4*j,4)}, {vr(Q+16*t+4*j,4)}, {c}"
def pv(sb, t, ks, dh):
    o = O + 32*t + 16*dh
    return f"v_smfmac_f32_32x32x32_bf16 {vr(o,16)}, {vr(VF+4*(2*ks+dh),4)}, {vr(S0+16*sb+8*ks,8)}, v{IDX}"

D2 = KA + 2
def frag16(A, lane, sbase, t0, t1):
    A(f"v_lshrrev_b32 v{t0}, 4, v{lane}")
    A(f"v_and_b32 v{t1}, 15, v{lane}")
    A(f"v_lshlrev_b32 v{D2}, 4, v{t1}")
    A(f"v_lshl_add_u32 v{D2}, v{t0}, 9, v{D2}")
    A(f"v_lshlrev_b32 v{KA}, 7, v{t1}")
    A(f"v_lshl_add_u32 v{KA}, v{t0}, 4, v{KA}")
    A(f"v_and_b32 v{t1}, 2, v{lane}")
    A(f"v_lshlrev_b32 v{t1}, 5, v{t1}")
    A(f"v_xor_b32 v{KA}, v{KA}, v{t1}")
    A(f"v_and_b32 v{t1}, 8, v{lane}")
    A(f"v_lshlrev_b32 v{KA+1}, 2, v{t1}")
    A(f"v_xor_b32 v{KA}, v{KA}, v{KA+1}")
    A(f"v_add_u32 v{KA}, s{sbase}, v{KA}")
    A(f"v_xor_b32 v{KA+1}, 64, v{KA}")
    A(f"v_lshlrev_b32 v{VA}, 3, v{t1}")
    A(f"v_lshl_add_u32 v{VA}, v{t0}, 10, v{VA}")
    A(f"v_and_b32 v{t0}, 1, v{t0}")
    A(f"v_lshl_add_u32 v{VA}, v{t0}, 5, v{VA}")
    A(f"v_bfe_u32 v{t0}, v{lane}, 2, 2")
    A(f"v_lshl_add_u32 v{VA}, v{t0}, 7, v{VA}")
    A(f"v_and_b32 v{t0}, 3, v{lane}")
    A(f"v_lshl_add_u32 v{VA}, v{t0}, 3, v{VA}")
    A(f"v_add_u32 v{VA}, s{sbase}, v{VA}")
    for db in range(1, 4):
        A(f"v_xor_b32 v{VA+db}, {32*db}, v{VA}")
    A(f"v_mov_b32 v{IDX}, 0xdddddddd")
def kread16(j, slot):
    return f"ds_read_b128 {vr(KF+4*j,4)}, v{KA+(j>>1)} offset:{slot*4096+2048*(j&1)}"
def vread16(slot):
    return [f"ds_read_b64_tr_b16 {vr(VF+4*db+2*i,2)}, v{VA+db} offset:{slot*4096+512*i}" for db in range(4) for i in range(2)]
def qk16(sb, t):
    L = []
    for j in range(4):
        for qh in range(2):
            s = S0 + 16*sb + 8*qh + 4*(j & 1)
            L.append(f"v_mfma_f32_16x16x32_bf16 {vr(s,4)}, {vr(KF+4*j,4)}, {vr(Q+16*t+8*qh+4*(j>>1),4)}, {'0' if j < 2 else vr(s,4)}")
    return L
def pv16(sb, t, qh, db):
    return f"v_smfmac_f32_16x16x64_bf16 {vr(O+32*t+8*db+4*qh,4)}, {vr(VF+4*db,4)}, {vr(S0+16*sb+8*qh,8)}, v{IDX}"
def unit16(sp, tp, sn, tn, sc, tc):
    return [pv16(sp, tp, 0, 2), pv16(sp, tp, 0, 3)] + [pv16(sp, tp, 1, d) for d in range(4)] + \
           (qk16(sn, tn) if tn is not None else [None]*8) + [pv16(sc, tc, 0, 0), pv16(sc, tc, 0, 1)]
```

```python
from fc import *
WF = Q + 16
XF = S0 + 16
ONE = 240
XO, WO, RA = 12, 13, 14

def xhalf_sum(A, x, t0, t1):
    A(f"v_mov_b32 v{t0}, v{x}")
    A(f"v_mov_b32 v{t1}, v{x}")
    A("s_nop 1")
    A(f"v_permlane32_swap_b32 v{t0}, v{t1}")
    A("s_nop 1")
    A(f"v_add_f32 v{x}, v{t0}, v{t1}")
def bfround(A, x):
    A(f"v_cvt_pk_bf16_f32 v{x}, v{x}, v{x}")
    A(f"v_lshlrev_b32 v{x}, 16, v{x}")

P8 = int(os.environ.get("P8", "1"))
E4 = int(os.environ.get("E4", "0"))
WL = int(os.environ.get("WL", "0"))
PF = int(os.environ.get("PF", "0"))
N0 = int(os.environ.get("N0", "2"))
WD = int(os.environ.get("WD", "1"))
LX = (200, 140)
def ln8_load(A):
    A(f"s_mul_i32 s42, s{SW}, {40*128}")
    A(f"s_lshl_b32 s43, s{SV}, 8")
    A("s_lshl2_add_u32 s44, s43, s42")
    A("s_add_u32 s43, s43, s42")
    A("s_add_u32 s43, s43, 0x1000")
    A(f"v_add_u32 v{LX[0]+12}, s44, v{DV}")
    A(f"v_add_u32 v{LX[1]+12}, s43, v{DV}")
    A(f"s_mov_b32 s18, {N*128}")
    A("s_mov_b32 s19, 0x20000")
    A("s_waitcnt lgkmcnt(0)")
    A(f"buffer_load_dwordx4 {vr(LX[0],4)}, v{LX[0]+12}, s[16:19], 0 offen")
    A("s_mov_b64 exec, 0xffff")
    A(f"buffer_load_dwordx4 {vr(LX[1],4)}, v{LX[1]+12}, s[16:19], 0 offen")
    A("s_mov_b64 exec, -1")
def ln8(A, sd):
    def one(L):
        A = Asm(); F = L + 4; T0 = L + 14
        p0, p1 = vr(T0, 2), vr(T0+2, 2)
        def red():
            A(f"v_pk_add_f32 {p0}, {p0}, {p1}")
            A(f"v_add_f32 v{T0}, v{T0}, v{T0+1}")
            for m in ("quad_perm:[1,0,3,2]", "quad_perm:[2,3,0,1]", "row_half_mirror"):
                A("s_nop 0")
                A(f"v_add_f32_dpp v{T0}, v{T0}, v{T0} {m} row_mask:0xf bank_mask:0xf")
        for i in range(4):
            A(f"v_lshlrev_b32 v{F+2*i}, 16, v{L+i}")
            A(f"v_and_b32 v{F+2*i+1}, 0xffff0000, v{L+i}")
        A(f"v_pk_add_f32 {p0}, {vr(F,2)}, {vr(F+2,2)}")
        A(f"v_pk_add_f32 {p1}, {vr(F+4,2)}, {vr(F+6,2)}")
        red()
        A(f"v_mul_f32 v{T0}, {f2u(-1.0/64):#x}, v{T0}")
        for i in range(4):
            A(f"v_pk_add_f32 {vr(F+2*i,2)}, {vr(F+2*i,2)}, {p0} op_sel_hi:[1,0]")
        A(f"v_pk_mul_f32 {p0}, {vr(F,2)}, {vr(F,2)}")
        A(f"v_pk_mul_f32 {p1}, {vr(F+2,2)}, {vr(F+2,2)}")
        A(f"v_pk_fma_f32 {p0}, {vr(F+4,2)}, {vr(F+4,2)}, {p0}")
        A(f"v_pk_fma_f32 {p1}, {vr(F+6,2)}, {vr(F+6,2)}, {p1}")
        red()
        A(f"v_mul_f32 v{T0}, {f2u(1.0/64):#x}, v{T0}")
        bfround(A, T0)
        A(f"v_add_f32 v{T0}, {f2u(1e-5):#x}, v{T0}")
        bfround(A, T0)
        A(f"v_sqrt_f32 v{T0}, v{T0}")
        A("s_nop 0")
        bfround(A, T0)
        A(f"v_rcp_f32 v{T0}, v{T0}")
        A("s_nop 0")
        for i in range(4):
            A(f"v_pk_mul_f32 {vr(F+2*i,2)}, {vr(F+2*i,2)}, {p0} op_sel_hi:[1,0]")
        A(f"v_cndmask_b32 v{F+7}, v{F+7}, 1.0, vcc")
        for i in range(4):
            A(f"v_cvt_pk_bf16_f32 v{L+i}, v{F+2*i}, v{F+2*i+1}")
        return [x.strip() for x in A.L]
    for x, y in zip(one(LX[0]), one(LX[1])):
        A(x)
        if not x.startswith("s_nop"): A(y)
    A(f"buffer_store_dwordx4 {vr(LX[0],4)}, v{LX[0]+12}, s[{sd}:{sd+3}], 0 offen sc1")
    A("s_mov_b64 exec, 0xffff")
    A(f"buffer_store_dwordx4 {vr(LX[1],4)}, v{LX[1]+12}, s[{sd}:{sd+3}], 0 offen sc1")
    A("s_mov_b64 exec, -1")

def gen_ln_q(A):
    A("s_load_dwordx2 s[16:17], s[0:1], 0")
    A("v_and_b32 v3, 31, v0")
    A("v_lshrrev_b32 v4, 5, v0")
    A(f"s_lshr_b32 s42, s3, 1")
    A(f"s_xor_b32 s42, s{SW}, s42")
    A("s_mul_i32 s42, s42, 40")
    A(f"s_and_b32 s43, s{SW}, -4")
    A("s_mul_i32 s43, s43, 40")
    A("s_add_u32 s43, s43, 32")
    A("v_lshrrev_b32 v7, 3, v3")
    A("v_and_b32 v8, 7, v3")
    A("v_mad_u32_u24 v8, v7, 40, v8")
    A("s_cmp_eq_u32 s3, 1")
    A("s_cselect_b32 s42, s43, s42")
    A("s_cselect_b64 vcc, -1, 0")
    A("v_cndmask_b32 v8, v3, v8, vcc")
    A("v_add_u32 v8, s42, v8")
    A("v_lshlrev_b32 v5, 7, v8")
    A("v_lshl_add_u32 v5, v4, 4, v5")
    A(f"s_mov_b32 s18, {N*128}")
    A("s_mov_b32 s19, 0x20000")
    Xr = 208; F = 96; HB = 192; MT = 32; QT = 64
    A("s_waitcnt lgkmcnt(0)")
    for j in range(4):
        A(f"buffer_load_dwordx4 {vr(Xr+4*j,4)}, v5, s[16:19], 0 offen offset:{32*j}")
    st(A, "lni")
    A("v_cmp_eq_u32 s[30:31], 1, v4")
    A("s_mov_b32 s32, 0xffff0000")
    A(f"s_lshl_b32 s42, s3, 12")
    A(f"s_add_u32 s42, s42, {QX}")
    A(f"v_add_u32 v245, s42, v{DV}")
    A(f"v_add_u32 v244, {MTL}, v{DV}")
    attn_setup(A)
    for r in range(O + 32, O + 96, 2):
        A(f"v_mov_b64 {vr(r,2)}, 0")
    A("s_barrier")
    A("s_waitcnt vmcnt(0)")
    st(A, "lnx")
    T0 = 228
    for i in range(16):
        A(f"v_lshlrev_b32 v{F+2*i}, 16, v{Xr+i}")
        A(f"v_and_b32 v{F+2*i+1}, s32, v{Xr+i}")
    p0, p1 = vr(T0, 2), vr(T0+2, 2)
    A(f"v_pk_add_f32 {p0}, {vr(F,2)}, {vr(F+2,2)}")
    A(f"v_pk_add_f32 {p1}, {vr(F+4,2)}, {vr(F+6,2)}")
    for i in range(4, 16, 2):
        A(f"v_pk_add_f32 {p0}, {p0}, {vr(F+2*i,2)}")
        A(f"v_pk_add_f32 {p1}, {p1}, {vr(F+2*i+2,2)}")
    A(f"v_pk_add_f32 {p0}, {p0}, {p1}")
    A(f"v_add_f32 v{T0}, v{T0}, v{T0+1}")
    xhalf_sum(A, T0, T0+2, T0+3)
    A(f"v_mul_f32 v{T0}, {f2u(-1.0/64):#x}, v{T0}")
    A(f"v_mov_b32 v{T0+1}, v{T0}")
    for i in range(16):
        A(f"v_pk_add_f32 {vr(F+2*i,2)}, {vr(F+2*i,2)}, {p0}")
    def sumsq(B):
        A(f"v_pk_mul_f32 {p0}, {vr(B,2)}, {vr(B,2)}")
        A(f"v_pk_mul_f32 {p1}, {vr(B+2,2)}, {vr(B+2,2)}")
        for i in range(2, 16, 2):
            A(f"v_pk_fma_f32 {p0}, {vr(B+2*i,2)}, {vr(B+2*i,2)}, {p0}")
            A(f"v_pk_fma_f32 {p1}, {vr(B+2*i+2,2)}, {vr(B+2*i+2,2)}, {p1}")
        A(f"v_pk_add_f32 {p0}, {p0}, {p1}")
        A(f"v_add_f32 v{T0}, v{T0}, v{T0+1}")
        xhalf_sum(A, T0, T0+2, T0+3)
    sumsq(F)
    A(f"v_mul_f32 v{T0}, {f2u(1.0/64):#x}, v{T0}")
    bfround(A, T0)
    A(f"v_add_f32 v{T0}, {f2u(1e-5):#x}, v{T0}")
    bfround(A, T0)
    A(f"v_sqrt_f32 v{T0}, v{T0}")
    A("s_nop 0")
    bfround(A, T0)
    A(f"v_rcp_f32 v{T0}, v{T0}")
    A("s_nop 0")
    A(f"v_mov_b32 v{T0+1}, v{T0}")
    for i in range(16):
        A(f"v_pk_mul_f32 {vr(F+2*i,2)}, {vr(F+2*i,2)}, {p0}")
    for i in range(16):
        A(f"v_cvt_pk_bf16_f32 v{HB+i}, v{F+2*i}, v{F+2*i+1}")
    for r in range(O, O + 32, 2):
        A(f"v_mov_b64 {vr(r,2)}, 0")
    st(A, "lnv")
    if WL: A("s_barrier")
    lds_wait(A, "L_WM", 44, 1, T0)
    for q in range(8):
        A(f"ds_read_b128 {vr(MT+4*q,4)}, v244 offset:{1024*q}")
    A("s_waitcnt lgkmcnt(0)")
    st(A, "lnw")
    for b in range(2):
        for j in range(4):
            c = "0" if j == 0 else vr(QT+16*b, 16)
            A(f"v_mfma_f32_32x32x16_bf16 {vr(QT+16*b,16)}, {vr(MT+16*b+4*j,4)}, {vr(HB+4*j,4)}, {c}")
    A("s_nop 3")
    A("s_nop 7")
    sumsq(QT)
    A(f"v_sqrt_f32 v{T0}, v{T0}")
    A(f"v_mov_b32 v{T0+2}, v{QT+31}")
    A(f"v_mov_b32 v{T0+3}, v{QT+31}")
    A(f"s_mov_b32 s42, {f2u(LOG2E/8):#x}")
    A(f"s_mov_b32 s43, {f2u(LOG2E/8):#x}")
    A(f"v_permlane32_swap_b32 v{T0+2}, v{T0+3}")
    A(f"v_mul_f32 v{T0}, {f2u(-LOG2E):#x}, v{T0}")
    A(f"v_add_f32 v{T0}, {f2u(64.0):#x}, v{T0}")
    A(f"v_mul_f32 v{T0+2}, {f2u(-LOG2E/8):#x}, v{T0+3}")
    A(f"v_mov_b32 v{T0+3}, v{T0+2}")
    for i in range(16):
        A(f"v_pk_fma_f32 {vr(QT+2*i,2)}, {vr(QT+2*i,2)}, s[42:43], {p1}")
    A(f"v_cndmask_b32 v{QT+31}, v{QT+31}, v{T0}, s[30:31]")
    for i in range(16):
        A(f"v_cvt_pk_bf16_f32 v{Xr+i}, v{QT+2*i}, v{QT+2*i+1}")
    for j in range(4):
        A(f"ds_write_b128 v245, {vr(Xr+4*j,4)} offset:{1024*j}")
    lds_signal(A, 24, ONE)
    st(A, "lnc")
    if not NH:
        A("s_waitcnt vmcnt(0)")
        lds_signal(A, 36, ONE)
    st(A, "lnq")

def gen_w3(A):
    A("s_load_dwordx4 s[28:31], s[0:1], 40")
    A("v_and_b32 v3, 31, v0")
    A("v_lshrrev_b32 v4, 5, v0")
    pi_perm(A, 6, 3, 7)
    A("v_lshlrev_b32 v6, 7, v6")
    A("v_lshl_add_u32 v6, v4, 4, v6")
    A(f"v_add_u32 v244, {MTL}, v{DV}")
    A("s_waitcnt lgkmcnt(0)")
    if PF:
        A("s_bfe_u32 s42, s2, 0x50003")
        A("s_lshl_b32 s42, s42, 8")
        for i in range(2):
            A(f"s_load_dword s{56+i}, s[28:29], s42 offset:{128*i}")
            A(f"s_load_dword s{58+i}, s[30:31], s42 offset:{128*i}")
    A("s_mov_b64 s[64:65], s[28:29]" if not PROF else "s_mov_b64 s[80:81], s[28:29]")
    A("v_mov_b32 v245, v6")
    attn_setup(A)
    for r in range(O, O + 32, 2):
        A(f"v_mov_b64 {vr(r,2)}, 0")
    WS0 = 80 if PROF else 64
    A(f"s_movk_i32 s{WS0+2}, 0x2000")
    A(f"s_mov_b32 s{WS0+3}, 0x20000")
    srd(A, 56, 30, 0, 8192)
    A("s_movk_i32 s43, 0x1000")
    A("s_barrier")
    if WL: A("s_barrier")
    WQ = 32; WK = 64; M = 128; MT = 192
    if WD:
        A("v_lshrrev_b32 v16, 3, v0")
        A("v_lshlrev_b32 v16, 4, v16")
        A(f"v_xor_b32 v16, v16, v{DV}")
        for m, sd in enumerate((WS0, 56)):
            for a in range(2):
                A(f"s_mov_b32 m0, s{48+2*m+a}")
                A("s_nop 0")
                for i in range(4):
                    A(f"buffer_load_dwordx4 v16, s[{sd}:{sd+3}], {'0' if a == 0 else 's43'} offen offset:{1024*i} lds")
        A("v_bfe_u32 v16, v245, 7, 3")
        A("v_lshlrev_b32 v16, 4, v16")
        A("v_xor_b32 v16, v16, v245")
        A("v_add_u32 v16, s36, v16")
        for j in range(1, 4): A(f"v_xor_b32 v{16+j}, {32*j}, v16")
        A("s_waitcnt vmcnt(0)")
        for j in range(4):
            for m in range(4):
                A(f"ds_read_b128 {vr(WQ+16*m+4*j,4)}, v{16+j} offset:{4096*m}")
        A("s_waitcnt lgkmcnt(0)")
    else:
        for a in range(2):
            so = "0" if a == 0 else "s43"
            for j in range(4):
                A(f"buffer_load_dwordx4 {vr(WQ+16*a+4*j,4)}, v245, s[{WS0}:{WS0+3}], {so} offen offset:{32*j}")
            for j in range(4):
                A(f"buffer_load_dwordx4 {vr(WK+16*a+4*j,4)}, v245, s[56:59], {so} offen offset:{32*j}")
        A("s_waitcnt vmcnt(0)")
    st(A, "x3")
    for j in range(4):
        for a in range(2):
            for b in range(2):
                d = M + 32*b + 16*a
                c = "0" if j == 0 else vr(d, 16)
                A(f"v_mfma_f32_32x32x16_bf16 {vr(d,16)}, {vr(WQ+16*a+4*j,4)}, {vr(WK+16*b+4*j,4)}, {c}")
    A("s_nop 7")
    A("s_nop 3")
    for a in range(2):
        for b in range(2):
            for j in range(2*a, 2*a+2):
                s = M + 32*b + 16*a + 8*(j & 1)
                for k in range(4):
                    A(f"v_cvt_pk_bf16_f32 v{MT+16*b+4*j+k}, v{s+2*k}, v{s+2*k+1}")
                A(f"ds_write_b128 v244, {vr(MT+16*b+4*j,4)} offset:{1024*(4*b+j)}")
    lds_signal(A, 44, ONE)
    st(A, "m3")
    for r in range(O + 32, O + 96, 2):
        A(f"v_mov_b64 {vr(r,2)}, 0")

DS = int(os.environ.get("DS", "0"))
def emit_step(A, M, pre, post, sb):
    for g in range(8):
        A.many(pre[g])
        if M[g]: A(M[g])
        A.many(post[g])
        s = S0 + 16*sb + 2*g
        A(f"v_exp_f32 v{s}, v{s}")
        if g == 7: A.many(pre[8])
        A(f"v_exp_f32 v{s+1}, v{s+1}")

def gen_loop(A, tl, iters, name):
    T = len(tl)
    A(f"s_mov_b32 s38, {iters-1}")
    A(".p2align 6")
    A(f"{name}:")
    if PROF:
        for it in range(1, iters):
            A(f"s_cmp_lg_u32 s38, {iters-1-it}")
            A(f"s_cbranch_scc1 {name}_s{it}")
            st(A, f"i{T}{it}")
            A(f"{name}_s{it}:")
    U = 5*T
    for u in range(U):
        k, t = divmod(u, T)
        tp = tl[(u - 1) % T]; tn = tl[(u + 1) % T]; tc = tl[t]
        M = [pv(tp, tp, 0, 1), pv(tp, tp, 1, 0), pv(tp, tp, 1, 1)] + [qk(tn, j, tn) for j in range(4)] + [pv(tc, tc, 0, 0)]
        pre = [[] for _ in range(9)]
        post = [[] for _ in range(8)]
        if t == 0:
            vs = vread(0, 0, k)[1:] + vread(0, 1, k) + vread(1, 0, k) + vread(1, 1, k)
            for g in range(7):
                post[g].append(vs[g])
            pre[7].append(f"s_waitcnt lgkmcnt({2 if T > 2 else 5})")
        if t == 1:
            pre[2].append("s_waitcnt vmcnt(12) lgkmcnt(0)" if T == 3 else "s_waitcnt lgkmcnt(0)")
            pre[(1 if DS else 3) if T == 2 else 5].append(f"s_mov_b32 m0, s{48+k}")
            if k == 3 and T == 3: post[0].append(f"ds_read_b32 v{ONE+1}, v{MB} offset:36")
        if t == T - 2:
            if T == 2:
                pre[3].append(f"s_waitcnt vmcnt({11 if DS else 12})")
            for j in range(4):
                post[3+j].append(kread(j, (k + 1) % 5))
        if t == T - 1:
            if T == 3:
                pre[3].append("s_waitcnt lgkmcnt(0)")
            for j in range(0 if DS else 4):
                post[3+j].append(dma_ld(j))
            if not DS: pre[7].append("s_add_u32 s37, s37, s45")
            post[7] += vread(0, 0, (k + 1) % 5)[:1]
        if DS:
            pos = [(1, 7), (2, 5), (0, 3), (1, 1)] if T == 3 else [(1, 2), (1, 6), (0, 2), (0, 7)]
            for j, (a, b) in enumerate(pos):
                if a == t: post[b].append(dma_ld(j))
            if t == 1: (post[2] if T == 3 else post[0]).append("s_add_u32 s37, s37, s45")
        if u == U - 1:
            pre[8].append("s_sub_u32 s38, s38, 1")
        if "w" in X:
            pre = [[x.replace("vmcnt(12)", "vmcnt(63)") for x in p] for p in pre]
        if "l" in X:
            import re
            pre = [[re.sub(r"lgkmcnt\(\d+\)", "lgkmcnt(15)", x) for x in p] for p in pre]
        emit_step(A, M, pre, post, tc)
    A(f"s_cbranch_scc0 {name}")

W2 = int(os.environ.get("W2", "1"))
ORD = int(os.environ.get("ORD", "0"))
PK2 = int(os.environ.get("PK2", "2"))
def gen_loop16(A, tl, iters, name):
    T = len(tl)
    A(f"s_mov_b32 s38, {iters-1}")
    A(".p2align 6")
    A(f"{name}:")
    U = 5*T
    for u in range(U):
        k, t = divmod(u, T)
        tp = tl[(u - 1) % T]; tn = tl[(u + 1) % T]; tc = tl[t]
        M = unit16(tp, tp, tn, tn, tc, tc)
        pre = [[] for _ in range(17)]
        post = [[] for _ in range(16)]
        kk = 4 if T == 2 else 0
        if t == 0:
            for i, v in enumerate(vread16(k)): post[2+i].append(v)
            pre[14].append(f"s_waitcnt lgkmcnt({kk + 4*W2})")
        if t == 1:
            if W2: pre[0].append(f"s_waitcnt lgkmcnt({kk})")
            post[1].append(f"s_mov_b32 m0, s{48+k}")
            if k == 3 and T == 3: post[0].append(f"ds_read_b32 v{ONE+1}, v{MB} offset:36")
        if t == T - 2:
            post[9].append("s_waitcnt vmcnt(12)")
            for j in range(4):
                post[10+j].append(kread16(j, (k + 1) % 5))
        if t == T - 1:
            pre[6].append("s_waitcnt lgkmcnt(0)")
            for j in range(4):
                post[7+2*j].append(dma_ld(j))
            post[14].append("s_add_u32 s37, s37, s45")
        if u == U - 1:
            post[15].append("s_sub_u32 s38, s38, 1")
        if PK2:
            pre = [[] for _ in range(17)]; post = [[] for _ in range(16)]
            if t == 0:
                for i, v in enumerate(vread16(k)): post[2 + PK2*(i >> 1)].append(v)
                post[13].append(f"s_waitcnt lgkmcnt({kk})")
            if t == 1 and k == 3 and T == 3: post[0].append(f"ds_read_b32 v{ONE+1}, v{MB} offset:36")
            if t == T - 2:
                kr = [kread16(j, (k + 1) % 5) for j in range(4)]
                post[9] = ["s_waitcnt vmcnt(12)", kr[0]]
                post[11] = kr[1:3]
                post[13] = [kr[3]] + post[13]
                if T == 3: post[13].append(f"s_mov_b32 m0, s{48+k}")
            if t == T - 1:
                post[5] = ["s_waitcnt lgkmcnt(0)"] + ([f"s_mov_b32 m0, s{48+k}"] if T == 2 else [dma_ld(0)])
                post[7] = [dma_ld(1), dma_ld(2)]
                post[9] = [dma_ld(3)] + ([dma_ld(0)] if T == 2 else ["s_add_u32 s37, s37, s45"])
                if T == 2: post[11] = ["s_add_u32 s37, s37, s45"]
            if u == U - 1: post[11].append("s_sub_u32 s38, s38, 1")
        if "d" in X: post = [[x for x in p if "buffer_load" not in x] for p in post]
        if "r" in X: post = [[x for x in p if "ds_read_b" not in x or "b32" in x] for p in post]
        for h in range(16):
            r = S0 + 16*tc + h
            ex = f"v_exp_f32{'_e64' if 'e' in X else ''} v{r}, v{r}"
            if ORD == 0:
                A.many(pre[h]); A(M[h]); A.many(post[h]); A(ex)
            elif ORD == 1:
                A.many(pre[h]); A(M[h]); A(ex); A.many(post[h])
            elif h & 1:
                A.many(pre[h-1] + pre[h]); A(M[h-1]); A.many(post[h-1]); A(M[h]); A.many(post[h])
                A(ex.replace(f"v{r}", f"v{r-1}")); A(ex)
    A(f"s_cbranch_scc0 {name}")

def dump16(t):
    return [f"ds_write_b128 v{RA}, {vr(O+32*t+4*q,4)} offset:{2048*(q>>1)+256*(q&1)}" for q in range(8)]

def gen_t16(A):
    seq = [(int(w[1:]), 0 if w[0] == "O" else 2) for w in SEQS[os.environ.get("SEQ", "2")].split()]
    n = len(seq); P = [a for a, _ in seq]; last = max(P)
    ms = max(i for i in range(n) if seq[i][1] == 2)
    assert P[0] == 35 and P[1] == 35
    L = []
    def ins(s, tag=None): L.append((s, tag))
    def wait(l=None, v=None): L.append(("WAIT", (l, v)))
    pre_v = [f"D{k}" for k in (36, 37, 38, 39) for _ in range(4)]
    ins("s_add_u32 s37, s37, s47")
    dl = dump16(2); fl = final_loads()
    newv = lambda i: i == 0 or P[i] != P[i-1]
    nd = 40
    for i in range(n):
        sb = 0 if i % 2 == 0 else 2; so = 2 - sb
        tp = 2 if i == 0 else seq[i-1][1]
        M = unit16(so, tp, so, seq[i+1][1] if i + 1 < n else None, sb, seq[i][1])
        vs = vread16(P[i] % 5)
        rk = i + 2 < n and P[i+2] != P[i+1]
        free = nd <= last and all(not (P[j] == nd - 5 and newv(j)) for j in range(i, n))
        for h in range(16):
            if h == 0 and i and newv(i-1): wait(l=[f"W{i-1}"])
            if h == 6 and i + 1 < n: wait(l=[f"K{i+1}", f"C{i-1}"])
            if h == 14 and newv(i): wait(l=[f"V{i}"])
            if M[h]: ins(M[h])
            if h == 0 and free: ins(f"s_mov_b32 m0, s{48+nd%5}")
            if 2 <= h < 10 and newv(i): ins(vs[h-2], f"V{i}" if h < 6 else f"W{i}")
            if h == 9 and rk: wait(v=[f"D{P[i+2]}"])
            if 10 <= h < 14 and rk: ins(kread16(h-10, P[i+2] % 5), f"K{i+2}")
            if h in (1, 3, 5, 7) and free: ins(dma_ld(h//2), f"D{nd}")
            if h == 8 and free: ins("s_add_u32 s37, s37, s45")
            if i == ms + 3 and h in (0, 1, 14, 15): ins(fl.pop(0), "F")
            if i == ms + 4 and h == 0: ins(fl.pop(0), "F")
            if i == ms and h == 0: ins(f"ds_read_b32 v{ONE+1}, v{MB} offset:20", f"C{i}")
            if i == ms + 1 and h == 6: ins(f"v_readfirstlane_b32 s57, v{ONE+1}")
            if i == ms + 1 and h == 8:
                ins("s_cmp_lt_u32 s57, 4"); ins("s_cbranch_scc1 A_WC"); ins("A_WR:")
            if dl and (i, h) >= (ms + 1, 9):
                ins(dl.pop(0), "X")
                if not dl:
                    ins("s_mov_b64 exec, 1"); ins(f"ds_add_u32 v{MB}, v{ONE} offset:8", "X"); ins("s_mov_b64 exec, -1")
            r = S0 + 16*sb + h
            ins(f"v_exp_f32 v{r}, v{r}")
        if free: nd += 1
    assert not dl and not fl and nd == last + 1
    wait(l=[f"W{n-1}"])
    for m in unit16(2, 0, 0, None, 0, 0)[:6]: ins(m)
    T = Track(); T.q["v"] = pre_v
    for s_, tag in L:
        if s_ == "WAIT":
            l, v = tag; w = "s_waitcnt"
            if v: w += f" vmcnt({T.cnt('v', v)})"
            if l: w += f" lgkmcnt({T.cnt('l', l)})"
            A(w)
        else:
            if tag: T.add(s_, tag)
            A(s_)

def dump(t, a=None):
    return [f"ds_write_b128 v{RA if a is None else a}, {vr(O+32*t+4*q,4)} offset:{1024*q}" for q in range(8)]

def final_loads():
    L = []
    for i in range(4):
        L.append(f"buffer_load_dwordx4 {vr(WF+4*i,4)}, v{WO}, s[20:23], {'0' if i == 0 else 's%d' % (60+i)} offen sc1")
    L.append(f"buffer_load_dwordx4 {vr(XF,4)}, v{XO}, s[16:19], 0 offen")
    return L

def final_setup_v(A):
    A("v_and_b32 v16, 31, v0")
    A("v_lshrrev_b32 v17, 5, v0")
    A("v_and_b32 v18, 7, v16")
    A("v_add_u32 v18, 32, v18")
    A("v_lshrrev_b32 v19, 3, v16")
    A("s_cmp_ge_u32 s3, 4")
    A("s_cselect_b64 vcc, -1, 0")
    A(f"v_cmp_eq_u32 s[54:55], s{SI}, v19")
    A("v_cndmask_b32 v16, v16, v18, vcc")
    A(f"s_lshl_b32 s42, s{SV}, 5")
    A("v_lshl_add_u32 v17, v17, 4, s42")
    A(f"v_mul_u32_u24 v1, {ASTR}, v16")
    A("v_add_u32 v1, v1, v17")
    A(f"v_add_u32 v1, {AL}, v1")
    A(f"s_mul_i32 s42, s{SW}, {40*128}")
    A(f"v_lshl_add_u32 v{XO}, v16, 7, v17")
    A(f"v_add_u32 v{XO}, s42, v{XO}")
    A("s_andn2_b64 vcc, vcc, s[54:55]")
    A("v_mov_b32 v18, 0x70000000")
    A(f"v_cndmask_b32 v{XO}, v{XO}, v18, vcc")
    A(f"s_lshl_b32 s42, s{SV}, 10")
    A(f"v_add_u32 v{WO}, s42, v{DV}")
    A(f"s_lshl_b32 s42, s{SV}, 13")
    A(f"s_add_u32 s42, s42, {STG}")
    A(f"v_add_u32 v{RA}, s42, v{DV}")

def final_setup_s(A):
    A(f"s_lshl_b32 s54, s{SI}, 3")
    A("s_lshl_b32 s54, 0xff, s54")
    A("s_mov_b32 s55, s54")
    srd(A, 16, 6, 0, N * 128)
    srd(A, 20, 4, WS_W, 16384)
    srd(A, 24, 28, 0, N * 128)
    A("s_movk_i32 s61, 0x1000")
    A("s_movk_i32 s62, 0x2000")
    A("s_movk_i32 s63, 0x3000")

class Track:
    def __init__(self): self.q = {"l": [], "v": []}
    def add(self, ins, tag):
        self.q["l" if ins.startswith("ds_") else "v"].append(tag); return ins
    def cnt(self, c, tags):
        q = self.q[c]; last = max([i for i, t in enumerate(q) if t in tags], default=-1)
        return min(len(q) - 1 - last, 15 if c == "l" else 63)

SEQS = {
 "2": "O35 S35 S36 S37 S38 O36 O37 O38 O39 O40",
 "4": "O35 S35 O36 S36 S37 O37 O38 O39 O40 O41",
 "4b": "O35 S35 S36 S37 O36 O37 O38 O39 O40 O41",
 "6": "O35 S35 S36 O36 O37 O38 O39 O40 O41 O42",
 "8": "O35 S35 O36 O37 O38 O39 O40 O41 O42 O43",
}
def gen_t1(A):
    seq = [(int(w[1:]), 0 if w[0] == "O" else 2) for w in SEQS[os.environ.get("SEQ", "2")].split()]
    n = len(seq); P = [a for a, _ in seq]; last = max(P)
    ms = max(i for i in range(n) if seq[i][1] == 2)
    assert P[0] == 35 and P[1] == 35
    L = []
    def ins(s, tag=None): L.append((s, tag))
    def wait(l=None, v=None): L.append(("WAIT", (l, v)))
    pre_l = ["V0"]; pre_v = [f"D{k}" for k in (36, 37, 38, 39) for _ in range(4)]
    if DS: pre_v = pre_v[:-2]
    else: ins("s_add_u32 s37, s37, s47")
    dl = dump(2); fl = final_loads()
    newv = lambda i: i == 0 or P[i] != P[i-1]
    nd = 40
    for i in range(n):
        sb = 0 if i % 2 == 0 else 2; so = 2 - sb
        tp = 2 if i == 0 else seq[i-1][1]
        M = [pv(so, tp, 0, 1), pv(so, tp, 1, 0), pv(so, tp, 1, 1)] + [qk(so, j, seq[i+1][1]) if i + 1 < n else None for j in range(4)] + [pv(sb, seq[i][1], 0, 0)]
        k = P[i] % 5
        vs = vread(0, 0, k)[1:] + vread(0, 1, k) + vread(1, 0, k) + vread(1, 1, k)
        vt = [f"V{i}"]*5 + [f"W{i}"]*2
        rk = i + 2 < n and P[i+2] != P[i+1]
        free = nd <= last and all(not (P[j] == nd - 5 and newv(j)) for j in range(i, n))
        for g in range(8):
            if g == 2:
                wait(l=[f"W{i-1}", f"K{i+1}"], v=[f"D{P[i+2]}"] if rk else None)
                if free: ins(f"s_mov_b32 m0, s{48+nd%5}")
            if g == 7 and newv(i): wait(l=[f"V{i}"])
            if M[g]: ins(M[g])
            if g < 7 and newv(i): ins(vs[g], vt[g])
            if 3 <= g <= 6 and rk: ins(kread(g-3, P[i+2] % 5), f"K{i+2}")
            if DS and i == 0 and g in (2, 7): ins(dma_ld(2 if g == 2 else 3), "D39")
            if DS and i == 1 and g < 2: ins(f"s_add_u32 s37, s37, s{45+2*g}")
            if 2 <= g <= 5 and free: ins(dma_ld(g-2), f"D{nd}")
            if g == 6 and free: ins("s_add_u32 s37, s37, s45")
            if g == 7 and i + 1 < n and newv(i+1): ins(vread(0, 0, P[i+1] % 5)[0], f"V{i+1}")
            if i == ms + 3 and g in (0, 1, 6, 7): ins(fl.pop(0), "F")
            if i == ms + 4 and g == 0: ins(fl.pop(0), "F")
            if i == ms and g == 0: ins(f"ds_read_b32 v{ONE+1}, v{MB} offset:20", f"W{i}")
            if i == ms + 1 and g == 2: ins(f"v_readfirstlane_b32 s57, v{ONE+1}")
            if i == ms + 1 and g == 4:
                ins("s_cmp_lt_u32 s57, 4"); ins("s_cbranch_scc1 A_WC"); ins("A_WR:")
            if dl and (i, g) >= (ms + 1, 5):
                ins(dl.pop(0), "X"); ins(dl.pop(0), "X")
                if not dl:
                    ins("s_mov_b64 exec, 1"); ins(f"ds_add_u32 v{MB}, v{ONE} offset:8", "X"); ins("s_mov_b64 exec, -1")
            r = S0 + 16*sb + 2*g
            ins(f"v_exp_f32 v{r}, v{r}"); ins(f"v_exp_f32 v{r+1}, v{r+1}")
        if free: nd += 1
    assert not dl and not fl and nd == last + 1
    wait(l=[f"W{n-1}"])
    ins(pv(2, 0, 0, 1)); ins("s_nop 0"); ins(pv(2, 0, 1, 0)); ins(pv(2, 0, 1, 1))
    T = Track(); T.q["l"] = pre_l; T.q["v"] = pre_v
    for s_, tag in L:
        if s_ == "WAIT":
            l, v = tag; w = "s_waitcnt"
            if v: w += f" vmcnt({T.cnt('v', v)})"
            if l: w += f" lgkmcnt({T.cnt('l', l)})"
            A(w)
        else:
            if tag: T.add(s_, tag)
            A(s_)

def attn_setup(A):
    flag_srd(A)
    A(f"v_mov_b32 v{ONE}, 1")
    A("s_load_dwordx2 s[6:7], s[0:1], 0")
    A("s_load_dwordx2 s[28:29], s[0:1], 72")
    A(f"s_mul_i32 s42, s{SV}, {80*4096}")
    A(f"s_sub_u32 s10, {N*128}, s42")
    A(f"s_min_u32 s10, s10, {80*4096}")
    A("s_mov_b32 s11, 0x20000")
    A("s_add_u32 s8, s4, s42")
    A("s_addc_u32 s9, s5, 0")
    A(f"s_mul_i32 s36, s{SV}, {RING}")
    for k in range(5):
        A(f"s_add_u32 s{48+k}, s36, {4096*k}")
    A(f"s_lshl_b32 s45, s{SHF}, 13")
    A("s_sub_u32 s45, 0x1000, s45")
    A(f"s_mul_i32 s37, s{SHF}, {79*4096}")
    A(f"s_lshl_b32 s42, s{SHF}, 12")
    A(f"s_sub_u32 s42, {40*4096}, s42")
    A("s_mul_i32 s47, s45, -80")
    A(f"s_cmp_eq_u32 s{SP}, 0")
    A("s_cselect_b32 s37, s37, s42")
    A("s_cselect_b32 s47, 0, s47")
    (frag16 if M16 else frag_addrs)(A, 0, 36, 18, 19)
    dma_addr(A, 18)
    A("s_waitcnt lgkmcnt(0)")
    final_setup_v(A)
    if M16: A(f"v_add_u32 v{RA}, s42, v{D2}")
    final_setup_s(A)

def gen_attn(A):
    A("A_MAIN:")
    for r in list(range(S0+32, S0+48, 2)) + list(range(VF+(0 if M16 else 4), VF+16, 2)):
        A(f"v_mov_b64 {vr(r,2)}, 0")
    A("v_lshlrev_b32 v17, 7, v0")
    A(f"s_lshl_b32 s42, s{SV}, 13")
    lds_wait(A, "A_WQ", 24, 3, 16)
    if P8:
        lds_wait(A, "A_WF", 0, 1, 16)
        A(f"s_mov_b32 s{SN}, s57")
    else:
        lds_wait(A, "A_WF", 28, 2, 16)
    st(A, "fg")
    def pg(nm, mask):
        A("s_cmp_eq_u32 s3, 3")
        A("s_cselect_b32 exec_hi, 0x03ffffff, -1")
        if mask:
            A(f"s_and_b64 exec, exec, {mask}")
            A(f"s_cbranch_scc0 {nm}_X")
        poll1(A, nm, 17, "s42", 16)
    if E4:
        A("s_lshr_b32 s43, s37, 12")
        A("s_mul_i32 s43, s43, 205")
        A("s_lshr_b32 s43, s43, 10")
        A("s_lshl_b32 s43, s43, 2")
        A("s_bfm_b64 s[56:57], 4, s43")
    pg("A_PG", "s[56:57]" if E4 else None)
    st(A, "a3")
    A("s_setprio 1")
    def pre(ks):
        for k in ks:
            A(f"s_mov_b32 m0, s{48+k}")
            A("s_nop 0")
            for i in range(4): A(dma_ld(i))
            A("s_add_u32 s37, s37, s45")
    pre(range(N0))
    if N0 == 5: lds_signal(A, 40, ONE)
    A(f"v_add_u32 v18, {QX}, v{D2 if M16 else DV}")
    for q in range(12):
        A(f"ds_read_b128 {vr(Q+4*q,4)}, v18 offset:{4096*(q>>2)+2048*(q&1)+256*((q>>1)&1) if M16 else 1024*q}")
    if E4:
        pg("A_PH", None)
        lds_signal(A, 40, ONE)
        st(A, "go")
    A(f"s_waitcnt vmcnt({4*N0-4})")
    if M16:
        for j in range(4): A(kread16(j, 0))
        pre(range(N0, 5))
        if N0 < 5: lds_signal(A, 40, ONE)
        A("s_waitcnt lgkmcnt(0)")
        A.many(qk16(0, 0))
    else:
        for j in range(4): A(kread(j, 0))
        A(vread(0, 0, 0)[0])
        A("s_waitcnt lgkmcnt(1)")
        for j in range(4): A(qk(0, j, 0))
    A("s_nop 7")
    st(A, "a4")
    (gen_loop16 if M16 else gen_loop)(A, [0, 1, 2], 4, "A_L3")
    st(A, "l3")
    A(f"v_readfirstlane_b32 s57, v{ONE+1}")
    A(f"s_cmp_lt_u32 s57, {4 if NH else 7}")
    A("s_cbranch_scc1 A_WP")
    A("A_WPR:")
    A.many(dump16(1) if M16 else dump(1))
    A("s_mov_b64 exec, 1")
    A(f"ds_add_u32 v{MB}, v{ONE} offset:8")
    A("s_mov_b64 exec, -1")
    (gen_loop16 if M16 else gen_loop)(A, [0, 2], 3, "A_L2")
    st(A, "l2")
    (gen_t16 if M16 else gen_t1)(A)
    st(A, "a5")
    A(f"v_add_u32 v{RA}, s36, v{D2 if M16 else DV}")
    if M16:
        dl = dump16(0)
        A("s_nop 1")
        A.many(dl[0::2]); A.many(dl[1::2][:3]); A("s_nop 0"); A(dl[7])
    else:
        A("s_nop 7")
        A("s_nop 2")
        A.many(dump(0))
    A("s_branch FINAL")
    A("A_WC:")
    lds_wait(A, "A_WC1", 20, 4, ONE+1)
    A("s_branch A_WR")

    A("A_WP:")
    lds_wait(A, "A_WP1", 36, 4 if NH else 7, ONE+1)
    A("s_branch A_WPR")
```

```python
from fc import *
from fa import WL, P8, ln8, ln8_load, WF, XF, XO, WO, RA, final_setup_v, final_setup_s, final_loads

T = 140; RS = 176; PO = 177; EV = 178; PK = 180; EK = 192
TH = 60; MD = 40
GP = int(os.environ.get("GP", "1"))
DG = int(os.environ.get("DG", "4"))
SPL = int(os.environ.get("SPL", "1"))
HF = int(os.environ.get("HF", "1"))
WP = int(os.environ.get("WP", "2"))
LP = int(os.environ.get("LP", "0"))
SP2 = int(os.environ.get("SP2", "0"))
SE = int(os.environ.get("SE", "1"))
EP = int(os.environ.get("EP", "2"))
def gen_sort(A):
    A("s_load_dwordx4 s[28:31], s[0:1], 8")
    if P8:
        A("s_load_dwordx2 s[16:17], s[0:1], 0")
        A("s_load_dwordx2 s[8:9], s[0:1], 80")
        ln8_load(A)
    A(f"s_lshl_b32 s42, s{SV}, 6")
    A("v_add_u32 v2, s42, v0")
    A("v_lshlrev_b32 v3, 4, v2")
    A("v_lshlrev_b32 v4, 3, v2")
    A(f"s_mul_i32 s50, s{SW}, {CH*4}")
    A("s_add_u32 s43, s50, 0x1000")
    A("s_add_u32 s44, s50, 0x2000")
    A("s_waitcnt lgkmcnt(0)")
    srd(A, 20, 30, 0, E * 4)
    srd(A, 24, 28, 0, E * 4)
    D = 76; S = 28; R = 40; B = 52
    def eloads(base, sd):
        A(f"buffer_load_dwordx4 {vr(base,4)}, v3, {sr(sd,4)}, s50 offen")
        A(f"buffer_load_dwordx4 {vr(base+4,4)}, v3, {sr(sd,4)}, s43 offen")
        A(f"buffer_load_dwordx2 {vr(base+8,2)}, v4, {sr(sd,4)}, s44 offen")
    Z = 64
    A(f"s_mov_b32 s49, {STG}")
    A(f"v_mov_b32 v10, {CELL}")
    A("v_lshrrev_b32 v5, 2, v2")
    A("v_and_b32 v7, 3, v2")
    A(f"v_mad_u32_u24 v73, v5, v10, s49")
    A("v_lshl_add_u32 v73, v7, 4, v73")
    A(f"s_and_b32 s42, s{SW}, 15")
    A("s_lshl_b32 s42, s42, 20")
    A("s_add_u32 s42, s42, 0x1000000")
    A(f"v_lshl_add_u32 v{Z+1}, v7, 18, s42")
    A("v_cmp_eq_u32 vcc, 0, v7")
    for r in range(2, 6):
        A(f"v_mov_b32 v{Z+r}, v{Z+1}")
    A(f"v_addc_co_u32 v{Z}, vcc, 0, v{Z+1}, vcc")
    for it in range(4):
        A(f"ds_write_b128 v73, {vr(Z,4)} offset:{64*CELL*it}")
        A(f"ds_write_b128 v73, {vr(Z+2,4)} offset:{64*CELL*it+64}")
    for r in range(4):
        A(f"v_mov_b32 v{Z+16+r}, -1")
        A(f"v_mov_b32 v{Z+20+r}, 0")
    A(f"v_add_u32 v5, {LL}, v3")
    for i in range(3):
        A(f"ds_write_b128 v5, {vr(Z+16,4)} offset:{4096*i}")
    A("v_mov_b32 v6, 1")
    A(f"v_lshlrev_b32 v5, 2, v0")
    A(f"v_add_u32 v8, {LST}, v5")
    A(f"v_add_u32 v5, {DUM}, v5")
    A(f"v_lshlrev_b32 v9, 8, v0")
    A(f"v_add_u32 v9, {LL}, v9")
    A("ds_write2st64_b32 v8, v9, v5 offset0:0 offset1:1")
    for i in range(3):
        A(f"ds_write_b128 v{MB}, {vr(Z+20,4)} offset:{16*i}")
    srd(A, 28, 4, WS_E, 2 * E2)
    flag_srd(A)
    A("s_mov_b32 s47, 52429")
    A("v_mov_b32 v7, 31")
    if P8:
        srd(A, 52, 4, WS_G, N * 128)
        A("s_movk_i32 s10, 256")
        A("s_mov_b32 s11, 0x20000")
        A("s_mov_b32 vcc_lo, 0x80808080")
        A("s_mov_b32 vcc_hi, vcc_lo")
        A("s_waitcnt lgkmcnt(0)")
        A("s_barrier")
        A("s_waitcnt vmcnt(0)")
        st(A, "bx")
        nl = "buffer_load_dword v5, off, s[8:11], 0 sc1"
        A(nl)
        ln8(A, 52)
        if WL: A("s_barrier")
        if "D" in X: eloads(D, 20)
        A(f"s_mov_b32 s58, {LIMIT}")
        A(f"s_waitcnt vmcnt({3 if 'D' in X else 0})")
        A("N_L:")
        A(f"v_readfirstlane_b32 s{SN}, v5")
        A("s_sub_u32 s58, s58, 1")
        A("s_cbranch_scc1 N_X")
        A(f"s_cmp_lg_u32 s{SN}, 0")
        A("s_cbranch_scc1 N_X")
        A(nl)
        A("s_waitcnt vmcnt(0)")
        A("s_branch N_L")
        A("N_X:")
        st(A, "bd")
        A("s_mov_b64 exec, 1")
        A(f"ds_add_rtn_u32 v72, v{MB}, v6 offset:28")
        A(f"s_or_b32 s{SN}, s{SN}, 1")
        A(f"s_lshl_b32 s42, s{SW}, 7")
        A(f"v_mov_b32 v5, s{SN}")
        A("s_waitcnt lgkmcnt(0)")
        A("v_cmpx_eq_u32 vcc, 3, v72")
        A("s_cbranch_execz N_G")
        A("buffer_store_dword v5, off, s[12:15], s42 sc1")
        A(f"ds_write_b32 v{MB}, v5")
        st(A, "f3")
        A("N_G:")
        A("s_mov_b64 exec, -1")
        if "D" not in X and "g" not in X: eloads(D, 20)
        if "a" in X: eloads(S, 24)
        gather_setup(A)
    else:
        gather_setup(A)
        A("s_barrier")
        if "g" not in X: eloads(D, 20)
        if "a" in X: eloads(S, 24)
        A("s_waitcnt lgkmcnt(0)")
        A("s_barrier")
    if "F" in X:
        lds_wait(A, "B_WN", 0, 1, 5)
        eloads(D, 20)
    if "p" in X: A("s_setprio 2")
    A("s_load_dwordx2 s[6:7], s[0:1], 24")
    A(f"s_cmp_ge_u32 s{SW}, {0 if 'x' in X else NB}")
    A("s_cbranch_scc1 B_3")
    if "g" in X:
        lds_wait(A, "B_WG", 40, 4, 5)
        st(A, "bgo")
        eloads(D, 20); eloads(S, 24)
    A(f"s_waitcnt vmcnt({3 if 'g' in X or 'a' in X else 0}) lgkmcnt(0)")
    if "b" in X: eloads(S, 24)
    st(A, "bld")
    for i in range(10):
        A(f"v_mul_u32_u24 v{B+i}, s47, v{D+i}")
        A(f"v_lshrrev_b32 v72, 21, v{B+i}")
        A(f"v_mad_u32_u24 v{B+i}, v72, v10, s49")
        A(f"ds_add_rtn_u32 v{R+i}, v{B+i}, v6")
        A(f"v_mul_u32_u24 v72, 40, v72")
        A(f"v_sub_u32 v{D+i}, v{D+i}, v72")
    for i in range(10):
        A(f"s_waitcnt lgkmcnt({9-i})")
        A(f"v_min_u32_sdwa v{R+i}, v{R+i}, v7 dst_sel:DWORD dst_unused:UNUSED_PAD src0_sel:WORD_0 src1_sel:DWORD")
        A(f"v_lshl_add_u32 v{B+i}, v{R+i}, 2, v{B+i}")
    if not set("gab") & set(X):
        lds_wait(A, "B_WG", 40, 4, 5)
        st(A, "bgo")
        if SP2: A("s_setprio 2")
        eloads(S, 24)
    A("s_waitcnt vmcnt(0)")
    st(A, "bsrc")
    for i in range(10):
        A(f"v_lshl_or_b32 v{S+i}, v{D+i}, 18, v{S+i}")
        A(f"ds_write_b32 v{B+i}, v{S+i}")
    lds_signal(A, 32, 6)
    A(f"s_lshl_b32 s42, s{SW}, 14")
    A(f"s_add_u32 s43, s42, {E2:#x}")
    lds_wait(A, "B_W1", 32, 4, 5)
    if "G" in X: lds_wait(A, "B_WG", 40, 4, 5)
    st(A, "bsort")
    for it in range(4):
        A(f"ds_read_b128 {vr(16+4*it,4)}, v73 offset:{64*CELL*it}")
    for it in range(4):
        A(f"ds_read_b128 {vr(32+4*it,4)}, v73 offset:{64*CELL*it+64}")
    A("v_mov_b32 v7, 16")
    for it in range(4):
        A(f"s_waitcnt lgkmcnt({7-it})")
        A(f"buffer_store_dwordx4 {vr(16+4*it,4)}, v3, s[28:31], s42 offen sc1")
        A(f"v_mov_b32_dpp v{48+it}, v{16+4*it} quad_perm:[0,0,0,0] row_mask:0xf bank_mask:0xf")
        A("s_add_u32 s42, s42, 0x1000")
    A("s_waitcnt lgkmcnt(0)")
    for it in range(4):
        A(f"v_cmp_gt_u32_sdwa vcc, v{48+it}, v7 src0_sel:WORD_0 src1_sel:DWORD")
        A("s_and_b64 exec, vcc, -1")
        A(f"s_cbranch_scc0 B_O{it}")
        A(f"buffer_store_dwordx4 {vr(32+4*it,4)}, v3, s[28:31], s43 offen sc1")
        A(f"B_O{it}:")
        A("s_mov_b64 exec, -1")
        A("s_add_u32 s43, s43, 0x1000")
    A("B_3:")
    A(f"s_lshl_b32 s42, s{SW}, 7")
    A(f"s_lshl2_add_u32 s42, s{SV}, s42")
    A(f"s_add_u32 s42, s42, {FS}")
    A(f"v_mov_b32 v5, s{SN}")
    A("s_mov_b64 exec, 1")
    A("s_waitcnt lgkmcnt(0)")
    A(f"ds_add_u32 v{MB}, v6 offset:36")
    A("s_waitcnt vmcnt(0)")
    st(A, "bpub")
    A("buffer_store_dword v5, off, s[12:15], s42 sc1")
    A("s_mov_b64 exec, -1")
    A("B_4:")
    if SP2: A("s_setprio 0")

EN = 140; PS = 16; BUF = 48; PR = 88; AC = 108; SA = 128; SX = 132
DI = 228; DO = 231; FO = 232; LR2 = 233; C16 = 234; LBV = 235; TWO = 236; AO = 237; C = 244
t0, t1, t2, t3 = 238, 239, 241, 242
def gather_setup(A):
    A(f"s_lshl_b32 s42, s{SV}, 12")
    A(f"v_add_u32 v{PO}, s42, v{DV}")
    A(f"s_lshl_b32 s42, s{SV}, 11")
    A(f"s_add_u32 s42, s42, {STG}")
    A(f"v_add_u32 v{RS}, s42, v{DV}")
    A(f"s_mov_b32 s{TH}, 4")
    A(f"s_mov_b32 s{MD}, 1")
    A(f"v_mov_b32 v{EV}, 0")
    A(f"v_bfe_u32 v{t0}, v0, 3, 1")
    A(f"v_lshrrev_b32 v{t1}, 5, v0")
    A(f"v_cmp_eq_u32 vcc, v{t0}, v{t1}")
    A(f"v_lshl_add_u32 v{t0}, v{t0}, 1, v{t1}")
    A(f"v_lshlrev_b32 v{DO}, 1, v{t0}")
    A(f"v_and_b32 v{t1}, 1, v0")
    A(f"v_lshlrev_b32 v{t1}, 4, v{t1}")
    A(f"v_mov_b32 v{t2}, {0x3f80 if NH else 0x3c00:#x}")
    A(f"v_lshlrev_b32 v{t1}, v{t1}, v{t2}")
    A(f"v_cndmask_b32 v{t1}, 0, v{t1}, vcc")
    A("s_mov_b32 vcc_lo, 0xf0f0f0f0")
    A("s_mov_b32 vcc_hi, vcc_lo")
    A(f"v_cndmask_b32 v{SA+1}, 0, v{t1}, vcc")
    A(f"v_sub_u32 v{SA}, v{t1}, v{SA+1}")
    A(f"v_mov_b32 v{SA+3}, v{SA+1}")
    A(f"v_mov_b32 v{SA+2}, v{SA}")
    A("s_mov_b32 vcc_lo, 0xcccccccc")
    A("s_mov_b32 vcc_hi, vcc_lo")
    A(f"v_mov_b32 v{t1}, 0xeeeeeeee")
    A(f"v_mov_b32 v{SX}, 0x44444444")
    A(f"v_cndmask_b32 v{SX}, v{SX}, v{t1}, vcc")
    for p in range(3):
        A(f"v_mov_b32 v{DI+p}, 0")
    for r in range(20):
        A(f"v_mov_b32 v{AC+r}, 0")
    A(f"v_and_b32 v{t1}, 7, v0")
    A(f"v_lshlrev_b32 v{PR+1}, 4, v{t1}")
    A(f"v_bfe_u32 v{t2}, v0, 4, 1")
    A(f"v_lshl_add_u32 v{t2}, v{t2}, 3, v{PR+1}")
    A(f"v_mul_u32_u24 v{AO}, {ASTR}, v{t0}")
    A(f"s_mul_i32 s42, s{SV}, {10*ASTR}")
    A(f"s_add_u32 s42, s42, {AL}")
    A(f"v_add3_u32 v{AO}, v{AO}, v{t2}, s42")
    A(f"v_lshl_add_u32 v{t2}, v{t0}, 7, v{t2}")
    for i in range(1, 10):
        A(f"v_mov_b32 v{PR+2*i+1}, v{PR+1}")
    A(f"v_mov_b32 v{LBV}, {LST}")
    A(f"s_mul_i32 s42, s{SV}, 2560")
    A(f"s_add_u32 s42, s42, {LL}")
    A(f"v_lshrrev_b32 v{t0}, 3, v0")
    A(f"v_lshl_add_u32 v{LR2}, v{t0}, 1, s42")
    A(f"v_mov_b32 v{TWO}, 2")
    A(f"v_mov_b32 v{C16}, 16")
    A(f"v_lshlrev_b32 v{FO}, 7, v2")
    A(f"v_lshrrev_b32 v{t3}, 2, v0")
    A(f"v_lshlrev_b32 v{t3}, 14, v{t3}")
    A(f"v_and_b32 v{t1}, 3, v0")
    A(f"v_lshl_add_u32 v{t3}, v{t1}, 4, v{t3}")
    A(f"v_lshlrev_b32 v{EN+12}, 18, v0")
    A(f"v_add_u32 v{EN+12}, 0x1000000, v{EN+12}")
    for r in range(13, 16):
        A(f"v_mov_b32 v{EN+r}, v{EN+12}")
    final_setup_v(A)

def gen_gather(A):
    srd(A, 8, 4, WS_PE, 0x800000)
    for j in range(3):
        A(f"v_mov_b32 v{PK+4*j+3}, s{SN}")
    A(f"s_cmp_ge_u32 s{SW}, {0 if 'y' in X else NB}")
    A("s_cbranch_scc1 B_X")
    srd(A, 16, 4, WS_G if NH else WS_H, N, stride=128)
    srd(A, 48, 6, 0, N * 2)
    A(f"s_mul_i32 s42, s{SW}, 80")
    A(f"s_mul_i32 s43, s{SV}, 20")
    A("s_add_u32 s42, s42, s43")
    for p in range(3):
        A(f"buffer_load_short_d16_hi v{DI+p}, v{DO}, s[48:51], s42 offen offset:{8*p}")
    A(f"s_lshl_b32 s44, s{SV}, 20")
    A(f"s_lshl_b32 s45, s{SW}, 6")
    A("s_add_u32 s44, s44, s45")
    A(f"s_cmp_eq_u32 s{SV}, 3")
    A("s_cselect_b32 s47, 0xff, -1")
    if set("ab") & set(X) and "G" not in X: lds_wait(A, "B_WG", 40, 4, t1)
    if HF:
        A("s_and_b32 s45, s2, 31")
        A(f"s_lshl2_add_u32 s45, s45, s{SV}")
        A("s_lshl_b32 s45, s45, 7")
        spoll(A, "B_PS", [45], FB, 12)
    else:
        A(f"s_mov_b32 s45, {FS}")
        poll1(A, "B_PS", FO, "s45", t1)
    st(A, "bps")
    if LP: A(f"s_setprio {LP}")
    if "1" in X: A("s_branch B_X")
    for it in range(4):
        if it == 3: A("s_mov_b32 exec_hi, s47")
        A(f"buffer_load_dwordx4 {vr(EN+4*it,4)}, v{t3}, s[28:31], s44 offen sc1")
        A("s_add_u32 s44, s44, 0x40000")
    A("s_mov_b64 exec, -1")
    A(f"s_add_u32 s44, s44, {E2 - 0x100000:#x}")
    def trip_a(k):
        A(f"v_add_u32_sdwa v{t1}, v{EN+k}, v{LBV} dst_sel:DWORD dst_unused:UNUSED_PAD src0_sel:WORD_1 src1_sel:DWORD")
        A(f"ds_add_rtn_u32 v{PS+k}, v{t1}, v{TWO}")
    A("s_waitcnt vmcnt(0)")
    for it in range(4):
        A(f"v_mov_b32_dpp v{C+it}, v{EN+4*it} quad_perm:[0,0,0,0] row_mask:0xf bank_mask:0xf")
    for it in range(4):
        A(f"v_and_b32 v{C+it}, 0xffff, v{C+it}")
    for it in range(4):
        A(f"v_cmp_gt_u32 s[{52+2*it}:{53+2*it}], v{C+it}, v{C16}")
    A(f"v_max3_u32 v{t1}, v{C}, v{C+1}, v{C+2}")
    A(f"v_max_u32 v{t1}, v{t1}, v{C+3}")
    A(f"v_cmp_lt_u32 vcc, 32, v{t1}")
    A(f"v_mov_b32 v{t1}, 0x101")
    A("s_cbranch_vccnz G_SYNC")
    for it in range(4):
        A(f"s_and_b64 exec, s[{52+2*it}:{53+2*it}], -1")
        A(f"s_cbranch_scc0 G_O{it}")
        A(f"buffer_load_dwordx4 {vr(EN+16+4*it,4)}, v{t3}, s[28:31], s44 offen sc1")
        A(f"G_O{it}:")
        A("s_add_u32 s44, s44, 0x40000")
    A("s_mov_b64 exec, -1")
    if "2" in X:
        A("s_waitcnt vmcnt(0)"); st(A, "bl"); A("s_branch B_X")
    for k in range(16):
        trip_a(k)
    for k in range(16):
        if k % 4 == 0: A(f"s_waitcnt lgkmcnt(12)")
        A(f"ds_write_b16 v{PS+k}, v{EN+k}")
    A("s_waitcnt vmcnt(0)")
    for it in range(4):
        A(f"s_and_b64 exec, s[{52+2*it}:{53+2*it}], -1")
        A(f"s_cbranch_scc0 G_P{it}")
        for k in range(16+4*it, 20+4*it): trip_a(k)
        A(f"G_P{it}:")
    A("s_waitcnt lgkmcnt(0)")
    for it in range(4):
        A(f"s_and_b64 exec, s[{52+2*it}:{53+2*it}], -1")
        A(f"s_cbranch_scc0 G_Q{it}")
        for k in range(16+4*it, 20+4*it): A(f"ds_write_b16 v{PS+k}, v{EN+k}")
        A(f"G_Q{it}:")
    A("s_mov_b64 exec, -1")
    A(f"v_mov_b32 v{t1}, 1")
    A("G_SYNC:")
    A("s_waitcnt vmcnt(0)")
    lds_signal(A, 4, t1)
    lds_wait(A, "G_S1", 4, 4, t1, mask=0xff)
    st(A, "bl")
    A("s_cmp_gt_u32 s57, 0xff")
    A("s_cbranch_scc1 G_SLOW")
    A(f"ds_read_b32 v{t1}, v8")
    for i in range(10):
        A(f"ds_read_u16 v{PR+2*i}, v{LR2} offset:{256*i}")
    A(f"s_mul_i32 s43, s{SV}, 10")
    A("s_bfm_b64 s[52:53], 10, s43")
    A("s_waitcnt lgkmcnt(10)")
    A(f"v_sub_u32 v{t1}, v{t1}, v9")
    A(f"v_cmp_lt_u32 vcc, 0x100, v{t1}")
    A("s_cbranch_vccnz G_SLOW")
    def ld(i, it_off):
        A(f"buffer_load_dwordx4 {vr(BUF+4*i,4)}, {vr(PR+2*i,2)}, s[16:19], 0 idxen offen sc1")
        A(f"ds_read_u16 v{PR+2*i}, v{LR2} offset:{256*i+16*it_off}")
    def acc(p):
        A(f"v_smfmac_f32_16x16x64_{'bf16' if NH else 'f16'} {vr(AC+4*p,4)}, {vr(SA,4)}, {vr(BUF+8*p,8)}, v{SX}")
    A(f"s_setprio {GP}")
    for i in range(10):
        A(f"s_waitcnt vmcnt({DG-1}) lgkmcnt(9)")
        ld(i, 1)
    A("s_mov_b32 s56, 16" if "z" not in X else "s_movk_i32 s56, 0x200")
    A("G_LOOP:")
    A(f"v_cmp_lt_u32 vcc, s56, v{t1}")
    A(f"v_readfirstlane_b32 s57, v{EV}")
    A(f"ds_read_b32 v{EV}, v{MB} offset:8")
    A("s_add_u32 s56, s56, 16")
    A("s_and_b64 vcc, vcc, s[52:53]")
    A("s_cbranch_scc0 G_DRAIN")
    A(f"s_cmp_ge_u32 s57, s{TH}")
    A("s_cbranch_scc1 G_H")
    A("G_RET:")
    for p in range(5):
        A(f"s_waitcnt vmcnt({DG-2}) lgkmcnt(8)")
        acc(p)
        ld(2*p, 2); ld(2*p+1, 2)
    A(f"v_add_u32 v{LR2}, 16, v{LR2}")
    A("s_branch G_LOOP")
    A("G_DRAIN:")
    for p in range(5):
        A(f"s_waitcnt vmcnt({8-2*p})")
        acc(p)
    if SE:
        A(f"s_cmp_eq_u32 s{TH}, 4")
        A("s_cbranch_scc1 G_NS")
        e_offs(A)
        A(f"s_mov_b32 s{MD}, 3")
        fetch_ld(A, 3, BUF)
        A("G_NS:")
    A("s_nop 7")
    for p in range(5):
        for r in range(4):
            x = AC+4*p+r
            A(f"v_add_f32_dpp v{AC+8*(p>>1)+r}, v{x}, v{x} row_ror:8 row_mask:0xf bank_mask:{'0xc' if p & 1 else '0x3'}")
    A("G_FIN:")
    for k in range(3):
        x = AC+8*k
        for r in range(4):
            A(f"v_mul_f32 v{x+r}, v{x+r}, v{DI+k}")
        A(f"v_cvt_pk_bf16_f32 v{x}, v{x}, v{x+1}")
        A(f"v_cvt_pk_bf16_f32 v{x+1}, v{x+2}, v{x+3}")
        if k == 2:
            A("s_mov_b32 exec_lo, 0x00ff00ff")
            A("s_mov_b32 exec_hi, 0x00ff00ff")
        A(f"ds_write_b64 v{AO}, {vr(x,2)} offset:{4*ASTR*k}")
    A("s_mov_b64 exec, -1")
    A("B_X:")

def gen_slow(A):
    A("G_SLOW:")
    A("s_waitcnt vmcnt(0) lgkmcnt(0)")
    lds_signal(A, 16, 6)
    lds_wait(A, "G_S2", 16, 4, t1)
    A(f"v_add_u32 v{t0}, {LL}, v3")
    for r in range(4):
        A(f"v_mov_b32 v{AC+r}, 0")
    for i in range(3):
        A(f"ds_write_b128 v{t0}, {vr(AC,4)} offset:{4096*i}")
    A("s_waitcnt lgkmcnt(0)")
    lds_signal(A, 16, 6)
    lds_wait(A, "G_S3", 16, 8, t1)
    srd(A, 48, 4, WS_G if NH else WS_H, N * 128)
    A(f"v_lshlrev_b32 v{t0}, 2, v0")
    A(f"v_lshlrev_b32 v{t1}, 1, v0")
    A(f"v_add_u32 v{t3}, {LL}, v{t0}")
    A(f"s_mul_i32 s42, s{SW}, 40")
    A("s_mov_b64 s[44:45], 0")
    for it in range(4):
        A(f"v_cmp_lt_u32 vcc, 1, v{C+it}")
        A(f"s_and_b32 vcc_lo, vcc_lo, {0x11111111 << it:#x}")
        A(f"s_and_b32 vcc_hi, vcc_hi, {0x11111111 << it:#x}")
        A("s_or_b64 s[44:45], s[44:45], vcc")
    A("G_SC:")
    A("s_cmp_eq_u64 s[44:45], 0")
    A("s_cbranch_scc1 G_SE")
    A("s_ff1_i32_b64 s43, s[44:45]")
    A("s_bitset0_b64 s[44:45], s43")
    A("s_and_b32 s47, s43, 3")
    A("s_lshr_b32 s43, s43, 2")
    A(f"s_lshl2_add_u32 s47, s{SV}, s47")
    A("s_lshl4_add_u32 s43, s47, s43")
    A(f"s_mul_i32 s43, s43, {CH*4}")
    A(f"s_add_u32 s47, s43, {CH*4}")
    A("G_SS:")
    A(f"buffer_load_dword v{AC}, v{t0}, s[20:23], s43 offen")
    A(f"buffer_load_dword v{AC+1}, v{t0}, s[24:27], s43 offen")
    A("s_waitcnt vmcnt(0)")
    A(f"v_subrev_u32 v{AC}, s42, v{AC}")
    A(f"v_cmp_gt_u32 s[52:53], 40, v{AC}")
    A("G_SI:")
    A("s_cmp_eq_u64 s[52:53], 0")
    A("s_cbranch_scc1 G_SN")
    A("s_ff1_i32_b64 s56, s[52:53]")
    A("s_bitset0_b64 s[52:53], s56")
    A(f"v_readlane_b32 s57, v{AC+1}, s56")
    A(f"v_readlane_b32 s58, v{AC}, s56")
    A("s_lshl_b32 s57, s57, 7")
    A("s_lshl_b32 s58, s58, 8")
    A(f"buffer_load_ushort v{AC+2}, v{t1}, s[48:51], s57 offen sc1")
    A(f"v_add_u32 v{AC+3}, s58, v{t3}")
    A("s_waitcnt vmcnt(0)")
    A(f"v_lshlrev_b32 v{AC+2}, 16, v{AC+2}" if NH else f"v_cvt_f32_f16 v{AC+2}, v{AC+2}")
    A(f"ds_add_f32 v{AC+3}, v{AC+2}")
    A("s_waitcnt lgkmcnt(0)")
    A("s_branch G_SI")
    A("G_SN:")
    A("s_add_u32 s43, s43, 256")
    A("s_cmp_lt_u32 s43, s47")
    A("s_cbranch_scc1 G_SS")
    A("s_branch G_SC")
    A("G_SE:")
    lds_signal(A, 16, 6)
    lds_wait(A, "G_S4", 16, 12, t1)
    A(f"s_mul_i32 s43, s{SV}, 2560")
    A(f"s_add_u32 s43, s43, {LL}")
    A(f"v_lshl_add_u32 v{t0}, v{t2}, 1, s43")
    for k in range(3):
        A(f"ds_read_b128 {vr(AC+8*k,4)}, v{t0} offset:{1024*k}")
    A("s_waitcnt lgkmcnt(0)")
    A("s_branch G_FIN")

def gen_exchange(A):
    st(A, "bg")
    A("s_load_dwordx2 s[6:7], s[0:1], 0")
    A("s_load_dwordx2 s[28:29], s[0:1], 72")
    if HF:
        A("s_waitcnt lgkmcnt(0)")
    else:
        A("s_load_dwordx2 s[48:49], s[0:1], 80")
        A("s_movk_i32 s50, 256")
        A("s_mov_b32 s51, 0x20000")
        A(f"s_or_b32 s42, s{SW}, s{SV}")
        A("s_waitcnt lgkmcnt(0)")
        A("s_cbranch_scc1 X_Z")
        A(f"v_mov_b32 v{T}, 0")
        A("s_mov_b64 exec, 1")
        A(f"buffer_store_dword v{T}, off, s[48:51], 0 sc1")
        A("s_mov_b64 exec, -1")
        A("X_Z:")
    final_setup_s(A)
    A.many(final_loads())
    A("s_setprio 0")
    A("X_D:")
    A(f"s_cmp_lg_u32 s{TH}, 4")
    A("s_cbranch_scc1 X_1")
    lds_wait(A, "X_WE", 8, 4, T)
    A("s_branch X_H")
    A("X_1:")
    A(f"s_cmp_eq_u32 s{MD}, 2")
    A("s_cbranch_scc1 X_2")
    A(f"ds_read_b32 v{T}, v{MB} offset:8")
    A("s_waitcnt lgkmcnt(0)")
    A(f"v_readfirstlane_b32 s57, v{T}")
    A(f"s_cmp_ge_u32 s57, s{TH}")
    A("s_cbranch_scc1 X_H")
    e_offs(A)
    A(f"s_mov_b32 s58, {LIMIT}")
    A(f"s_cmp_eq_u32 s{MD}, 3")
    A(f"s_mov_b32 s{MD}, 2")
    A("s_cbranch_scc1 X_PE_C")
    A("X_PE_P:")
    A(f"s_lshl_b32 s45, s{SV}, 12")
    for o in range(3): A(f"s_add_u32 s{48+o}, s{42+o}, s45")
    spoll(A, "X_QE", [48, 49, 50], 3068, init=False)
    fetch_ld(A, 3, BUF)
    A("X_PE_C:")
    A(f"s_setprio {EP}")
    fetch_chk(A, 3, BUF)
    A("s_sub_u32 s58, s58, 1")
    A("s_cbranch_scc1 X_PE_X")
    A("s_cbranch_vccnz X_PE_P")
    A("X_PE_X:")
    for i in range(8):
        A(f"v_add_f32 v{BUF+POS[i]}, v{BUF+POS[i]}, v{EK+i}")
        A(f"v_add_f32 v{BUF+12+POS[i]}, v{BUF+12+POS[i]}, v{BUF+24+POS[i]}")
    for i in range(8):
        A(f"v_add_f32 v{ER+i}, v{BUF+POS[i]}, v{BUF+12+POS[i]}")
    put_le(A, T)
    A("s_setprio 0")
    st(A, "xe")
    A("X_2:")
    A(f"s_cmp_lg_u32 s{TH}, 8")
    A("s_cbranch_scc1 X_3")
    if WP: A(f"s_setprio {WP}")
    lds_wait(A, "X_WS", 8, 8, T)
    A("s_branch X_H")
    A("X_3:")
    A("s_setprio 2")
    A(f"s_xor_b32 s42, s{SW}, 1")
    A("s_lshl_b32 s42, s42, 14")
    A(f"s_add_u32 s42, s42, {WS_PS - WS_PE:#x}")
    st(A, "xs")
    if SPL:
        A(f"s_lshl_b32 s45, s{SV}, 12")
        A("s_add_u32 s48, s42, s45")
        spoll(A, "X_QP", [48], 3068)
    else:
        A("s_mov_b64 exec, 1")
        poll1(A, "X_QP", PO, "s42", T+1, 8, 3068)
    fetch(A, "X_PP", 1)
    st(A, "xp")
    A(f"ds_write_b128 v{RS}, {vr(T,4)}")
    A(f"ds_write_b128 v{RS}, {vr(T+4,4)} offset:1024")
    A(f"ds_write_b64 v{RS}, {vr(T+8,2)} offset:8192")

POS = [0, 1, 2, 4, 5, 6, 8, 9]
def e_offs(A):
    for o in range(1, 4):
        A(f"s_xor_b32 s{41+o}, s{SW}, {o}")
        A(f"s_lshl_b32 s{41+o}, s{41+o}, 14")
def fetch_ld(A, n, T):
    for o in range(n):
        for j in range(3):
            A(f"buffer_load_dwordx4 {vr(T+12*o+4*j,4)}, v{PO}, s[8:11], s{42+o} offen offset:{1024*j} sc1")
def fetch_chk(A, n, T):
    A("s_waitcnt vmcnt(0)")
    A(f"v_cmp_ne_u32 vcc, s{SN}, v{T+3}")
    for g in range(1, 3*n):
        A(f"v_cmp_ne_u32 s[56:57], s{SN}, v{T+4*g+3}")
        A("s_or_b64 vcc, vcc, s[56:57]")
def fetch(A, name, n):
    A(f"s_mov_b32 s58, {LIMIT}")
    A(f"{name}:")
    for o in range(n):
        for j in range(3):
            A(f"buffer_load_dwordx4 {vr(T+12*o+4*j,4)}, v{PO}, s[8:11], s{42+o} offen offset:{1024*j} sc1")
    A("s_waitcnt vmcnt(0)")
    A(f"v_cmp_ne_u32 vcc, s{SN}, v{T+3}")
    for g in range(1, 3*n):
        A(f"v_cmp_ne_u32 s[56:57], s{SN}, v{T+4*g+3}")
        A("s_or_b64 vcc, vcc, s[56:57]")
    A("s_sub_u32 s58, s58, 1")
    A(f"s_cbranch_scc1 {name}_X")
    A(f"s_cbranch_vccnz {name}")
    A(f"{name}_X:")

def gen_handler(A, nm):
    A(f"{nm}_H:")
    A("s_setprio 2")
    for k in range(4):
        A(f"ds_read_b128 {vr(T+8*k,4)}, v{RS} offset:{8192*k}")
        A(f"ds_read_b128 {vr(T+8*k+4,4)}, v{RS} offset:{8192*k+1024}")
    lds_signal(A, 20, 6)
    A(f"s_sub_u32 s44, s{TH}, 4")
    A(f"s_lshl_b32 s42, s{SW}, 14")
    A(f"s_mul_i32 s43, s44, {(WS_PS - WS_PE)//4:#x}")
    A("s_add_u32 s42, s42, s43")
    A("s_waitcnt lgkmcnt(5)")
    for i in range(8):
        A(f"v_add_f32 v{T+i}, v{T+i}, v{T+8+i}")
    A("s_waitcnt lgkmcnt(1)")
    for i in range(8):
        A(f"v_add_f32 v{T+16+i}, v{T+16+i}, v{T+24+i}")
    for i in range(8):
        A(f"v_add_f32 v{PK+POS[i]}, v{T+i}, v{T+16+i}")
        if i in (2, 5, 7):
            A(f"buffer_store_dwordx4 {vr(PK+4*(i//3),4)}, v{PO}, s[8:11], s42 offen offset:{1024*(i//3)} sc1")
    A(f"s_cmp_lg_u32 s{TH}, 4")
    A(f"s_cbranch_scc1 {nm}_H1")
    for i in range(8):
        A(f"v_mov_b32 v{EK+i}, v{PK+POS[i]}")
    st(A, "wE")
    A(f"{nm}_H1:")
    A(f"s_add_u32 s{TH}, s{TH}, 4")
    A(f"s_setprio {0 if nm == 'X' else GP}")
    A("s_branch X_D" if nm == "X" else "s_branch G_RET")

ER = 40
def put_le(A, t, name="X_LE"):
    A("s_cmp_lg_u32 s3, 7")
    A(f"s_cbranch_scc1 {name}")
    A(f"v_lshl_add_u32 v{t}, v0, 2, v{MB}")
    A(f"ds_write_b32 v{t}, v{ER+7} offset:{LE-MISC}")
    A(f"{name}:")

def gen_helper(A):
    A("HELP:")
    A("s_load_dwordx2 s[8:9], s[0:1], 32")
    A("s_load_dwordx4 s[28:31], s[0:1], 56")
    A("s_load_dwordx2 s[16:17], s[0:1], 80")
    A("s_memrealtime s[44:45]")
    A("v_and_b32 v1, 31, v0")
    A("v_lshrrev_b32 v2, 5, v0")
    pi_perm(A, 3, 1, 4)
    A("s_lshr_b32 s36, s3, 2")
    A("s_bfe_u32 s37, s3, 0x10001")
    A("s_and_b32 s38, s3, 1")
    A("s_cmp_eq_u32 s36, 0")
    A("s_cselect_b64 vcc, -1, 0")
    A("s_movk_i32 s39, 8064")
    if not NH: A("s_cselect_b32 s39, 0x10000, s39")
    A("v_cndmask_b32 v4, v1, v3, vcc")
    A("v_lshlrev_b32 v4, 7, v4")
    A("v_lshl_add_u32 v4, v2, 4, v4")
    A("v_lshlrev_b32 v5, 4, v2")
    A("s_lshl_b32 s40, s37, 12")
    A("v_lshlrev_b32 v6, 10, v2")
    A("v_lshl_add_u32 v6, v3, 1, v6")
    A("s_lshl_b32 s41, s38, 6")
    A("s_add_u32 s42, s41, 0x1000")
    A("s_waitcnt lgkmcnt(0)")
    A("s_movk_i32 s18, 256")
    A("s_mov_b32 s19, 0x20000")
    A("s_mul_i32 s45, s45, 0x9e3779b1")
    A("s_xor_b32 s44, s44, s45")
    A(f"s_or_b32 s{SN}, s44, 1")
    A("s_cmp_lg_u32 s3, 0")
    A("s_cbranch_scc1 H_N")
    A(f"v_mov_b32 v7, s{SN}")
    A("s_mov_b64 exec, 1")
    A("buffer_store_dword v7, off, s[16:19], 0 sc1")
    A(f"ds_write_b32 v{MB}, v7")
    A("s_mov_b64 exec, -1")
    A("H_N:")
    flag_srd(A)
    A("s_cmp_eq_u32 s36, 0")
    A("s_cselect_b32 s48, s8, s28")
    A("s_cselect_b32 s49, s9, s29")
    A("s_mov_b32 s50, 8192")
    A("s_mov_b32 s51, 0x20000")
    srd(A, 20, 30, 0, 8192)
    srd(A, 24, 4, WS_W, 16384)
    AF, A2, BF, D = 16, 32, 48, 64
    for j in range(4):
        A(f"buffer_load_dwordx4 {vr(AF+4*j,4)}, v4, s[48:51], s40 offen offset:{32*j}")
        A(f"buffer_load_dwordx4 {vr(A2+4*j,4)}, v5, s[48:51], s39 offen offset:{32*j}")
    for hi in range(2):
        for j in range(4):
            for k in range(4):
                jj = 2*k + hi
                A(f"buffer_load_ushort v{BF+4*j+k+32*hi}, v6, s[20:23], {'s41' if j < 2 else 's42'} offen offset:{(16*(j&1)+jj)*128}")
    A("s_waitcnt vmcnt(0)")
    st(A, "hn")
    for r in range(16):
        A(f"v_lshl_or_b32 v{BF+r}, v{BF+32+r}, 16, v{BF+r}")
    for r in range(16):
        A(f"v_xor_b32 v{A2+r}, 0x80008000, v{A2+r}")
    A("s_nop 1")
    for j in range(4):
        A(f"v_mfma_f32_32x32x16_bf16 {vr(D,16)}, {vr(AF+4*j,4)}, {vr(BF+4*j,4)}, {'0' if j == 0 else vr(D,16)}")
    for j in range(4):
        A(f"v_mfma_f32_32x32x16_bf16 {vr(D,16)}, {vr(A2+4*j,4)}, {vr(BF+4*j,4)}, {vr(D,16)}")
    A("s_lshl_b32 s43, s36, 13")
    A("s_lshl_b32 s44, s38, 12")
    A("s_add_u32 s43, s43, s44")
    A("s_lshl_b32 s44, s37, 11")
    A("s_add_u32 s43, s43, s44")
    A("s_nop 7")
    A("s_nop 7")
    for r in range(8):
        A(f"v_cvt_pk_bf16_f32 v{AF+r}, v{D+2*r}, v{D+2*r+1}")
    A(f"buffer_store_dwordx4 {vr(AF,4)}, v{DV}, s[24:27], s43 offen sc1")
    A(f"buffer_store_dwordx4 {vr(AF+4,4)}, v{DV}, s[24:27], s43 offen offset:1024 sc1")
    A("s_waitcnt vmcnt(0)")
    st(A, "hw")
    A("s_waitcnt lgkmcnt(0)")
    A("s_barrier")
    if HF:
        A("s_cmp_ge_u32 s3, 4")
        A("s_cbranch_scc1 H_B")
        A(f"ds_read_b32 v16, v{MB}")
        A("v_lshlrev_b32 v17, 7, v0")
        A("s_lshl_b32 s42, s3, 13")
        A(f"s_add_u32 s42, s42, {FS}")
        A("s_waitcnt lgkmcnt(0)")
        A(f"v_readfirstlane_b32 s{SN}, v16")
        A("s_cmp_eq_u32 s3, 3")
        A("s_cselect_b32 exec_hi, 0x0fffffff, -1")
        A(f"s_mov_b32 s58, {LIMIT}")
        A("H_PS:")
        A("buffer_load_dwordx4 v[20:23], v17, s[12:15], s42 offen sc1")
        A("s_waitcnt vmcnt(0)")
        for r in range(20, 24): A(f"v_xor_b32 v{r}, s{SN}, v{r}")
        A("v_or3_b32 v20, v20, v21, v22")
        A("v_or_b32 v20, v20, v23")
        A("v_cmpx_ne_u32 vcc, 0, v20")
        A("s_sub_u32 s58, s58, 1")
        A("s_cbranch_scc1 H_PX")
        A("s_cbranch_execnz H_PS")
        A("H_PX:")
        A("s_mov_b32 exec_lo, -1")
        A("s_mov_b32 exec_hi, 0")
        A("v_lshlrev_b32 v17, 9, v0")
        A("s_lshl_b32 s42, s3, 7")
        A(f"s_add_u32 s42, s42, {FB}")
        A("buffer_store_dword v16, v17, s[12:15], s42 offen sc1")
        A("H_B:")
        A("s_barrier")
        A("s_cmp_lg_u32 s3, 0")
        A("s_cbranch_scc1 FIN_X")
        A("v_mov_b32 v18, 0")
        A("s_mov_b64 exec, 1")
        A("buffer_store_dword v18, off, s[16:19], 0 sc1")
        A("s_mov_b64 exec, -1")
        A("s_branch FIN_X")
        return
    A("s_cmp_lg_u32 s3, 0")
    A("s_cbranch_scc1 FIN_X")
    A(f"s_mov_b32 s43, {FS+252*128}")
    flag_store(A, "s43", 17, 4)
    A("s_branch FIN_X")
```

```python
from common import Asm, vr, sr, srd, f2u, interleave, kernel_begin, descriptor, stamp, stamp_init, stamp_dump, PROF, LOG2E, N, E
import os
X = os.environ.get("X", "")
M16 = int(os.environ.get("M16", "1"))
NH = int(os.environ.get("NH", "1"))
DM = 242
WS_G = 0x000000
WS_H = 0x140000
WS_W = 0x280000
WS_F = 0x290000
FG, FS, FB = 0, 0x8000, 0x10000
WS_PE = 0x300000
WS_PS = 0x700000
WS_E = 0xB00000
E2 = 0x400000
NB = 250
CH = 2560
RING = 20480
STG = 4 * RING
CELL = 144
QX = STG + 256 * CELL
AL = QX + 12288
ASTR = 144
MISC = AL + 40 * ASTR
LE = MISC + 64
DUM = LE + 256
LST = DUM + 512
LL = LST + 512
MTL = LL + 12288
LDS = 163840
assert LL + 39 * 256 + 2 * 250 * 31 <= LDS, LL
HELPER = 231
LIMIT = int(os.environ.get("LIMIT", "100000"))
SW, SI, SN, SV, SHF, SP = 33, 34, 35, 39, 41, 46
KA = 2; VA = 6; IDX = 10; DV = 11
S0 = 16; KF = 64; VF = 80; O = 96; Q = 192
MB = 15

_ST = {}
for _i, _g in enumerate(os.environ.get("ST", "lnx:pg:bpub:hn,lnq:n3:bsort:hw,a3:bps,a4:bl,a5:bg,fs").split(",")):
    for _n in _g.split(":"): _ST[_n] = _i + 1
def st(A, name):
    if name in _ST: stamp(A, _ST[name])

def flag_srd(A):
    srd(A, 12, 4, WS_F, 0x14000)

def poll1(A, name, voff, soff, t, sd=12, off=0):
    A(f"s_mov_b32 s58, {LIMIT}")
    A(f"{name}:")
    A(f"buffer_load_dword v{t}, v{voff}, s[{sd}:{sd+3}], {soff} offen offset:{off} sc1")
    A("s_waitcnt vmcnt(0)")
    A(f"v_cmpx_ne_u32 vcc, s{SN}, v{t}")
    A("s_sub_u32 s58, s58, 1")
    A(f"s_cbranch_scc1 {name}_X")
    A(f"s_cbranch_execnz {name}")
    A(f"{name}_X:")
    A("s_mov_b64 exec, -1")

def spoll(A, name, soffs, off, sd=8, init=True):
    if init: A(f"s_mov_b32 s58, {LIMIT}")
    A(f"{name}:")
    for i, so in enumerate(soffs):
        A(f"s_buffer_load_dword s{(52, 53, 59)[i]}, s[{sd}:{sd+3}], s{so} offset:{off} glc")
    A("s_sub_u32 s58, s58, 1")
    A(f"s_cbranch_scc1 {name}_X")
    A("s_waitcnt lgkmcnt(0)")
    for i in range(len(soffs)):
        A(f"s_cmp_lg_u32 s{(52, 53, 59)[i]}, s{SN}")
        A(f"s_cbranch_scc1 {name}")
    A(f"{name}_X:")
    A("s_waitcnt lgkmcnt(0)")
    if not init: A("s_max_i32 s58, s58, 0")

def lds_wait(A, name, off, target, t, mask=None):
    A(f"s_mov_b32 s58, {LIMIT*8}")
    A(f"{name}:")
    if "s" in X and name.startswith("X_"): A("s_sleep 16")
    A(f"ds_read_b32 v{t}, v{MB} offset:{off}")
    A("s_waitcnt lgkmcnt(0)")
    A(f"v_readfirstlane_b32 s57, v{t}")
    A("s_sub_u32 s58, s58, 1")
    A(f"s_cbranch_scc1 {name}_X")
    if mask:
        A(f"s_and_b32 s59, s57, {mask:#x}")
    A(f"s_cmp_lt_u32 s{59 if mask else 57}, {target}")
    A(f"s_cbranch_scc1 {name}")
    A(f"{name}_X:")

def lds_signal(A, off, val):
    A("s_mov_b64 exec, 1")
    A(f"ds_add_u32 v{MB}, v{val} offset:{off}")
    A("s_mov_b64 exec, -1")

def flag_store(A, soff, t, n=1):
    A(f"v_mov_b32 v{t}, s{SN}")
    A("s_mov_b64 exec, 1")
    for i in range(n):
        A(f"buffer_store_dword v{t}, off, s[12:15], {soff} offset:{128*i} sc1")
    A("s_mov_b64 exec, -1")

def pi_perm(A, d, n, t):
    A(f"v_and_b32 v{d}, 0x13, v{n}")
    A(f"v_and_b32 v{t}, 4, v{n}")
    A(f"v_lshl_or_b32 v{d}, v{t}, 1, v{d}")
    A(f"v_and_b32 v{t}, 8, v{n}")
    A(f"v_lshrrev_b32 v{t}, 1, v{t}")
    A(f"v_or_b32 v{d}, v{d}, v{t}")

def frag_addrs(A, lane, sbase, t0, t1):
    A(f"v_and_b32 v{t0}, 2, v{lane}")
    A(f"v_lshlrev_b32 v{t0}, 1, v{t0}")
    A(f"v_bfe_u32 v{t1}, v{lane}, 2, 2")
    if M16: A(f"v_and_b32 v{t1}, 2, v{t1}")
    A(f"v_or_b32 v{t0}, v{t0}, v{t1}")
    A(f"v_lshrrev_b32 v{t1}, 5, v{lane}")
    A(f"v_xor_b32 v{t0}, v{t0}, v{t1}")
    A(f"v_and_b32 v{t1}, 31, v{lane}")
    A(f"v_lshlrev_b32 v{t1}, 7, v{t1}")
    A(f"v_lshl_add_u32 v{t0}, v{t0}, 4, v{t1}")
    A(f"v_add_u32 v{KA}, s{sbase}, v{t0}")
    for j in range(1, 4):
        A(f"v_xor_b32 v{KA+j}, {32*j}, v{KA}")
    A(f"v_lshrrev_b32 v{t0}, 5, v{lane}")
    A(f"v_bfe_u32 v{t1}, v{lane}, 2, 2")
    A(f"v_lshl_add_u32 v{VA}, v{t0}, 3, v{t1}")
    A(f"v_lshlrev_b32 v{VA}, 7, v{VA}")
    A(f"v_bfe_u32 v{t1}, v{lane}, 4, 1")
    A(f"v_xor_b32 v{t0}, v{t0}, v{t1}")
    A(f"v_lshl_add_u32 v{VA}, v{t0}, 5, v{VA}")
    A(f"v_bfe_u32 v{t0}, v{lane}, 3, 1")
    A(f"v_lshl_add_u32 v{VA}, v{t0}, 6, v{VA}")
    A(f"v_and_b32 v{t0}, 3, v{lane}")
    A(f"v_lshl_add_u32 v{VA}, v{t0}, 3, v{VA}")
    A(f"v_add_u32 v{VA}, s{sbase}, v{VA}")
    A(f"v_xor_b32 v{VA+1}, {0 if M16 else 16}, v{VA}")
    A(f"v_add_u32 v{VA+1}, 0x200, v{VA+1}")
    A(f"v_xor_b32 v{VA+2}, 64, v{VA}")
    A(f"v_xor_b32 v{VA+3}, 64, v{VA+1}")
    A(f"v_mov_b32 v{IDX}, 0xdddddddd")

def dma_ld(i):
    return f"buffer_load_dwordx4 v{DM+(i&1) if NH else DV}, s[8:11], s37 offen offset:{1024*i}{'' if 'n' in X else ' sc1'} lds"
def dma_addr(A, t):
    if not NH: return
    A(f"v_and_b32 v{t}, 16, v0")
    A(f"v_lshlrev_b32 v{t}, 2, v{t}")
    A(f"v_xor_b32 v{DM}, v{t}, v{DV}")
    if not M16:
        A(f"v_and_b32 v{t}, 32, v0")
        A(f"v_lshrrev_b32 v{t}, 1, v{t}")
        A(f"v_xor_b32 v{DM}, v{t}, v{DM}")
    A(f"v_xor_b32 v{DM+1}, 32, v{DM}")
def kread(j, slot):
    return f"ds_read_b128 {vr(KF+4*j,4)}, v{KA+j} offset:{slot*4096}"
def vread(ks, dh, slot):
    d = VF + 4*(2*ks + dh)
    return [f"ds_read_b64_tr_b16 {vr(d+2*i,2)}, v{VA+2*dh+i} offset:{slot*4096+2048*ks}" for i in range(2)]
def qk(sb, j, t):
    s = S0 + 16*sb
    c = "0" if j == 0 else vr(s, 16)
    return f"v_mfma_f32_32x32x16_bf16 {vr(s,16)}, {vr(KF+4*j,4)}, {vr(Q+16*t+4*j,4)}, {c}"
def pv(sb, t, ks, dh):
    o = O + 32*t + 16*dh
    return f"v_smfmac_f32_32x32x32_bf16 {vr(o,16)}, {vr(VF+4*(2*ks+dh),4)}, {vr(S0+16*sb+8*ks,8)}, v{IDX}"

D2 = KA + 2
def frag16(A, lane, sbase, t0, t1):
    A(f"v_lshrrev_b32 v{t0}, 4, v{lane}")
    A(f"v_and_b32 v{t1}, 15, v{lane}")
    A(f"v_lshlrev_b32 v{D2}, 4, v{t1}")
    A(f"v_lshl_add_u32 v{D2}, v{t0}, 9, v{D2}")
    A(f"v_lshlrev_b32 v{KA}, 7, v{t1}")
    A(f"v_lshl_add_u32 v{KA}, v{t0}, 4, v{KA}")
    A(f"v_and_b32 v{t1}, 2, v{lane}")
    A(f"v_lshlrev_b32 v{t1}, 5, v{t1}")
    A(f"v_xor_b32 v{KA}, v{KA}, v{t1}")
    A(f"v_and_b32 v{t1}, 8, v{lane}")
    A(f"v_lshlrev_b32 v{KA+1}, 2, v{t1}")
    A(f"v_xor_b32 v{KA}, v{KA}, v{KA+1}")
    A(f"v_add_u32 v{KA}, s{sbase}, v{KA}")
    A(f"v_xor_b32 v{KA+1}, 64, v{KA}")
    A(f"v_lshlrev_b32 v{VA}, 3, v{t1}")
    A(f"v_lshl_add_u32 v{VA}, v{t0}, 10, v{VA}")
    A(f"v_and_b32 v{t0}, 1, v{t0}")
    A(f"v_lshl_add_u32 v{VA}, v{t0}, 5, v{VA}")
    A(f"v_bfe_u32 v{t0}, v{lane}, 2, 2")
    A(f"v_lshl_add_u32 v{VA}, v{t0}, 7, v{VA}")
    A(f"v_and_b32 v{t0}, 3, v{lane}")
    A(f"v_lshl_add_u32 v{VA}, v{t0}, 3, v{VA}")
    A(f"v_add_u32 v{VA}, s{sbase}, v{VA}")
    for db in range(1, 4):
        A(f"v_xor_b32 v{VA+db}, {32*db}, v{VA}")
    A(f"v_mov_b32 v{IDX}, 0xdddddddd")
def kread16(j, slot):
    return f"ds_read_b128 {vr(KF+4*j,4)}, v{KA+(j>>1)} offset:{slot*4096+2048*(j&1)}"
def vread16(slot):
    return [f"ds_read_b64_tr_b16 {vr(VF+4*db+2*i,2)}, v{VA+db} offset:{slot*4096+512*i}" for db in range(4) for i in range(2)]
def qk16(sb, t):
    L = []
    for j in range(4):
        for qh in range(2):
            s = S0 + 16*sb + 8*qh + 4*(j & 1)
            L.append(f"v_mfma_f32_16x16x32_bf16 {vr(s,4)}, {vr(KF+4*j,4)}, {vr(Q+16*t+8*qh+4*(j>>1),4)}, {'0' if j < 2 else vr(s,4)}")
    return L
def pv16(sb, t, qh, db):
    return f"v_smfmac_f32_16x16x64_bf16 {vr(O+32*t+8*db+4*qh,4)}, {vr(VF+4*db,4)}, {vr(S0+16*sb+8*qh,8)}, v{IDX}"
def unit16(sp, tp, sn, tn, sc, tc):
    return [pv16(sp, tp, 0, 2), pv16(sp, tp, 0, 3)] + [pv16(sp, tp, 1, d) for d in range(4)] + \
           (qk16(sn, tn) if tn is not None else [None]*8) + [pv16(sc, tc, 0, 0), pv16(sc, tc, 0, 1)]
```

```python
from fc import *
WF = Q + 16
XF = S0 + 16
ONE = 240
XO, WO, RA = 12, 13, 14

def xhalf_sum(A, x, t0, t1):
    A(f"v_mov_b32 v{t0}, v{x}")
    A(f"v_mov_b32 v{t1}, v{x}")
    A("s_nop 1")
    A(f"v_permlane32_swap_b32 v{t0}, v{t1}")
    A("s_nop 1")
    A(f"v_add_f32 v{x}, v{t0}, v{t1}")
def bfround(A, x):
    A(f"v_cvt_pk_bf16_f32 v{x}, v{x}, v{x}")
    A(f"v_lshlrev_b32 v{x}, 16, v{x}")

P8 = int(os.environ.get("P8", "1"))
E4 = int(os.environ.get("E4", "0"))
WL = int(os.environ.get("WL", "0"))
PF = int(os.environ.get("PF", "0"))
N0 = int(os.environ.get("N0", "2"))
WD = int(os.environ.get("WD", "1"))
LX = (200, 140)
def ln8_load(A):
    A(f"s_mul_i32 s42, s{SW}, {40*128}")
    A(f"s_lshl_b32 s43, s{SV}, 8")
    A("s_lshl2_add_u32 s44, s43, s42")
    A("s_add_u32 s43, s43, s42")
    A("s_add_u32 s43, s43, 0x1000")
    A(f"v_add_u32 v{LX[0]+12}, s44, v{DV}")
    A(f"v_add_u32 v{LX[1]+12}, s43, v{DV}")
    A(f"s_mov_b32 s18, {N*128}")
    A("s_mov_b32 s19, 0x20000")
    A("s_waitcnt lgkmcnt(0)")
    A(f"buffer_load_dwordx4 {vr(LX[0],4)}, v{LX[0]+12}, s[16:19], 0 offen")
    A("s_mov_b64 exec, 0xffff")
    A(f"buffer_load_dwordx4 {vr(LX[1],4)}, v{LX[1]+12}, s[16:19], 0 offen")
    A("s_mov_b64 exec, -1")
def ln8(A, sd):
    def one(L):
        A = Asm(); F = L + 4; T0 = L + 14
        p0, p1 = vr(T0, 2), vr(T0+2, 2)
        def red():
            A(f"v_pk_add_f32 {p0}, {p0}, {p1}")
            A(f"v_add_f32 v{T0}, v{T0}, v{T0+1}")
            for m in ("quad_perm:[1,0,3,2]", "quad_perm:[2,3,0,1]", "row_half_mirror"):
                A("s_nop 0")
                A(f"v_add_f32_dpp v{T0}, v{T0}, v{T0} {m} row_mask:0xf bank_mask:0xf")
        for i in range(4):
            A(f"v_lshlrev_b32 v{F+2*i}, 16, v{L+i}")
            A(f"v_and_b32 v{F+2*i+1}, 0xffff0000, v{L+i}")
        A(f"v_pk_add_f32 {p0}, {vr(F,2)}, {vr(F+2,2)}")
        A(f"v_pk_add_f32 {p1}, {vr(F+4,2)}, {vr(F+6,2)}")
        red()
        A(f"v_mul_f32 v{T0}, {f2u(-1.0/64):#x}, v{T0}")
        for i in range(4):
            A(f"v_pk_add_f32 {vr(F+2*i,2)}, {vr(F+2*i,2)}, {p0} op_sel_hi:[1,0]")
        A(f"v_pk_mul_f32 {p0}, {vr(F,2)}, {vr(F,2)}")
        A(f"v_pk_mul_f32 {p1}, {vr(F+2,2)}, {vr(F+2,2)}")
        A(f"v_pk_fma_f32 {p0}, {vr(F+4,2)}, {vr(F+4,2)}, {p0}")
        A(f"v_pk_fma_f32 {p1}, {vr(F+6,2)}, {vr(F+6,2)}, {p1}")
        red()
        A(f"v_mul_f32 v{T0}, {f2u(1.0/64):#x}, v{T0}")
        bfround(A, T0)
        A(f"v_add_f32 v{T0}, {f2u(1e-5):#x}, v{T0}")
        bfround(A, T0)
        A(f"v_sqrt_f32 v{T0}, v{T0}")
        A("s_nop 0")
        bfround(A, T0)
        A(f"v_rcp_f32 v{T0}, v{T0}")
        A("s_nop 0")
        for i in range(4):
            A(f"v_pk_mul_f32 {vr(F+2*i,2)}, {vr(F+2*i,2)}, {p0} op_sel_hi:[1,0]")
        A(f"v_cndmask_b32 v{F+7}, v{F+7}, 1.0, vcc")
        for i in range(4):
            A(f"v_cvt_pk_bf16_f32 v{L+i}, v{F+2*i}, v{F+2*i+1}")
        return [x.strip() for x in A.L]
    for x, y in zip(one(LX[0]), one(LX[1])):
        A(x)
        if not x.startswith("s_nop"): A(y)
    A(f"buffer_store_dwordx4 {vr(LX[0],4)}, v{LX[0]+12}, s[{sd}:{sd+3}], 0 offen sc1")
    A("s_mov_b64 exec, 0xffff")
    A(f"buffer_store_dwordx4 {vr(LX[1],4)}, v{LX[1]+12}, s[{sd}:{sd+3}], 0 offen sc1")
    A("s_mov_b64 exec, -1")

def gen_ln_q(A):
    A("s_load_dwordx2 s[16:17], s[0:1], 0")
    A("v_and_b32 v3, 31, v0")
    A("v_lshrrev_b32 v4, 5, v0")
    A(f"s_lshr_b32 s42, s3, 1")
    A(f"s_xor_b32 s42, s{SW}, s42")
    A("s_mul_i32 s42, s42, 40")
    A(f"s_and_b32 s43, s{SW}, -4")
    A("s_mul_i32 s43, s43, 40")
    A("s_add_u32 s43, s43, 32")
    A("v_lshrrev_b32 v7, 3, v3")
    A("v_and_b32 v8, 7, v3")
    A("v_mad_u32_u24 v8, v7, 40, v8")
    A("s_cmp_eq_u32 s3, 1")
    A("s_cselect_b32 s42, s43, s42")
    A("s_cselect_b64 vcc, -1, 0")
    A("v_cndmask_b32 v8, v3, v8, vcc")
    A("v_add_u32 v8, s42, v8")
    A("v_lshlrev_b32 v5, 7, v8")
    A("v_lshl_add_u32 v5, v4, 4, v5")
    A(f"s_mov_b32 s18, {N*128}")
    A("s_mov_b32 s19, 0x20000")
    Xr = 208; F = 96; HB = 192; MT = 32; QT = 64
    A("s_waitcnt lgkmcnt(0)")
    for j in range(4):
        A(f"buffer_load_dwordx4 {vr(Xr+4*j,4)}, v5, s[16:19], 0 offen offset:{32*j}")
    st(A, "lni")
    A("v_cmp_eq_u32 s[30:31], 1, v4")
    A("s_mov_b32 s32, 0xffff0000")
    A(f"s_lshl_b32 s42, s3, 12")
    A(f"s_add_u32 s42, s42, {QX}")
    A(f"v_add_u32 v245, s42, v{DV}")
    A(f"v_add_u32 v244, {MTL}, v{DV}")
    attn_setup(A)
    for r in range(O + 32, O + 96, 2):
        A(f"v_mov_b64 {vr(r,2)}, 0")
    A("s_barrier")
    A("s_waitcnt vmcnt(0)")
    st(A, "lnx")
    T0 = 228
    for i in range(16):
        A(f"v_lshlrev_b32 v{F+2*i}, 16, v{Xr+i}")
        A(f"v_and_b32 v{F+2*i+1}, s32, v{Xr+i}")
    p0, p1 = vr(T0, 2), vr(T0+2, 2)
    A(f"v_pk_add_f32 {p0}, {vr(F,2)}, {vr(F+2,2)}")
    A(f"v_pk_add_f32 {p1}, {vr(F+4,2)}, {vr(F+6,2)}")
    for i in range(4, 16, 2):
        A(f"v_pk_add_f32 {p0}, {p0}, {vr(F+2*i,2)}")
        A(f"v_pk_add_f32 {p1}, {p1}, {vr(F+2*i+2,2)}")
    A(f"v_pk_add_f32 {p0}, {p0}, {p1}")
    A(f"v_add_f32 v{T0}, v{T0}, v{T0+1}")
    xhalf_sum(A, T0, T0+2, T0+3)
    A(f"v_mul_f32 v{T0}, {f2u(-1.0/64):#x}, v{T0}")
    A(f"v_mov_b32 v{T0+1}, v{T0}")
    for i in range(16):
        A(f"v_pk_add_f32 {vr(F+2*i,2)}, {vr(F+2*i,2)}, {p0}")
    def sumsq(B):
        A(f"v_pk_mul_f32 {p0}, {vr(B,2)}, {vr(B,2)}")
        A(f"v_pk_mul_f32 {p1}, {vr(B+2,2)}, {vr(B+2,2)}")
        for i in range(2, 16, 2):
            A(f"v_pk_fma_f32 {p0}, {vr(B+2*i,2)}, {vr(B+2*i,2)}, {p0}")
            A(f"v_pk_fma_f32 {p1}, {vr(B+2*i+2,2)}, {vr(B+2*i+2,2)}, {p1}")
        A(f"v_pk_add_f32 {p0}, {p0}, {p1}")
        A(f"v_add_f32 v{T0}, v{T0}, v{T0+1}")
        xhalf_sum(A, T0, T0+2, T0+3)
    sumsq(F)
    A(f"v_mul_f32 v{T0}, {f2u(1.0/64):#x}, v{T0}")
    bfround(A, T0)
    A(f"v_add_f32 v{T0}, {f2u(1e-5):#x}, v{T0}")
    bfround(A, T0)
    A(f"v_sqrt_f32 v{T0}, v{T0}")
    A("s_nop 0")
    bfround(A, T0)
    A(f"v_rcp_f32 v{T0}, v{T0}")
    A("s_nop 0")
    A(f"v_mov_b32 v{T0+1}, v{T0}")
    for i in range(16):
        A(f"v_pk_mul_f32 {vr(F+2*i,2)}, {vr(F+2*i,2)}, {p0}")
    for i in range(16):
        A(f"v_cvt_pk_bf16_f32 v{HB+i}, v{F+2*i}, v{F+2*i+1}")
    for r in range(O, O + 32, 2):
        A(f"v_mov_b64 {vr(r,2)}, 0")
    st(A, "lnv")
    if WL: A("s_barrier")
    lds_wait(A, "L_WM", 44, 1, T0)
    for q in range(8):
        A(f"ds_read_b128 {vr(MT+4*q,4)}, v244 offset:{1024*q}")
    A("s_waitcnt lgkmcnt(0)")
    st(A, "lnw")
    for b in range(2):
        for j in range(4):
            c = "0" if j == 0 else vr(QT+16*b, 16)
            A(f"v_mfma_f32_32x32x16_bf16 {vr(QT+16*b,16)}, {vr(MT+16*b+4*j,4)}, {vr(HB+4*j,4)}, {c}")
    A("s_nop 3")
    A("s_nop 7")
    sumsq(QT)
    A(f"v_sqrt_f32 v{T0}, v{T0}")
    A(f"v_mov_b32 v{T0+2}, v{QT+31}")
    A(f"v_mov_b32 v{T0+3}, v{QT+31}")
    A(f"s_mov_b32 s42, {f2u(LOG2E/8):#x}")
    A(f"s_mov_b32 s43, {f2u(LOG2E/8):#x}")
    A(f"v_permlane32_swap_b32 v{T0+2}, v{T0+3}")
    A(f"v_mul_f32 v{T0}, {f2u(-LOG2E):#x}, v{T0}")
    A(f"v_add_f32 v{T0}, {f2u(64.0):#x}, v{T0}")
    A(f"v_mul_f32 v{T0+2}, {f2u(-LOG2E/8):#x}, v{T0+3}")
    A(f"v_mov_b32 v{T0+3}, v{T0+2}")
    for i in range(16):
        A(f"v_pk_fma_f32 {vr(QT+2*i,2)}, {vr(QT+2*i,2)}, s[42:43], {p1}")
    A(f"v_cndmask_b32 v{QT+31}, v{QT+31}, v{T0}, s[30:31]")
    for i in range(16):
        A(f"v_cvt_pk_bf16_f32 v{Xr+i}, v{QT+2*i}, v{QT+2*i+1}")
    for j in range(4):
        A(f"ds_write_b128 v245, {vr(Xr+4*j,4)} offset:{1024*j}")
    lds_signal(A, 24, ONE)
    st(A, "lnc")
    if not NH:
        A("s_waitcnt vmcnt(0)")
        lds_signal(A, 36, ONE)
    st(A, "lnq")

def gen_w3(A):
    A("s_load_dwordx4 s[28:31], s[0:1], 40")
    A("v_and_b32 v3, 31, v0")
    A("v_lshrrev_b32 v4, 5, v0")
    pi_perm(A, 6, 3, 7)
    A("v_lshlrev_b32 v6, 7, v6")
    A("v_lshl_add_u32 v6, v4, 4, v6")
    A(f"v_add_u32 v244, {MTL}, v{DV}")
    A("s_waitcnt lgkmcnt(0)")
    if PF:
        A("s_bfe_u32 s42, s2, 0x50003")
        A("s_lshl_b32 s42, s42, 8")
        for i in range(2):
            A(f"s_load_dword s{56+i}, s[28:29], s42 offset:{128*i}")
            A(f"s_load_dword s{58+i}, s[30:31], s42 offset:{128*i}")
    A("s_mov_b64 s[64:65], s[28:29]" if not PROF else "s_mov_b64 s[80:81], s[28:29]")
    A("v_mov_b32 v245, v6")
    attn_setup(A)
    for r in range(O, O + 32, 2):
        A(f"v_mov_b64 {vr(r,2)}, 0")
    WS0 = 80 if PROF else 64
    A(f"s_movk_i32 s{WS0+2}, 0x2000")
    A(f"s_mov_b32 s{WS0+3}, 0x20000")
    srd(A, 56, 30, 0, 8192)
    A("s_movk_i32 s43, 0x1000")
    A("s_barrier")
    if WL: A("s_barrier")
    WQ = 32; WK = 64; M = 128; MT = 192
    if WD:
        A("v_lshrrev_b32 v16, 3, v0")
        A("v_lshlrev_b32 v16, 4, v16")
        A(f"v_xor_b32 v16, v16, v{DV}")
        for m, sd in enumerate((WS0, 56)):
            for a in range(2):
                A(f"s_mov_b32 m0, s{48+2*m+a}")
                A("s_nop 0")
                for i in range(4):
                    A(f"buffer_load_dwordx4 v16, s[{sd}:{sd+3}], {'0' if a == 0 else 's43'} offen offset:{1024*i} lds")
        A("v_bfe_u32 v16, v245, 7, 3")
        A("v_lshlrev_b32 v16, 4, v16")
        A("v_xor_b32 v16, v16, v245")
        A("v_add_u32 v16, s36, v16")
        for j in range(1, 4): A(f"v_xor_b32 v{16+j}, {32*j}, v16")
        A("s_waitcnt vmcnt(0)")
        for j in range(4):
            for m in range(4):
                A(f"ds_read_b128 {vr(WQ+16*m+4*j,4)}, v{16+j} offset:{4096*m}")
        A("s_waitcnt lgkmcnt(0)")
    else:
        for a in range(2):
            so = "0" if a == 0 else "s43"
            for j in range(4):
                A(f"buffer_load_dwordx4 {vr(WQ+16*a+4*j,4)}, v245, s[{WS0}:{WS0+3}], {so} offen offset:{32*j}")
            for j in range(4):
                A(f"buffer_load_dwordx4 {vr(WK+16*a+4*j,4)}, v245, s[56:59], {so} offen offset:{32*j}")
        A("s_waitcnt vmcnt(0)")
    st(A, "x3")
    for j in range(4):
        for a in range(2):
            for b in range(2):
                d = M + 32*b + 16*a
                c = "0" if j == 0 else vr(d, 16)
                A(f"v_mfma_f32_32x32x16_bf16 {vr(d,16)}, {vr(WQ+16*a+4*j,4)}, {vr(WK+16*b+4*j,4)}, {c}")
    A("s_nop 7")
    A("s_nop 3")
    for a in range(2):
        for b in range(2):
            for j in range(2*a, 2*a+2):
                s = M + 32*b + 16*a + 8*(j & 1)
                for k in range(4):
                    A(f"v_cvt_pk_bf16_f32 v{MT+16*b+4*j+k}, v{s+2*k}, v{s+2*k+1}")
                A(f"ds_write_b128 v244, {vr(MT+16*b+4*j,4)} offset:{1024*(4*b+j)}")
    lds_signal(A, 44, ONE)
    st(A, "m3")
    for r in range(O + 32, O + 96, 2):
        A(f"v_mov_b64 {vr(r,2)}, 0")

DS = int(os.environ.get("DS", "0"))
def emit_step(A, M, pre, post, sb):
    for g in range(8):
        A.many(pre[g])
        if M[g]: A(M[g])
        A.many(post[g])
        s = S0 + 16*sb + 2*g
        A(f"v_exp_f32 v{s}, v{s}")
        if g == 7: A.many(pre[8])
        A(f"v_exp_f32 v{s+1}, v{s+1}")

def gen_loop(A, tl, iters, name):
    T = len(tl)
    A(f"s_mov_b32 s38, {iters-1}")
    A(".p2align 6")
    A(f"{name}:")
    if PROF:
        for it in range(1, iters):
            A(f"s_cmp_lg_u32 s38, {iters-1-it}")
            A(f"s_cbranch_scc1 {name}_s{it}")
            st(A, f"i{T}{it}")
            A(f"{name}_s{it}:")
    U = 5*T
    for u in range(U):
        k, t = divmod(u, T)
        tp = tl[(u - 1) % T]; tn = tl[(u + 1) % T]; tc = tl[t]
        M = [pv(tp, tp, 0, 1), pv(tp, tp, 1, 0), pv(tp, tp, 1, 1)] + [qk(tn, j, tn) for j in range(4)] + [pv(tc, tc, 0, 0)]
        pre = [[] for _ in range(9)]
        post = [[] for _ in range(8)]
        if t == 0:
            vs = vread(0, 0, k)[1:] + vread(0, 1, k) + vread(1, 0, k) + vread(1, 1, k)
            for g in range(7):
                post[g].append(vs[g])
            pre[7].append(f"s_waitcnt lgkmcnt({2 if T > 2 else 5})")
        if t == 1:
            pre[2].append("s_waitcnt vmcnt(12) lgkmcnt(0)" if T == 3 else "s_waitcnt lgkmcnt(0)")
            pre[(1 if DS else 3) if T == 2 else 5].append(f"s_mov_b32 m0, s{48+k}")
            if k == 3 and T == 3: post[0].append(f"ds_read_b32 v{ONE+1}, v{MB} offset:36")
        if t == T - 2:
            if T == 2:
                pre[3].append(f"s_waitcnt vmcnt({11 if DS else 12})")
            for j in range(4):
                post[3+j].append(kread(j, (k + 1) % 5))
        if t == T - 1:
            if T == 3:
                pre[3].append("s_waitcnt lgkmcnt(0)")
            for j in range(0 if DS else 4):
                post[3+j].append(dma_ld(j))
            if not DS: pre[7].append("s_add_u32 s37, s37, s45")
            post[7] += vread(0, 0, (k + 1) % 5)[:1]
        if DS:
            pos = [(1, 7), (2, 5), (0, 3), (1, 1)] if T == 3 else [(1, 2), (1, 6), (0, 2), (0, 7)]
            for j, (a, b) in enumerate(pos):
                if a == t: post[b].append(dma_ld(j))
            if t == 1: (post[2] if T == 3 else post[0]).append("s_add_u32 s37, s37, s45")
        if u == U - 1:
            pre[8].append("s_sub_u32 s38, s38, 1")
        if "w" in X:
            pre = [[x.replace("vmcnt(12)", "vmcnt(63)") for x in p] for p in pre]
        if "l" in X:
            import re
            pre = [[re.sub(r"lgkmcnt\(\d+\)", "lgkmcnt(15)", x) for x in p] for p in pre]
        emit_step(A, M, pre, post, tc)
    A(f"s_cbranch_scc0 {name}")

W2 = int(os.environ.get("W2", "1"))
ORD = int(os.environ.get("ORD", "0"))
PK2 = int(os.environ.get("PK2", "3"))
def gen_loop16(A, tl, iters, name):
    T = len(tl)
    A(f"s_mov_b32 s38, {iters-1}")
    A(".p2align 6")
    A(f"{name}:")
    U = 5*T
    for u in range(U):
        k, t = divmod(u, T)
        tp = tl[(u - 1) % T]; tn = tl[(u + 1) % T]; tc = tl[t]
        M = unit16(tp, tp, tn, tn, tc, tc)
        pre = [[] for _ in range(17)]
        post = [[] for _ in range(16)]
        kk = 4 if T == 2 else 0
        if t == 0:
            for i, v in enumerate(vread16(k)): post[2+i].append(v)
            pre[14].append(f"s_waitcnt lgkmcnt({kk + 4*W2})")
        if t == 1:
            if W2: pre[0].append(f"s_waitcnt lgkmcnt({kk})")
            post[1].append(f"s_mov_b32 m0, s{48+k}")
            if k == 3 and T == 3: post[0].append(f"ds_read_b32 v{ONE+1}, v{MB} offset:36")
        if t == T - 2:
            post[9].append("s_waitcnt vmcnt(12)")
            for j in range(4):
                post[10+j].append(kread16(j, (k + 1) % 5))
        if t == T - 1:
            pre[6].append("s_waitcnt lgkmcnt(0)")
            for j in range(4):
                post[7+2*j].append(dma_ld(j))
            post[14].append("s_add_u32 s37, s37, s45")
        if u == U - 1:
            post[15].append("s_sub_u32 s38, s38, 1")
        if PK2 >= 3:
            pre = [[] for _ in range(17)]; post = [[] for _ in range(16)]
            if t == 0:
                for i, v in enumerate(vread16(k)): post[2 + (i >> 1)].append(v)
                post[13].append("s_waitcnt lgkmcnt(0)" if T == 3 else "s_waitcnt vmcnt(12) lgkmcnt(0)")
            if t == 1:
                post[0].append(f"s_mov_b32 m0, s{48+k}")
                if k == 3 and T == 3: post[0].append(f"ds_read_b32 v{ONE+1}, v{MB} offset:36")
                for j in range(4): post[(1 + j) if PK2 == 3 else (1 + 2*(j >> 1))].append(dma_ld(j))
                post[5].append("s_add_u32 s37, s37, s45")
                if T == 3: post[5].append("s_waitcnt vmcnt(16)")
            if t == T - 2:
                for j in range(4): post[14 + (j >> 1)].append(kread16(j, (k + 1) % 5))
            if t == T - 1: post[5].append("s_waitcnt lgkmcnt(0)")
            if u == U - 1: post[14].append("s_sub_u32 s38, s38, 1")
        elif PK2:
            pre = [[] for _ in range(17)]; post = [[] for _ in range(16)]
            if t == 0:
                for i, v in enumerate(vread16(k)): post[2 + PK2*(i >> 1)].append(v)
                post[13].append(f"s_waitcnt lgkmcnt({kk})")
            if t == 1 and k == 3 and T == 3: post[0].append(f"ds_read_b32 v{ONE+1}, v{MB} offset:36")
            if t == T - 2:
                kr = [kread16(j, (k + 1) % 5) for j in range(4)]
                post[9] = ["s_waitcnt vmcnt(12)", kr[0]]
                post[11] = kr[1:3]
                post[13] = [kr[3]] + post[13]
                if T == 3: post[13].append(f"s_mov_b32 m0, s{48+k}")
            if t == T - 1:
                post[5] = ["s_waitcnt lgkmcnt(0)"] + ([f"s_mov_b32 m0, s{48+k}"] if T == 2 else [dma_ld(0)])
                post[7] = [dma_ld(1), dma_ld(2)]
                post[9] = [dma_ld(3)] + ([dma_ld(0)] if T == 2 else ["s_add_u32 s37, s37, s45"])
                if T == 2: post[11] = ["s_add_u32 s37, s37, s45"]
            if u == U - 1: post[11].append("s_sub_u32 s38, s38, 1")
        if "d" in X: post = [[x for x in p if "buffer_load" not in x] for p in post]
        if "r" in X: post = [[x for x in p if "ds_read_b" not in x or "b32" in x] for p in post]
        for h in range(16):
            r = S0 + 16*tc + h
            ex = f"v_exp_f32{'_e64' if 'e' in X else ''} v{r}, v{r}"
            if ORD == 0:
                cv = [] if not DP or h & 1 else [cvt16(tp, 7) if h == 0 else cvt16(tc, h//2 - 1)]
                A.many(pre[h]); A(M[h]); A.many(post[h])
                if DP == 1: A.many(cv)
                A(ex)
                if DP == 2: A.many(cv)
            elif ORD == 1:
                A.many(pre[h]); A(M[h]); A(ex); A.many(post[h])
            elif h & 1:
                A.many(pre[h-1] + pre[h]); A(M[h-1]); A.many(post[h-1]); A(M[h]); A.many(post[h])
                A(ex.replace(f"v{r}", f"v{r-1}")); A(ex)
    A(f"s_cbranch_scc0 {name}")

def dump16(t):
    return [f"ds_write_b128 v{RA}, {vr(O+32*t+4*q,4)} offset:{2048*(q>>1)+256*(q&1)}" for q in range(8)]

def gen_t16(A):
    seq = [(int(w[1:]), 0 if w[0] == "O" else 2) for w in SEQS[os.environ.get("SEQ", "2")].split()]
    n = len(seq); P = [a for a, _ in seq]; last = max(P)
    ms = max(i for i in range(n) if seq[i][1] == 2)
    assert P[0] == 35 and P[1] == 35
    L = []
    def ins(s, tag=None): L.append((s, tag))
    def wait(l=None, v=None): L.append(("WAIT", (l, v)))
    pre_v = [f"D{k}" for k in (36, 37, 38, 39) for _ in range(4)]
    ins("s_add_u32 s37, s37, s47")
    dl = dump16(2); fl = final_loads()
    if PK2 >= 3: dl = dl[0::2] + dl[1::2]
    newv = lambda i: i == 0 or P[i] != P[i-1]
    nd = 40
    for i in range(n):
        sb = 0 if i % 2 == 0 else 2; so = 2 - sb
        tp = 2 if i == 0 else seq[i-1][1]
        M = unit16(so, tp, so, seq[i+1][1] if i + 1 < n else None, sb, seq[i][1])
        vs = vread16(P[i] % 5)
        rk = i + 2 < n and P[i+2] != P[i+1]
        free = nd <= last and all(not (P[j] == nd - 5 and newv(j)) for j in range(i, n))
        for h in range(16):
            if PK2 >= 3:
                if M[h]: ins(M[h])
                if h == 0 and free: ins(f"s_mov_b32 m0, s{48+nd%5}")
                if 2 <= h < 6 and newv(i): ins(vs[2*h-4], f"W{i}"); ins(vs[2*h-3], f"W{i}")
                if 1 <= h <= 4 and free: ins(dma_ld(h-1), f"D{nd}")
                if h == 5 and free: ins("s_add_u32 s37, s37, s45")
                if h == 5 and i + 1 < n: wait(l=[f"K{i+1}", f"C{i-1}"])
                if h == 13 and (rk or newv(i)): wait(l=[f"W{i}"] if newv(i) else None, v=[f"D{P[i+2]}"] if rk else None)
                if h >= 14 and rk:
                    for j in (2*h-28, 2*h-27): ins(kread16(j, P[i+2] % 5), f"K{i+2}")
                if i >= ms + 2 and h in (0, 1) and fl:
                    ins(fl.pop(0), "F")
                    if fl: ins(fl.pop(0), "F")
                if i == ms and h == 0: ins(f"ds_read_b32 v{ONE+1}, v{MB} offset:20", f"C{i}")
                if i == ms and h == 6: wait(l=[f"C{i}"]); ins(f"v_readfirstlane_b32 s57, v{ONE+1}")
                if i == ms and h == 8:
                    ins("s_cmp_lt_u32 s57, 4"); ins("s_cbranch_scc1 A_WC"); ins("A_WR:")
                if dl and (i, h) >= (ms + 1, 6):
                    ins(dl.pop(0), "X")
                    if not dl:
                        ins("s_mov_b64 exec, 1"); ins(f"ds_add_u32 v{MB}, v{ONE} offset:8", "X"); ins("s_mov_b64 exec, -1")
            else:
                if h == 0 and i and newv(i-1): wait(l=[f"W{i-1}"])
                if h == 6 and i + 1 < n: wait(l=[f"K{i+1}", f"C{i-1}"])
                if h == 14 and newv(i): wait(l=[f"V{i}"])
                if M[h]: ins(M[h])
                if h == 0 and free: ins(f"s_mov_b32 m0, s{48+nd%5}")
                if 2 <= h < 10 and newv(i): ins(vs[h-2], f"V{i}" if h < 6 else f"W{i}")
                if h == 9 and rk: wait(v=[f"D{P[i+2]}"])
                if 10 <= h < 14 and rk: ins(kread16(h-10, P[i+2] % 5), f"K{i+2}")
                if h in (1, 3, 5, 7) and free: ins(dma_ld(h//2), f"D{nd}")
                if h == 8 and free: ins("s_add_u32 s37, s37, s45")
                if i == ms + 3 and h in (0, 1, 14, 15): ins(fl.pop(0), "F")
                if i == ms + 4 and h == 0: ins(fl.pop(0), "F")
                if i == ms and h == 0: ins(f"ds_read_b32 v{ONE+1}, v{MB} offset:20", f"C{i}")
                if i == ms + 1 and h == 6: ins(f"v_readfirstlane_b32 s57, v{ONE+1}")
                if i == ms + 1 and h == 8:
                    ins("s_cmp_lt_u32 s57, 4"); ins("s_cbranch_scc1 A_WC"); ins("A_WR:")
                if dl and (i, h) >= (ms + 1, 9):
                    ins(dl.pop(0), "X")
                    if not dl:
                        ins("s_mov_b64 exec, 1"); ins(f"ds_add_u32 v{MB}, v{ONE} offset:8", "X"); ins("s_mov_b64 exec, -1")
            r = S0 + 16*sb + h
            cv = None if not DP or h & 1 else cvt16(so, 7) if h == 0 else cvt16(sb, h//2 - 1)
            if cv and DP == 1:
                if not M[h]: ins("s_nop 0")
                ins(cv)
            ins(f"v_exp_f32 v{r}, v{r}")
            if cv and DP == 2: ins(cv)
        if free: nd += 1
    assert not dl and not fl and nd == last + 1
    wait(l=[f"W{n-1}"])
    if DP: ins(cvt16(2, 7))
    for m in unit16(2, 0, 0, None, 0, 0)[:6]: ins(m)
    T = Track(); T.q["v"] = pre_v
    for s_, tag in L:
        if s_ == "WAIT":
            l, v = tag; w = "s_waitcnt"
            if v: w += f" vmcnt({T.cnt('v', v)})"
            if l: w += f" lgkmcnt({T.cnt('l', l)})"
            A(w)
        else:
            if tag: T.add(s_, tag)
            A(s_)

def dump(t, a=None):
    return [f"ds_write_b128 v{RA if a is None else a}, {vr(O+32*t+4*q,4)} offset:{1024*q}" for q in range(8)]

def final_loads():
    L = []
    for m in range(2):
        for k in range(4):
            L.append(f"buffer_load_dwordx4 {vr(WF+16*m+4*k,4)}, v{WO}, s[20:23], {'0' if m == 0 else 's62'} offen offset:{2048*(k>>1)+128*(k&1)} sc1")
    L.append(f"buffer_load_dwordx4 {vr(XF,4)}, v{XO}, s[16:19], 0 offen")
    return L

def final_setup_v(A):
    A("v_and_b32 v16, 15, v0")
    A("v_and_b32 v17, 48, v0")
    A(f"s_lshr_b32 s42, s{SV}, 1")
    A("v_lshl_add_u32 v19, s42, 4, v16")
    A("s_cmp_ge_u32 s3, 4")
    A("s_cselect_b32 s54, 0, 256")
    A("s_lshl_b32 s55, s54, 4")
    A(f"s_add_u32 s54, s54, {LE+128}")
    A(f"s_add_u32 s55, s55, {MTL}")
    A("v_lshl_add_u32 v249, v19, 2, s54")
    A("v_lshl_add_u32 v250, v19, 4, s55")
    A("v_lshl_add_u32 v250, v17, 5, v250")
    A("v_or_b32 v251, 32, v0")
    A(f"v_lshl_add_u32 v251, v251, 2, v{MB}")
    A("v_and_b32 v18, 7, v16")
    A(f"v_and_b32 v{WO}, 8, v16")
    A(f"v_lshl_add_u32 v{WO}, v{WO}, 1, v18")
    A(f"v_lshl_add_u32 v{WO}, v17, 1, v{WO}")
    A(f"v_lshlrev_b32 v{WO}, 4, v{WO}")
    A("v_add_u32 v18, 32, v18")
    A("s_cmp_ge_u32 s3, 4")
    A("s_cselect_b64 vcc, -1, 0")
    A("v_cndmask_b32 v16, v19, v18, vcc")
    A("v_lshrrev_b32 v19, 3, v19")
    A(f"v_cmp_eq_u32 s[54:55], s{SI}, v19")
    A(f"v_mul_u32_u24 v1, {ASTR}, v16")
    A("v_add_u32 v1, v1, v17")
    A(f"v_add_u32 v1, {AL}, v1")
    A(f"v_lshl_add_u32 v{XO}, v16, 7, v17")
    A("s_andn2_b64 vcc, vcc, s[54:55]")
    A(f"s_and_b32 s54, s{SV}, 1")
    A(f"s_mul_i32 s42, s{SW}, 80")
    A("s_add_u32 s42, s42, s54")
    A("s_lshl_b32 s42, s42, 6")
    A(f"v_add_u32 v{XO}, s42, v{XO}")
    A("v_mov_b32 v18, 0x70000000")
    A(f"v_cndmask_b32 v{XO}, v{XO}, v18, vcc")
    A("s_lshl_b32 s42, s54, 12")
    A(f"v_add_u32 v{WO}, s42, v{WO}")
    A(f"s_lshl_b32 s42, s{SV}, 13")
    A(f"s_add_u32 s42, s42, {STG}")
    A(f"v_add_u32 v{RA}, s42, v{DV}")

def final_setup_s(A):
    A(f"s_lshl_b32 s54, s{SI}, 3")
    A("s_lshl_b32 s54, 0xff, s54")
    A("s_mov_b32 s55, s54")
    srd(A, 16, 6, 0, N * 128)
    srd(A, 20, 4, WS_W, 16384)
    srd(A, 24, 28, 0, N * 128)
    A("s_movk_i32 s61, 0x1000")
    A("s_movk_i32 s62, 0x2000")
    A("s_movk_i32 s63, 0x3000")

class Track:
    def __init__(self): self.q = {"l": [], "v": []}
    def add(self, ins, tag):
        self.q["l" if ins.startswith("ds_") else "v"].append(tag); return ins
    def cnt(self, c, tags):
        q = self.q[c]; last = max([i for i, t in enumerate(q) if t in tags], default=-1)
        return min(len(q) - 1 - last, 15 if c == "l" else 63)

SEQS = {
 "2": "O35 S35 S36 S37 S38 O36 O37 O38 O39 O40",
 "4": "O35 S35 O36 S36 S37 O37 O38 O39 O40 O41",
 "4b": "O35 S35 S36 S37 O36 O37 O38 O39 O40 O41",
 "6": "O35 S35 S36 O36 O37 O38 O39 O40 O41 O42",
 "8": "O35 S35 O36 O37 O38 O39 O40 O41 O42 O43",
}
def gen_t1(A):
    seq = [(int(w[1:]), 0 if w[0] == "O" else 2) for w in SEQS[os.environ.get("SEQ", "2")].split()]
    n = len(seq); P = [a for a, _ in seq]; last = max(P)
    ms = max(i for i in range(n) if seq[i][1] == 2)
    assert P[0] == 35 and P[1] == 35
    L = []
    def ins(s, tag=None): L.append((s, tag))
    def wait(l=None, v=None): L.append(("WAIT", (l, v)))
    pre_l = ["V0"]; pre_v = [f"D{k}" for k in (36, 37, 38, 39) for _ in range(4)]
    if DS: pre_v = pre_v[:-2]
    else: ins("s_add_u32 s37, s37, s47")
    dl = dump(2); fl = final_loads()
    newv = lambda i: i == 0 or P[i] != P[i-1]
    nd = 40
    for i in range(n):
        sb = 0 if i % 2 == 0 else 2; so = 2 - sb
        tp = 2 if i == 0 else seq[i-1][1]
        M = [pv(so, tp, 0, 1), pv(so, tp, 1, 0), pv(so, tp, 1, 1)] + [qk(so, j, seq[i+1][1]) if i + 1 < n else None for j in range(4)] + [pv(sb, seq[i][1], 0, 0)]
        k = P[i] % 5
        vs = vread(0, 0, k)[1:] + vread(0, 1, k) + vread(1, 0, k) + vread(1, 1, k)
        vt = [f"V{i}"]*5 + [f"W{i}"]*2
        rk = i + 2 < n and P[i+2] != P[i+1]
        free = nd <= last and all(not (P[j] == nd - 5 and newv(j)) for j in range(i, n))
        for g in range(8):
            if g == 2:
                wait(l=[f"W{i-1}", f"K{i+1}"], v=[f"D{P[i+2]}"] if rk else None)
                if free: ins(f"s_mov_b32 m0, s{48+nd%5}")
            if g == 7 and newv(i): wait(l=[f"V{i}"])
            if M[g]: ins(M[g])
            if g < 7 and newv(i): ins(vs[g], vt[g])
            if 3 <= g <= 6 and rk: ins(kread(g-3, P[i+2] % 5), f"K{i+2}")
            if DS and i == 0 and g in (2, 7): ins(dma_ld(2 if g == 2 else 3), "D39")
            if DS and i == 1 and g < 2: ins(f"s_add_u32 s37, s37, s{45+2*g}")
            if 2 <= g <= 5 and free: ins(dma_ld(g-2), f"D{nd}")
            if g == 6 and free: ins("s_add_u32 s37, s37, s45")
            if g == 7 and i + 1 < n and newv(i+1): ins(vread(0, 0, P[i+1] % 5)[0], f"V{i+1}")
            if i == ms + 3 and g in (0, 1, 6, 7): ins(fl.pop(0), "F")
            if i == ms + 4 and g == 0: ins(fl.pop(0), "F")
            if i == ms and g == 0: ins(f"ds_read_b32 v{ONE+1}, v{MB} offset:20", f"W{i}")
            if i == ms + 1 and g == 2: ins(f"v_readfirstlane_b32 s57, v{ONE+1}")
            if i == ms + 1 and g == 4:
                ins("s_cmp_lt_u32 s57, 4"); ins("s_cbranch_scc1 A_WC"); ins("A_WR:")
            if dl and (i, g) >= (ms + 1, 5):
                ins(dl.pop(0), "X"); ins(dl.pop(0), "X")
                if not dl:
                    ins("s_mov_b64 exec, 1"); ins(f"ds_add_u32 v{MB}, v{ONE} offset:8", "X"); ins("s_mov_b64 exec, -1")
            r = S0 + 16*sb + 2*g
            ins(f"v_exp_f32 v{r}, v{r}"); ins(f"v_exp_f32 v{r+1}, v{r+1}")
        if free: nd += 1
    assert not dl and not fl and nd == last + 1
    wait(l=[f"W{n-1}"])
    ins(pv(2, 0, 0, 1)); ins("s_nop 0"); ins(pv(2, 0, 1, 0)); ins(pv(2, 0, 1, 1))
    T = Track(); T.q["l"] = pre_l; T.q["v"] = pre_v
    for s_, tag in L:
        if s_ == "WAIT":
            l, v = tag; w = "s_waitcnt"
            if v: w += f" vmcnt({T.cnt('v', v)})"
            if l: w += f" lgkmcnt({T.cnt('l', l)})"
            A(w)
        else:
            if tag: T.add(s_, tag)
            A(s_)

def attn_setup(A):
    flag_srd(A)
    A(f"v_mov_b32 v{ONE}, 1")
    A("s_load_dwordx2 s[6:7], s[0:1], 0")
    A("s_load_dwordx2 s[28:29], s[0:1], 72")
    A(f"s_mul_i32 s42, s{SV}, {80*4096}")
    A(f"s_sub_u32 s10, {N*128}, s42")
    A(f"s_min_u32 s10, s10, {80*4096}")
    A("s_mov_b32 s11, 0x20000")
    A("s_add_u32 s8, s4, s42")
    A("s_addc_u32 s9, s5, 0")
    A(f"s_mul_i32 s36, s{SV}, {RING}")
    for k in range(5):
        A(f"s_add_u32 s{48+k}, s36, {4096*k}")
    A(f"s_lshl_b32 s45, s{SHF}, 13")
    A("s_sub_u32 s45, 0x1000, s45")
    A(f"s_mul_i32 s37, s{SHF}, {79*4096}")
    A(f"s_lshl_b32 s42, s{SHF}, 12")
    A(f"s_sub_u32 s42, {40*4096}, s42")
    A("s_mul_i32 s47, s45, -80")
    A(f"s_cmp_eq_u32 s{SP}, 0")
    A("s_cselect_b32 s37, s37, s42")
    A("s_cselect_b32 s47, 0, s47")
    (frag16 if M16 else frag_addrs)(A, 0, 36, 18, 19)
    dma_addr(A, 18)
    A("s_waitcnt lgkmcnt(0)")
    final_setup_v(A)
    if M16: A(f"v_add_u32 v{RA}, s42, v{D2}")
    final_setup_s(A)

def gen_attn(A):
    A("A_MAIN:")
    for r in list(range(S0+32, S0+48, 2)) + list(range(VF+(0 if M16 else 4), VF+16, 2)):
        A(f"v_mov_b64 {vr(r,2)}, 0")
    A("v_lshlrev_b32 v17, 7, v0")
    A(f"s_lshl_b32 s42, s{SV}, 13")
    lds_wait(A, "A_WQ", 24, 3, 16)
    if P8:
        lds_wait(A, "A_WF", 0, 1, 16)
        A(f"s_mov_b32 s{SN}, s57")
    else:
        lds_wait(A, "A_WF", 28, 2, 16)
    st(A, "fg")
    def pg(nm, mask):
        A("s_cmp_eq_u32 s3, 3")
        A("s_cselect_b32 exec_hi, 0x03ffffff, -1")
        if mask:
            A(f"s_and_b64 exec, exec, {mask}")
            A(f"s_cbranch_scc0 {nm}_X")
        poll1(A, nm, 17, "s42", 16)
    if E4:
        A("s_lshr_b32 s43, s37, 12")
        A("s_mul_i32 s43, s43, 205")
        A("s_lshr_b32 s43, s43, 10")
        A("s_lshl_b32 s43, s43, 2")
        A("s_bfm_b64 s[56:57], 4, s43")
    pg("A_PG", "s[56:57]" if E4 else None)
    st(A, "a3")
    A("s_setprio 1")
    def pre(ks):
        for k in ks:
            A(f"s_mov_b32 m0, s{48+k}")
            A("s_nop 0")
            for i in range(4): A(dma_ld(i))
            A("s_add_u32 s37, s37, s45")
    pre(range(N0))
    if N0 == 5: lds_signal(A, 40, ONE)
    A(f"v_add_u32 v18, {QX}, v{D2 if M16 else DV}")
    for q in range(12):
        A(f"ds_read_b128 {vr(Q+4*q,4)}, v18 offset:{4096*(q>>2)+2048*(q&1)+256*((q>>1)&1) if M16 else 1024*q}")
    if E4:
        pg("A_PH", None)
        lds_signal(A, 40, ONE)
        st(A, "go")
    A(f"s_waitcnt vmcnt({4*N0-4})")
    if M16:
        for j in range(4): A(kread16(j, 0))
        pre(range(N0, 5))
        if N0 < 5: lds_signal(A, 40, ONE)
        A("s_waitcnt lgkmcnt(0)")
        A.many(qk16(0, 0))
    else:
        for j in range(4): A(kread(j, 0))
        A(vread(0, 0, 0)[0])
        A("s_waitcnt lgkmcnt(1)")
        for j in range(4): A(qk(0, j, 0))
    A("s_nop 7")
    st(A, "a4")
    (gen_loop16 if M16 else gen_loop)(A, [0, 1, 2], 4, "A_L3")
    st(A, "l3")
    A(f"v_readfirstlane_b32 s57, v{ONE+1}")
    A(f"s_cmp_lt_u32 s57, {4 if NH else 7}")
    A("s_cbranch_scc1 A_WP")
    A("A_WPR:")
    A.many(dump16(1) if M16 else dump(1))
    A("s_mov_b64 exec, 1")
    A(f"ds_add_u32 v{MB}, v{ONE} offset:8")
    A("s_mov_b64 exec, -1")
    (gen_loop16 if M16 else gen_loop)(A, [0, 2], 3, "A_L2")
    st(A, "l2")
    (gen_t16 if M16 else gen_t1)(A)
    st(A, "a5")
    A(f"v_add_u32 v{RA}, s36, v{D2 if M16 else DV}")
    if M16:
        dl = dump16(0)
        A("s_nop 1")
        A.many(dl[0::2]); A.many(dl[1::2][:3]); A("s_nop 0"); A(dl[7])
        lds_signal(A, 12, ONE)
    else:
        A("s_nop 7")
        A("s_nop 2")
        A.many(dump(0))
    A("s_branch FINAL")
    A("A_WC:")
    lds_wait(A, "A_WC1", 20, 4, ONE+1)
    A("s_branch A_WR")

    A("A_WP:")
    lds_wait(A, "A_WP1", 36, 4 if NH else 7, ONE+1)
    A("s_branch A_WPR")
```

```python
from fc import *
from fa import WL, P8, ln8, ln8_load, WF, XF, XO, WO, RA, final_setup_v, final_setup_s, final_loads

T = 140; RS = 176; PO = 177; EV = 178; PK = 180; EK = 192
TH = 60; MD = 40
GP = int(os.environ.get("GP", "1"))
DG = int(os.environ.get("DG", "4"))
SPL = int(os.environ.get("SPL", "1"))
HF = int(os.environ.get("HF", "1"))
WP = int(os.environ.get("WP", "2"))
LP = int(os.environ.get("LP", "3"))
SP2 = int(os.environ.get("SP2", "0"))
PACE = int(os.environ.get("PACE", "2"))
IW = int(os.environ.get("IW", "0"))
XP = int(os.environ.get("XP", "0"))
SE = int(os.environ.get("SE", "1"))
EP = int(os.environ.get("EP", "2"))
def gen_sort(A):
    A("s_load_dwordx4 s[28:31], s[0:1], 8")
    if P8:
        A("s_load_dwordx2 s[16:17], s[0:1], 0")
        A("s_load_dwordx2 s[8:9], s[0:1], 80")
        ln8_load(A)
    A(f"s_lshl_b32 s42, s{SV}, 6")
    A("v_add_u32 v2, s42, v0")
    A("v_lshlrev_b32 v3, 4, v2")
    A("v_lshlrev_b32 v4, 3, v2")
    A(f"s_mul_i32 s50, s{SW}, {CH*4}")
    A("s_add_u32 s43, s50, 0x1000")
    A("s_add_u32 s44, s50, 0x2000")
    A("s_waitcnt lgkmcnt(0)")
    srd(A, 20, 30, 0, E * 4)
    srd(A, 24, 28, 0, E * 4)
    D = 76; S = 28; R = 40; B = 52
    def eloads(base, sd):
        A(f"buffer_load_dwordx4 {vr(base,4)}, v3, {sr(sd,4)}, s50 offen")
        A(f"buffer_load_dwordx4 {vr(base+4,4)}, v3, {sr(sd,4)}, s43 offen")
        A(f"buffer_load_dwordx2 {vr(base+8,2)}, v4, {sr(sd,4)}, s44 offen")
    Z = 64
    A(f"s_mov_b32 s49, {STG}")
    A(f"v_mov_b32 v10, {CELL}")
    A("v_lshrrev_b32 v5, 2, v2")
    A("v_and_b32 v7, 3, v2")
    A(f"v_mad_u32_u24 v73, v5, v10, s49")
    A("v_lshl_add_u32 v73, v7, 4, v73")
    A(f"s_and_b32 s42, s{SW}, 15")
    A("s_lshl_b32 s42, s42, 20")
    A("s_add_u32 s42, s42, 0x1000000")
    A(f"v_lshl_add_u32 v{Z+1}, v7, 18, s42")
    A("v_cmp_eq_u32 vcc, 0, v7")
    for r in range(2, 6):
        A(f"v_mov_b32 v{Z+r}, v{Z+1}")
    A(f"v_addc_co_u32 v{Z}, vcc, 0, v{Z+1}, vcc")
    for it in range(4):
        A(f"ds_write_b128 v73, {vr(Z,4)} offset:{64*CELL*it}")
        A(f"ds_write_b128 v73, {vr(Z+2,4)} offset:{64*CELL*it+64}")
    for r in range(4):
        A(f"v_mov_b32 v{Z+16+r}, -1")
        A(f"v_mov_b32 v{Z+20+r}, 0")
    A(f"v_add_u32 v5, {LL}, v3")
    for i in range(3):
        A(f"ds_write_b128 v5, {vr(Z+16,4)} offset:{4096*i}")
    A("v_mov_b32 v6, 1")
    A(f"v_lshlrev_b32 v5, 2, v0")
    A(f"v_add_u32 v8, {LST}, v5")
    A(f"v_add_u32 v5, {DUM}, v5")
    A(f"v_lshlrev_b32 v9, 8, v0")
    A(f"v_add_u32 v9, {LL}, v9")
    A("ds_write2st64_b32 v8, v9, v5 offset0:0 offset1:1")
    for i in range(3):
        A(f"ds_write_b128 v{MB}, {vr(Z+20,4)} offset:{16*i}")
    srd(A, 28, 4, WS_E, 2 * E2)
    flag_srd(A)
    A("s_mov_b32 s47, 52429")
    A("v_mov_b32 v7, 31")
    if P8:
        srd(A, 52, 4, WS_G, N * 128)
        A("s_movk_i32 s10, 256")
        A("s_mov_b32 s11, 0x20000")
        A("s_mov_b32 vcc_lo, 0x80808080")
        A("s_mov_b32 vcc_hi, vcc_lo")
        A("s_waitcnt lgkmcnt(0)")
        A("s_barrier")
        A("s_waitcnt vmcnt(0)")
        st(A, "bx")
        nl = "buffer_load_dword v5, off, s[8:11], 0 sc1"
        A(nl)
        ln8(A, 52)
        if WL: A("s_barrier")
        if "D" in X: eloads(D, 20)
        A(f"s_mov_b32 s58, {LIMIT}")
        A(f"s_waitcnt vmcnt({3 if 'D' in X else 0})")
        A("N_L:")
        A(f"v_readfirstlane_b32 s{SN}, v5")
        A("s_sub_u32 s58, s58, 1")
        A("s_cbranch_scc1 N_X")
        A(f"s_cmp_lg_u32 s{SN}, 0")
        A("s_cbranch_scc1 N_X")
        A(nl)
        A("s_waitcnt vmcnt(0)")
        A("s_branch N_L")
        A("N_X:")
        st(A, "bd")
        A("s_mov_b64 exec, 1")
        A(f"ds_add_rtn_u32 v72, v{MB}, v6 offset:28")
        A(f"s_or_b32 s{SN}, s{SN}, 1")
        A(f"s_lshl_b32 s42, s{SW}, 7")
        A(f"v_mov_b32 v5, s{SN}")
        A("s_waitcnt lgkmcnt(0)")
        A("v_cmpx_eq_u32 vcc, 3, v72")
        A("s_cbranch_execz N_G")
        A("buffer_store_dword v5, off, s[12:15], s42 sc1")
        A(f"ds_write_b32 v{MB}, v5")
        st(A, "f3")
        A("N_G:")
        A("s_mov_b64 exec, -1")
        if "D" not in X and "g" not in X: eloads(D, 20)
        if "a" in X: eloads(S, 24)
        gather_setup(A)
    else:
        gather_setup(A)
        A("s_barrier")
        if "g" not in X: eloads(D, 20)
        if "a" in X: eloads(S, 24)
        A("s_waitcnt lgkmcnt(0)")
        A("s_barrier")
    if "F" in X:
        lds_wait(A, "B_WN", 0, 1, 5)
        eloads(D, 20)
    if "p" in X: A("s_setprio 2")
    A("s_load_dwordx2 s[6:7], s[0:1], 24")
    A(f"s_cmp_ge_u32 s{SW}, {0 if 'x' in X else NB}")
    A("s_cbranch_scc1 B_3")
    if "g" in X:
        lds_wait(A, "B_WG", 40, 4, 5)
        st(A, "bgo")
        eloads(D, 20); eloads(S, 24)
    A(f"s_waitcnt vmcnt({3 if 'g' in X or 'a' in X else 0}) lgkmcnt(0)")
    if "b" in X: eloads(S, 24)
    st(A, "bld")
    for i in range(10):
        A(f"v_mul_u32_u24 v{B+i}, s47, v{D+i}")
        A(f"v_lshrrev_b32 v72, 21, v{B+i}")
        A(f"v_mad_u32_u24 v{B+i}, v72, v10, s49")
        A(f"ds_add_rtn_u32 v{R+i}, v{B+i}, v6")
        A(f"v_mul_u32_u24 v72, 40, v72")
        A(f"v_sub_u32 v{D+i}, v{D+i}, v72")
    for i in range(10):
        A(f"s_waitcnt lgkmcnt({9-i})")
        A(f"v_min_u32_sdwa v{R+i}, v{R+i}, v7 dst_sel:DWORD dst_unused:UNUSED_PAD src0_sel:WORD_0 src1_sel:DWORD")
        A(f"v_lshl_add_u32 v{B+i}, v{R+i}, 2, v{B+i}")
    if not set("gab") & set(X):
        lds_wait(A, "B_WG", 40, 4, 5)
        st(A, "bgo")
        if SP2: A("s_setprio 2")
        eloads(S, 24)
    A("s_waitcnt vmcnt(0)")
    st(A, "bsrc")
    for i in range(10):
        A(f"v_lshl_or_b32 v{S+i}, v{D+i}, 18, v{S+i}")
        A(f"ds_write_b32 v{B+i}, v{S+i}")
    lds_signal(A, 32, 6)
    A(f"s_lshl_b32 s42, s{SW}, 14")
    A(f"s_add_u32 s43, s42, {E2:#x}")
    lds_wait(A, "B_W1", 32, 4, 5)
    if "G" in X: lds_wait(A, "B_WG", 40, 4, 5)
    st(A, "bsort")
    for it in range(4):
        A(f"ds_read_b128 {vr(16+4*it,4)}, v73 offset:{64*CELL*it}")
    for it in range(4):
        A(f"ds_read_b128 {vr(32+4*it,4)}, v73 offset:{64*CELL*it+64}")
    A("v_mov_b32 v7, 16")
    for it in range(4):
        A(f"s_waitcnt lgkmcnt({7-it})")
        A(f"buffer_store_dwordx4 {vr(16+4*it,4)}, v3, s[28:31], s42 offen sc1")
        A(f"v_mov_b32_dpp v{48+it}, v{16+4*it} quad_perm:[0,0,0,0] row_mask:0xf bank_mask:0xf")
        A("s_add_u32 s42, s42, 0x1000")
    A("s_waitcnt lgkmcnt(0)")
    for it in range(4):
        A(f"v_cmp_gt_u32_sdwa vcc, v{48+it}, v7 src0_sel:WORD_0 src1_sel:DWORD")
        A("s_and_b64 exec, vcc, -1")
        A(f"s_cbranch_scc0 B_O{it}")
        A(f"buffer_store_dwordx4 {vr(32+4*it,4)}, v3, s[28:31], s43 offen sc1")
        A(f"B_O{it}:")
        A("s_mov_b64 exec, -1")
        A("s_add_u32 s43, s43, 0x1000")
    A("B_3:")
    A(f"s_lshl_b32 s42, s{SW}, 7")
    A(f"s_lshl2_add_u32 s42, s{SV}, s42")
    A(f"s_add_u32 s42, s42, {FS}")
    A(f"v_mov_b32 v5, s{SN}")
    A("s_mov_b64 exec, 1")
    A("s_waitcnt lgkmcnt(0)")
    A(f"ds_add_u32 v{MB}, v6 offset:36")
    A("s_waitcnt vmcnt(0)")
    st(A, "bpub")
    A("buffer_store_dword v5, off, s[12:15], s42 sc1")
    A("s_mov_b64 exec, -1")
    A("B_4:")
    if SP2: A("s_setprio 0")

EN = 140; PS = 16; BUF = 48; PR = 88; AC = 108; SA = 128; SX = 132
DI = 228; DO = 231; FO = 232; LR2 = 233; C16 = 234; LBV = 235; TWO = 236; AO = 237; C = 244
t0, t1, t2, t3 = 238, 239, 241, 242
def gather_setup(A):
    A(f"s_lshl_b32 s42, s{SV}, 12")
    A(f"v_add_u32 v{PO}, s42, v{DV}")
    A(f"s_lshl_b32 s42, s{SV}, 11")
    A(f"s_add_u32 s42, s42, {STG}")
    A(f"v_add_u32 v{RS}, s42, v{DV}")
    A(f"s_mov_b32 s{TH}, 4")
    A("s_mov_b32 s61, 0")
    A(f"s_mov_b32 s{MD}, 1")
    A(f"v_mov_b32 v{EV}, 0")
    A(f"v_bfe_u32 v{t0}, v0, 3, 1")
    A(f"v_lshrrev_b32 v{t1}, 5, v0")
    A(f"v_cmp_eq_u32 vcc, v{t0}, v{t1}")
    A(f"v_lshl_add_u32 v{t0}, v{t0}, 1, v{t1}")
    A(f"v_lshlrev_b32 v{DO}, 1, v{t0}")
    A(f"v_and_b32 v{t1}, 1, v0")
    A(f"v_lshlrev_b32 v{t1}, 4, v{t1}")
    A(f"v_mov_b32 v{t2}, {0x3f80 if NH else 0x3c00:#x}")
    A(f"v_lshlrev_b32 v{t1}, v{t1}, v{t2}")
    A(f"v_cndmask_b32 v{t1}, 0, v{t1}, vcc")
    A("s_mov_b32 vcc_lo, 0xf0f0f0f0")
    A("s_mov_b32 vcc_hi, vcc_lo")
    A(f"v_cndmask_b32 v{SA+1}, 0, v{t1}, vcc")
    A(f"v_sub_u32 v{SA}, v{t1}, v{SA+1}")
    A(f"v_mov_b32 v{SA+3}, v{SA+1}")
    A(f"v_mov_b32 v{SA+2}, v{SA}")
    A("s_mov_b32 vcc_lo, 0xcccccccc")
    A("s_mov_b32 vcc_hi, vcc_lo")
    A(f"v_mov_b32 v{t1}, 0xeeeeeeee")
    A(f"v_mov_b32 v{SX}, 0x44444444")
    A(f"v_cndmask_b32 v{SX}, v{SX}, v{t1}, vcc")
    for p in range(3):
        A(f"v_mov_b32 v{DI+p}, 0")
    for r in range(20):
        A(f"v_mov_b32 v{AC+r}, 0")
    A(f"v_and_b32 v{t1}, 7, v0")
    A(f"v_lshlrev_b32 v{PR+1}, 4, v{t1}")
    A(f"v_bfe_u32 v{t2}, v0, 4, 1")
    A(f"v_lshl_add_u32 v{t2}, v{t2}, 3, v{PR+1}")
    A(f"v_mul_u32_u24 v{AO}, {ASTR}, v{t0}")
    A(f"s_mul_i32 s42, s{SV}, {10*ASTR}")
    A(f"s_add_u32 s42, s42, {AL}")
    A(f"v_add3_u32 v{AO}, v{AO}, v{t2}, s42")
    A(f"v_lshl_add_u32 v{t2}, v{t0}, 7, v{t2}")
    for i in range(1, 10):
        A(f"v_mov_b32 v{PR+2*i+1}, v{PR+1}")
    A(f"v_mov_b32 v{LBV}, {LST}")
    A(f"s_mul_i32 s42, s{SV}, 2560")
    A(f"s_add_u32 s42, s42, {LL}")
    A(f"v_lshrrev_b32 v{t0}, 3, v0")
    A(f"v_lshl_add_u32 v{LR2}, v{t0}, 1, s42")
    A(f"v_mov_b32 v{TWO}, 2")
    A(f"v_mov_b32 v{C16}, 16")
    A(f"v_lshlrev_b32 v{FO}, 7, v2")
    A(f"v_lshrrev_b32 v{t3}, 2, v0")
    A(f"v_lshlrev_b32 v{t3}, 14, v{t3}")
    A(f"v_and_b32 v{t1}, 3, v0")
    A(f"v_lshl_add_u32 v{t3}, v{t1}, 4, v{t3}")
    A(f"v_lshlrev_b32 v{EN+12}, 18, v0")
    A(f"v_add_u32 v{EN+12}, 0x1000000, v{EN+12}")
    for r in range(13, 16):
        A(f"v_mov_b32 v{EN+r}, v{EN+12}")
    final_setup_v(A)

def gen_gather(A):
    srd(A, 8, 4, WS_PE, 0x800000)
    for j in range(3):
        A(f"v_mov_b32 v{PK+4*j+3}, s{SN}")
    A(f"s_cmp_ge_u32 s{SW}, {0 if 'y' in X else NB}")
    A("s_cbranch_scc1 B_X")
    srd(A, 16, 4, WS_G if NH else WS_H, N, stride=128)
    srd(A, 48, 6, 0, N * 2)
    A(f"s_mul_i32 s42, s{SW}, 80")
    A(f"s_mul_i32 s43, s{SV}, 20")
    A("s_add_u32 s42, s42, s43")
    for p in range(3):
        A(f"buffer_load_short_d16_hi v{DI+p}, v{DO}, s[48:51], s42 offen offset:{8*p}")
    A(f"s_lshl_b32 s44, s{SV}, 20")
    A(f"s_lshl_b32 s45, s{SW}, 6")
    A("s_add_u32 s44, s44, s45")
    A(f"s_cmp_eq_u32 s{SV}, 3")
    A("s_cselect_b32 s47, 0xff, -1")
    if set("ab") & set(X) and "G" not in X: lds_wait(A, "B_WG", 40, 4, t1)
    if HF:
        A("s_and_b32 s45, s2, 31")
        A(f"s_lshl2_add_u32 s45, s45, s{SV}")
        A("s_lshl_b32 s45, s45, 7")
        spoll(A, "B_PS", [45], FB, 12)
    else:
        A(f"s_mov_b32 s45, {FS}")
        poll1(A, "B_PS", FO, "s45", t1)
    st(A, "bps")
    if LP: A("s_setprio 2")
    if "1" in X: A("s_branch B_X")
    for it in range(4):
        if it == 3: A("s_mov_b32 exec_hi, s47")
        A(f"buffer_load_dwordx4 {vr(EN+4*it,4)}, v{t3}, s[28:31], s44 offen sc1")
        A("s_add_u32 s44, s44, 0x40000")
    A("s_mov_b64 exec, -1")
    A(f"s_add_u32 s44, s44, {E2 - 0x100000:#x}")
    def trip_a(k):
        A(f"v_add_u32_sdwa v{t1}, v{EN+k}, v{LBV} dst_sel:DWORD dst_unused:UNUSED_PAD src0_sel:WORD_1 src1_sel:DWORD")
        A(f"ds_add_rtn_u32 v{PS+k}, v{t1}, v{TWO}")
    A("s_waitcnt vmcnt(0)")
    for it in range(4):
        A(f"v_mov_b32_dpp v{C+it}, v{EN+4*it} quad_perm:[0,0,0,0] row_mask:0xf bank_mask:0xf")
    for it in range(4):
        A(f"v_and_b32 v{C+it}, 0xffff, v{C+it}")
    for it in range(4):
        A(f"v_cmp_gt_u32 s[{52+2*it}:{53+2*it}], v{C+it}, v{C16}")
    A(f"v_max3_u32 v{t1}, v{C}, v{C+1}, v{C+2}")
    A(f"v_max_u32 v{t1}, v{t1}, v{C+3}")
    A(f"v_cmp_lt_u32 vcc, 32, v{t1}")
    A(f"v_mov_b32 v{t1}, 0x101")
    A("s_cbranch_vccnz G_SYNC")
    for it in range(4):
        A(f"s_and_b64 exec, s[{52+2*it}:{53+2*it}], -1")
        A(f"s_cbranch_scc0 G_O{it}")
        A(f"buffer_load_dwordx4 {vr(EN+16+4*it,4)}, v{t3}, s[28:31], s44 offen sc1")
        A(f"G_O{it}:")
        A("s_add_u32 s44, s44, 0x40000")
    A("s_mov_b64 exec, -1")
    if "2" in X:
        A("s_waitcnt vmcnt(0)"); st(A, "bl"); A("s_branch B_X")
    if LP == 3:
        adr = lambda k: A(f"v_add_u32_sdwa v{PS+k}, v{EN+k}, v{LBV} dst_sel:DWORD dst_unused:UNUSED_PAD src0_sel:WORD_1 src1_sel:DWORD")
        atm = lambda k: A(f"ds_add_rtn_u32 v{PS+k}, v{PS+k}, v{TWO}")
        wr = lambda k: A(f"ds_write_b16 v{PS+k}, v{EN+k}")
        for k in range(16): adr(k)
        A(f"v_mov_b32 v{t1}, 1")
        A("s_setprio 0")
        for k in range(0, 16 + PACE, PACE):
            if k: A("s_waitcnt lgkmcnt(0)")
            for j in range(k, min(k + PACE, 16)): atm(j)
            for j in range(max(k - PACE, 0), k): wr(j)
        A("s_waitcnt vmcnt(0)")
        for it in range(4):
            A(f"s_and_b64 exec, s[{52+2*it}:{53+2*it}], -1")
            A(f"s_cbranch_scc0 G_P{it}")
            A("s_setprio 2")
            for k in range(16+4*it, 20+4*it): adr(k)
            A("s_setprio 0")
            for k in range(16+4*it, 20+4*it): atm(k)
            A("s_waitcnt lgkmcnt(0)")
            for k in range(16+4*it, 20+4*it): wr(k)
            A(f"G_P{it}:")
    else:
        for k in range(16):
            trip_a(k)
        for k in range(16):
            if k % 4 == 0: A(f"s_waitcnt lgkmcnt(12)")
            A(f"ds_write_b16 v{PS+k}, v{EN+k}")
        A("s_waitcnt vmcnt(0)")
        for it in range(4):
            A(f"s_and_b64 exec, s[{52+2*it}:{53+2*it}], -1")
            A(f"s_cbranch_scc0 G_P{it}")
            for k in range(16+4*it, 20+4*it): trip_a(k)
            A(f"G_P{it}:")
        A("s_waitcnt lgkmcnt(0)")
        for it in range(4):
            A(f"s_and_b64 exec, s[{52+2*it}:{53+2*it}], -1")
            A(f"s_cbranch_scc0 G_Q{it}")
            for k in range(16+4*it, 20+4*it): A(f"ds_write_b16 v{PS+k}, v{EN+k}")
            A(f"G_Q{it}:")
    A("s_mov_b64 exec, -1")
    if LP != 3: A(f"v_mov_b32 v{t1}, 1")
    A("G_SYNC:")
    A("s_waitcnt vmcnt(0)")
    lds_signal(A, 4, t1)
    lds_wait(A, "G_S1", 4, 4, t1, mask=0xff)
    st(A, "bl")
    A("s_cmp_gt_u32 s57, 0xff")
    A("s_cbranch_scc1 G_SLOW")
    A(f"ds_read_b32 v{t1}, v8")
    for i in range(10):
        A(f"ds_read_u16 v{PR+2*i}, v{LR2} offset:{256*i}")
    A(f"s_mul_i32 s43, s{SV}, 10")
    A("s_bfm_b64 s[52:53], 10, s43")
    A("s_waitcnt lgkmcnt(10)")
    A(f"v_sub_u32 v{t1}, v{t1}, v9")
    A(f"v_cmp_lt_u32 vcc, 0x100, v{t1}")
    A("s_cbranch_vccnz G_SLOW")
    def ld(i, it_off):
        A(f"buffer_load_dwordx4 {vr(BUF+4*i,4)}, {vr(PR+2*i,2)}, s[16:19], 0 idxen offen sc1")
        A(f"ds_read_u16 v{PR+2*i}, v{LR2} offset:{256*i+16*it_off}")
    def acc(p):
        A(f"v_smfmac_f32_16x16x64_{'bf16' if NH else 'f16'} {vr(AC+4*p,4)}, {vr(SA,4)}, {vr(BUF+8*p,8)}, v{SX}")
    for i in range(10):
        A(f"s_waitcnt vmcnt({DG-1}) lgkmcnt(9)")
        ld(i, 1)
    A("s_mov_b32 s56, 16" if "z" not in X else "s_movk_i32 s56, 0x200")
    A("G_LOOP:")
    A(f"v_cmp_lt_u32 vcc, s56, v{t1}")
    A(f"v_readfirstlane_b32 s57, v{EV}")
    A(f"ds_read_b32 v{EV}, v{MB} offset:8")
    A("s_add_u32 s56, s56, 16")
    A("s_and_b64 vcc, vcc, s[52:53]")
    A("s_cbranch_scc0 G_DRAIN")
    A(f"s_cmp_ge_u32 s57, s{TH}")
    A("s_cbranch_scc1 X_H")
    A("G_RET:")
    for p in range(5):
        A(f"s_waitcnt vmcnt({DG-2}) lgkmcnt(8)")
        acc(p)
        ld(2*p, 2); ld(2*p+1, 2)
    A(f"v_add_u32 v{LR2}, 16, v{LR2}")
    A("s_branch G_LOOP")
    A("G_DRAIN:")
    if XP == 2: A("s_setprio 2")
    for p in range(5):
        A(f"s_waitcnt vmcnt({8-2*p})")
        acc(p)
    if SE:
        A(f"s_cmp_eq_u32 s{TH}, 4")
        A("s_cbranch_scc1 G_NS")
        e_offs(A)
        A(f"s_mov_b32 s{MD}, 3")
        fetch_ld(A, 3, BUF)
        A("G_NS:")
    A("s_nop 7")
    for p in range(5):
        for r in range(4):
            x = AC+4*p+r
            A(f"v_add_f32_dpp v{AC+8*(p>>1)+r}, v{x}, v{x} row_ror:8 row_mask:0xf bank_mask:{'0xc' if p & 1 else '0x3'}")
    A("G_FIN:")
    for k in range(3):
        x = AC+8*k
        for r in range(4):
            A(f"v_mul_f32 v{x+r}, v{x+r}, v{DI+k}")
        A(f"v_cvt_pk_bf16_f32 v{x}, v{x}, v{x+1}")
        A(f"v_cvt_pk_bf16_f32 v{x+1}, v{x+2}, v{x+3}")
        if k == 2:
            A("s_mov_b32 exec_lo, 0x00ff00ff")
            A("s_mov_b32 exec_hi, 0x00ff00ff")
        A(f"ds_write_b64 v{AO}, {vr(x,2)} offset:{4*ASTR*k}")
    A("s_mov_b64 exec, -1")
    A("B_X:")

def gen_slow(A):
    A("G_SLOW:")
    A("s_waitcnt vmcnt(0) lgkmcnt(0)")
    lds_signal(A, 16, 6)
    lds_wait(A, "G_S2", 16, 4, t1)
    A(f"v_add_u32 v{t0}, {LL}, v3")
    for r in range(4):
        A(f"v_mov_b32 v{AC+r}, 0")
    for i in range(3):
        A(f"ds_write_b128 v{t0}, {vr(AC,4)} offset:{4096*i}")
    A("s_waitcnt lgkmcnt(0)")
    lds_signal(A, 16, 6)
    lds_wait(A, "G_S3", 16, 8, t1)
    srd(A, 48, 4, WS_G if NH else WS_H, N * 128)
    A(f"v_lshlrev_b32 v{t0}, 2, v0")
    A(f"v_lshlrev_b32 v{t1}, 1, v0")
    A(f"v_add_u32 v{t3}, {LL}, v{t0}")
    A(f"s_mul_i32 s42, s{SW}, 40")
    A("s_mov_b64 s[44:45], 0")
    for it in range(4):
        A(f"v_cmp_lt_u32 vcc, 1, v{C+it}")
        A(f"s_and_b32 vcc_lo, vcc_lo, {0x11111111 << it:#x}")
        A(f"s_and_b32 vcc_hi, vcc_hi, {0x11111111 << it:#x}")
        A("s_or_b64 s[44:45], s[44:45], vcc")
    A("G_SC:")
    A("s_cmp_eq_u64 s[44:45], 0")
    A("s_cbranch_scc1 G_SE")
    A("s_ff1_i32_b64 s43, s[44:45]")
    A("s_bitset0_b64 s[44:45], s43")
    A("s_and_b32 s47, s43, 3")
    A("s_lshr_b32 s43, s43, 2")
    A(f"s_lshl2_add_u32 s47, s{SV}, s47")
    A("s_lshl4_add_u32 s43, s47, s43")
    A(f"s_mul_i32 s43, s43, {CH*4}")
    A(f"s_add_u32 s47, s43, {CH*4}")
    A("G_SS:")
    A(f"buffer_load_dword v{AC}, v{t0}, s[20:23], s43 offen")
    A(f"buffer_load_dword v{AC+1}, v{t0}, s[24:27], s43 offen")
    A("s_waitcnt vmcnt(0)")
    A(f"v_subrev_u32 v{AC}, s42, v{AC}")
    A(f"v_cmp_gt_u32 s[52:53], 40, v{AC}")
    A("G_SI:")
    A("s_cmp_eq_u64 s[52:53], 0")
    A("s_cbranch_scc1 G_SN")
    A("s_ff1_i32_b64 s56, s[52:53]")
    A("s_bitset0_b64 s[52:53], s56")
    A(f"v_readlane_b32 s57, v{AC+1}, s56")
    A(f"v_readlane_b32 s58, v{AC}, s56")
    A("s_lshl_b32 s57, s57, 7")
    A("s_lshl_b32 s58, s58, 8")
    A(f"buffer_load_ushort v{AC+2}, v{t1}, s[48:51], s57 offen sc1")
    A(f"v_add_u32 v{AC+3}, s58, v{t3}")
    A("s_waitcnt vmcnt(0)")
    A(f"v_lshlrev_b32 v{AC+2}, 16, v{AC+2}" if NH else f"v_cvt_f32_f16 v{AC+2}, v{AC+2}")
    A(f"ds_add_f32 v{AC+3}, v{AC+2}")
    A("s_waitcnt lgkmcnt(0)")
    A("s_branch G_SI")
    A("G_SN:")
    A("s_add_u32 s43, s43, 256")
    A("s_cmp_lt_u32 s43, s47")
    A("s_cbranch_scc1 G_SS")
    A("s_branch G_SC")
    A("G_SE:")
    lds_signal(A, 16, 6)
    lds_wait(A, "G_S4", 16, 12, t1)
    A(f"s_mul_i32 s43, s{SV}, 2560")
    A(f"s_add_u32 s43, s43, {LL}")
    A(f"v_lshl_add_u32 v{t0}, v{t2}, 1, s43")
    for k in range(3):
        A(f"ds_read_b128 {vr(AC+8*k,4)}, v{t0} offset:{1024*k}")
    A("s_waitcnt lgkmcnt(0)")
    A("s_branch G_FIN")

def gen_exchange(A):
    st(A, "bg")
    if XP: A("s_setprio 2")
    A("s_load_dwordx2 s[6:7], s[0:1], 0")
    A("s_load_dwordx2 s[28:29], s[0:1], 72")
    if HF:
        A("s_waitcnt lgkmcnt(0)")
    else:
        A("s_load_dwordx2 s[48:49], s[0:1], 80")
        A("s_movk_i32 s50, 256")
        A("s_mov_b32 s51, 0x20000")
        A(f"s_or_b32 s42, s{SW}, s{SV}")
        A("s_waitcnt lgkmcnt(0)")
        A("s_cbranch_scc1 X_Z")
        A(f"v_mov_b32 v{T}, 0")
        A("s_mov_b64 exec, 1")
        A(f"buffer_store_dword v{T}, off, s[48:51], 0 sc1")
        A("s_mov_b64 exec, -1")
        A("X_Z:")
    final_setup_s(A)
    A.many(final_loads())
    A(f"s_lshl_b32 s42, s{SV}, 10")
    A(f"s_add_u32 s42, s42, {MTL}")
    A(f"v_add_u32 v{PW}, s42, v{DV}")
    A(f"v_lshl_add_u32 v{PW+2}, v0, 2, v{MB}")
    if not XP: A("s_setprio 0")
    A("X_D:")
    A(f"s_cmp_lg_u32 s{TH}, 4")
    A("s_cbranch_scc1 X_1")
    if XP: A("s_setprio 0")
    lds_wait(A, "X_WE", 8, 4, T)
    A("s_branch X_H")
    A("X_1:")
    A(f"s_cmp_eq_u32 s{MD}, 2")
    A("s_cbranch_scc1 X_2")
    A(f"ds_read_b32 v{T}, v{MB} offset:8")
    A("s_waitcnt lgkmcnt(0)")
    A(f"v_readfirstlane_b32 s57, v{T}")
    A(f"s_cmp_ge_u32 s57, s{TH}")
    A("s_cbranch_scc1 X_H")
    e_offs(A)
    A(f"s_mov_b32 s58, {LIMIT}")
    A(f"s_cmp_eq_u32 s{MD}, 3")
    A(f"s_mov_b32 s{MD}, 2")
    A("s_cbranch_scc1 X_PE_C")
    A("X_PE_P:")
    A(f"s_lshl_b32 s45, s{SV}, 12")
    for o in range(3): A(f"s_add_u32 s{48+o}, s{42+o}, s45")
    spoll(A, "X_QE", [48, 49, 50], 3068, init=False)
    fetch_ld(A, 3, BUF)
    A("X_PE_C:")
    A(f"s_setprio {EP}")
    fetch_chk(A, 3, BUF)
    A("s_sub_u32 s58, s58, 1")
    A("s_cbranch_scc1 X_PE_X")
    A("s_cbranch_vccnz X_PE_P")
    A("X_PE_X:")
    for i in range(8):
        A(f"v_add_f32 v{BUF+POS[i]}, v{BUF+POS[i]}, v{EK+i}")
        A(f"v_add_f32 v{BUF+12+POS[i]}, v{BUF+12+POS[i]}, v{BUF+24+POS[i]}")
    for i in range(8):
        A(f"v_add_f32 v{ER+i}, v{BUF+POS[i]}, v{BUF+12+POS[i]}")
    put_p(A, 0, "X_LE")
    A("s_setprio 0")
    st(A, "xe")
    if IW:
        A("s_cmp_lg_u32 s3, 4")
        A("s_cbranch_scc1 X_2")
        A("s_mov_b64 exec, 0")
        A("s_branch PAD0")
        A("PADX:")
        A("s_mov_b64 exec, -1")
    A("X_2:")
    A(f"s_cmp_lg_u32 s{TH}, 8")
    A("s_cbranch_scc1 X_3")
    if WP: A(f"s_setprio {WP}")
    lds_wait(A, "X_WS", 8, 8, T)
    A("s_branch X_H")
    A("X_3:")
    A("s_setprio 2")
    A(f"s_xor_b32 s42, s{SW}, 1")
    A("s_lshl_b32 s42, s42, 14")
    A(f"s_add_u32 s42, s42, {WS_PS - WS_PE:#x}")
    st(A, "xs")
    if SPL:
        A(f"s_lshl_b32 s45, s{SV}, 12")
        A("s_add_u32 s48, s42, s45")
        spoll(A, "X_QP", [48], 3068)
    else:
        A("s_mov_b64 exec, 1")
        poll1(A, "X_QP", PO, "s42", T+1, 8, 3068)
    fetch_ld(A, 1, T)
    lds_wait(A, "X_WO", 12, 4, BUF)
    own_sum(A)
    fetch_chk(A, 1, T)
    A("s_cbranch_vccz X_OK")
    fetch(A, "X_PP", 1)
    A("X_OK:")
    st(A, "xp")
    for i in range(8):
        A(f"v_add_f32 v{ER+i}, v{ER+i}, v{T+POS[i]}")
    put_p(A, 1, "X_LO")

PW = 246
def own_sum(A):
    A(f"v_subrev_u32 v{T+12}, {STG}, v{RS}")
    for k in range(4):
        A(f"ds_read_b128 {vr(BUF+8*k,4)}, v{T+12} offset:{RING*k}")
        A(f"ds_read_b128 {vr(BUF+8*k+4,4)}, v{T+12} offset:{RING*k+1024}")
    A("s_waitcnt lgkmcnt(4)")
    for i in range(4):
        A(f"v_pk_add_f32 {vr(BUF+2*i,2)}, {vr(BUF+2*i,2)}, {vr(BUF+8+2*i,2)}")
    A("s_waitcnt lgkmcnt(0)")
    for i in range(4):
        A(f"v_pk_add_f32 {vr(BUF+16+2*i,2)}, {vr(BUF+16+2*i,2)}, {vr(BUF+24+2*i,2)}")
    for i in range(4):
        A(f"v_pk_add_f32 {vr(ER+2*i,2)}, {vr(BUF+2*i,2)}, {vr(BUF+16+2*i,2)}")
def put_p(A, own, name):
    for i in range(4):
        A(f"v_cvt_pk_bf16_f32 v{BUF+i}, v{ER+2*i}, v{ER+2*i+1}")
    A(f"ds_write_b128 v{PW}, {vr(BUF,4)} offset:{4096*own}")
    A("s_cmp_lg_u32 s3, 7")
    A(f"s_cbranch_scc1 {name}")
    A(f"ds_write_b32 v{PW+2}, v{ER+7} offset:{LE-MISC+256*own}")
    A(f"{name}:")

POS = [0, 1, 2, 4, 5, 6, 8, 9]
def e_offs(A):
    for o in range(1, 4):
        A(f"s_xor_b32 s{41+o}, s{SW}, {o}")
        A(f"s_lshl_b32 s{41+o}, s{41+o}, 14")
def fetch_ld(A, n, T):
    for o in range(n):
        for j in range(3):
            A(f"buffer_load_dwordx4 {vr(T+12*o+4*j,4)}, v{PO}, s[8:11], s{42+o} offen offset:{1024*j} sc1")
def fetch_chk(A, n, T):
    A("s_waitcnt vmcnt(0)")
    A(f"v_cmp_ne_u32 vcc, s{SN}, v{T+3}")
    for g in range(1, 3*n):
        A(f"v_cmp_ne_u32 s[56:57], s{SN}, v{T+4*g+3}")
        A("s_or_b64 vcc, vcc, s[56:57]")
def fetch(A, name, n):
    A(f"s_mov_b32 s58, {LIMIT}")
    A(f"{name}:")
    for o in range(n):
        for j in range(3):
            A(f"buffer_load_dwordx4 {vr(T+12*o+4*j,4)}, v{PO}, s[8:11], s{42+o} offen offset:{1024*j} sc1")
    A("s_waitcnt vmcnt(0)")
    A(f"v_cmp_ne_u32 vcc, s{SN}, v{T+3}")
    for g in range(1, 3*n):
        A(f"v_cmp_ne_u32 s[56:57], s{SN}, v{T+4*g+3}")
        A("s_or_b64 vcc, vcc, s[56:57]")
    A("s_sub_u32 s58, s58, 1")
    A(f"s_cbranch_scc1 {name}_X")
    A(f"s_cbranch_vccnz {name}")
    A(f"{name}_X:")

def gen_handler(A, nm):
    A(f"{nm}_H:")
    A("s_setprio 2")
    for k in range(4):
        A(f"ds_read_b128 {vr(T+8*k,4)}, v{RS} offset:{8192*k}")
        A(f"ds_read_b128 {vr(T+8*k+4,4)}, v{RS} offset:{8192*k+1024}")
    lds_signal(A, 20, 6)
    A(f"s_sub_u32 s44, s{TH}, 4")
    A(f"s_lshl_b32 s42, s{SW}, 14")
    A(f"s_mul_i32 s43, s44, {(WS_PS - WS_PE)//4:#x}")
    A("s_add_u32 s42, s42, s43")
    A("s_waitcnt lgkmcnt(5)")
    for i in range(8):
        A(f"v_add_f32 v{T+i}, v{T+i}, v{T+8+i}")
    A("s_waitcnt lgkmcnt(1)")
    for i in range(8):
        A(f"v_add_f32 v{T+16+i}, v{T+16+i}, v{T+24+i}")
    for i in range(8):
        A(f"v_add_f32 v{PK+POS[i]}, v{T+i}, v{T+16+i}")
        if i in (2, 5, 7):
            A(f"buffer_store_dwordx4 {vr(PK+4*(i//3),4)}, v{PO}, s[8:11], s42 offen offset:{1024*(i//3)} sc1")
    A(f"s_cmp_lg_u32 s{TH}, 4")
    A(f"s_cbranch_scc1 {nm}_H1")
    for i in range(8):
        A(f"v_mov_b32 v{EK+i}, v{PK+POS[i]}")
    st(A, "wE")
    A(f"{nm}_H1:")
    A(f"s_add_u32 s{TH}, s{TH}, 4")
    A("s_setprio 0")
    A("s_cmp_eq_u32 s61, 0")
    A("s_cbranch_scc1 G_RET")
    A("s_branch X_D")

ER = 40
def put_le(A, t, name="X_LE"):
    A("s_cmp_lg_u32 s3, 7")
    A(f"s_cbranch_scc1 {name}")
    A(f"v_lshl_add_u32 v{t}, v0, 2, v{MB}")
    A(f"ds_write_b32 v{t}, v{ER+7} offset:{LE-MISC}")
    A(f"{name}:")

def gen_nonce(A):
    A("s_load_dwordx2 s[16:17], s[0:1], 80")
    A("s_memrealtime s[44:45]")
    A("s_movk_i32 s18, 256")
    A("s_mov_b32 s19, 0x20000")
    A("s_cmp_lg_u32 s3, 0")
    A("s_cbranch_scc1 HELP")
    A("s_mov_b64 exec, 1")
    A("s_waitcnt lgkmcnt(0)")
    A("s_mul_i32 s45, s45, 0x9e3779b1")
    A("s_xor_b32 s44, s44, s45")
    A(f"s_or_b32 s{SN}, s44, 1")
    A(f"v_mov_b32 v7, s{SN}")
    A("buffer_store_dword v7, off, s[16:19], 0 sc1")
    A(f"ds_write_b32 v{MB}, v7")
    A("s_mov_b64 exec, -1")
    A("s_branch HELP")

def gen_helper(A):
    A("HELP:")
    A("s_load_dwordx2 s[8:9], s[0:1], 32")
    A("s_load_dwordx4 s[28:31], s[0:1], 56")
    A("v_and_b32 v1, 31, v0")
    A("v_lshrrev_b32 v2, 5, v0")
    pi_perm(A, 3, 1, 4)
    A("s_lshr_b32 s36, s3, 2")
    A("s_bfe_u32 s37, s3, 0x10001")
    A("s_and_b32 s38, s3, 1")
    A("s_cmp_eq_u32 s36, 0")
    A("s_cselect_b64 vcc, -1, 0")
    A("s_movk_i32 s39, 8064")
    if not NH: A("s_cselect_b32 s39, 0x10000, s39")
    A("v_cndmask_b32 v4, v1, v3, vcc")
    A("v_lshlrev_b32 v4, 7, v4")
    A("v_lshl_add_u32 v4, v2, 4, v4")
    A("v_lshlrev_b32 v5, 4, v2")
    A("s_lshl_b32 s40, s37, 12")
    A("v_lshlrev_b32 v6, 10, v2")
    A("v_lshl_add_u32 v6, v3, 1, v6")
    A("s_lshl_b32 s41, s38, 6")
    A("s_add_u32 s42, s41, 0x1000")
    A("s_waitcnt lgkmcnt(0)")
    flag_srd(A)
    A("s_cmp_eq_u32 s36, 0")
    A("s_cselect_b32 s48, s8, s28")
    A("s_cselect_b32 s49, s9, s29")
    A("s_mov_b32 s50, 8192")
    A("s_mov_b32 s51, 0x20000")
    srd(A, 20, 30, 0, 8192)
    srd(A, 24, 4, WS_W, 16384)
    AF, A2, BF, D = 16, 32, 48, 64
    for j in range(4):
        A(f"buffer_load_dwordx4 {vr(AF+4*j,4)}, v4, s[48:51], s40 offen offset:{32*j}")
        A(f"buffer_load_dwordx4 {vr(A2+4*j,4)}, v5, s[48:51], s39 offen offset:{32*j}")
    for hi in range(2):
        for j in range(4):
            for k in range(4):
                jj = 2*k + hi
                A(f"buffer_load_ushort v{BF+4*j+k+32*hi}, v6, s[20:23], {'s41' if j < 2 else 's42'} offen offset:{(16*(j&1)+jj)*128}")
    A("s_waitcnt vmcnt(0)")
    st(A, "hn")
    for r in range(16):
        A(f"v_lshl_or_b32 v{BF+r}, v{BF+32+r}, 16, v{BF+r}")
    for r in range(16):
        A(f"v_xor_b32 v{A2+r}, 0x80008000, v{A2+r}")
    A("s_nop 1")
    for j in range(4):
        A(f"v_mfma_f32_32x32x16_bf16 {vr(D,16)}, {vr(AF+4*j,4)}, {vr(BF+4*j,4)}, {'0' if j == 0 else vr(D,16)}")
    for j in range(4):
        A(f"v_mfma_f32_32x32x16_bf16 {vr(D,16)}, {vr(A2+4*j,4)}, {vr(BF+4*j,4)}, {vr(D,16)}")
    A("s_lshl_b32 s43, s36, 13")
    A("s_lshl_b32 s44, s38, 12")
    A("s_add_u32 s43, s43, s44")
    A("s_lshl_b32 s44, s37, 11")
    A("s_add_u32 s43, s43, s44")
    A("s_nop 7")
    A("s_nop 7")
    for r in range(8):
        A(f"v_cvt_pk_bf16_f32 v{AF+r}, v{D+2*r}, v{D+2*r+1}")
    A(f"buffer_store_dwordx4 {vr(AF,4)}, v{DV}, s[24:27], s43 offen sc1")
    A(f"buffer_store_dwordx4 {vr(AF+4,4)}, v{DV}, s[24:27], s43 offen offset:1024 sc1")
    A("s_waitcnt vmcnt(0)")
    st(A, "hw")
    A("s_waitcnt lgkmcnt(0)")
    A("s_barrier")
    if HF:
        A("s_cmp_ge_u32 s3, 4")
        A("s_cbranch_scc1 H_B")
        A(f"ds_read_b32 v16, v{MB}")
        A("v_lshlrev_b32 v17, 7, v0")
        A("s_lshl_b32 s42, s3, 13")
        A(f"s_add_u32 s42, s42, {FS}")
        A("s_waitcnt lgkmcnt(0)")
        A(f"v_readfirstlane_b32 s{SN}, v16")
        A("s_cmp_eq_u32 s3, 3")
        A("s_cselect_b32 exec_hi, 0x0fffffff, -1")
        A(f"s_mov_b32 s58, {LIMIT}")
        A("H_PS:")
        A("buffer_load_dwordx4 v[20:23], v17, s[12:15], s42 offen sc1")
        A("s_waitcnt vmcnt(0)")
        for r in range(20, 24): A(f"v_xor_b32 v{r}, s{SN}, v{r}")
        A("v_or3_b32 v20, v20, v21, v22")
        A("v_or_b32 v20, v20, v23")
        A("v_cmpx_ne_u32 vcc, 0, v20")
        A("s_sub_u32 s58, s58, 1")
        A("s_cbranch_scc1 H_PX")
        A("s_cbranch_execnz H_PS")
        A("H_PX:")
        A("s_mov_b32 exec_lo, -1")
        A("s_mov_b32 exec_hi, 0")
        A("v_lshlrev_b32 v17, 9, v0")
        A("s_lshl_b32 s42, s3, 7")
        A(f"s_add_u32 s42, s42, {FB}")
        A("buffer_store_dword v16, v17, s[12:15], s42 offen sc1")
        A("H_B:")
        A("s_barrier")
        A("s_cmp_lg_u32 s3, 0")
        A("s_cbranch_scc1 FIN_X")
        A("v_mov_b32 v18, 0")
        A("s_mov_b64 exec, 1")
        A("buffer_store_dword v18, off, s[16:19], 0 sc1")
        A("s_mov_b64 exec, -1")
        A("s_branch FIN_X")
        return
    A("s_cmp_lg_u32 s3, 0")
    A("s_cbranch_scc1 FIN_X")
    A(f"s_mov_b32 s43, {FS+252*128}")
    flag_store(A, "s43", 17, 4)
    A("s_branch FIN_X")
```

```python
from common import Asm, vr, sr, srd, f2u, interleave, kernel_begin, descriptor, stamp, stamp_init, stamp_dump, PROF, LOG2E, N, E
import os
X = os.environ.get("X", "")
M16 = int(os.environ.get("M16", "1"))
DP = int(os.environ.get("DP", "0"))
NH = int(os.environ.get("NH", "1"))
DM = 242
WS_G = 0x000000
WS_H = 0x140000
WS_W = 0x280000
WS_F = 0x290000
FG, FS, FB = 0, 0x8000, 0x10000
WS_PE = 0x300000
WS_PS = 0x700000
WS_E = 0xB00000
E2 = 0x400000
NB = 250
CH = 2560
RING = 20480
STG = 4 * RING
CELL = 144
QX = STG + 256 * CELL
AL = QX + 12288
ASTR = 144
MISC = AL + 40 * ASTR
LE = MISC + 64
DUM = LE + 256
LST = DUM + 512
LL = LST + 512
MTL = LL + 12288
LDS = 163840
assert LL + 39 * 256 + 2 * 250 * 31 <= LDS, LL
HELPER = 231
LIMIT = int(os.environ.get("LIMIT", "100000"))
SW, SI, SN, SV, SHF, SP = 33, 34, 35, 39, 41, 46
KA = 2; VA = 6; IDX = 10; DV = 11
S0 = 16; KF = 64; VF = 80; O = 96; Q = 192
MB = 15

_ST = {}
for _i, _g in enumerate(os.environ.get("ST", "lnx:pg:bpub:hn,lnq:n3:bsort:hw,a3:bps,a4:bl,a5:bg,fs").split(",")):
    for _n in _g.split(":"): _ST[_n] = _i + 1
def st(A, name):
    if name in _ST: stamp(A, _ST[name])

def flag_srd(A):
    srd(A, 12, 4, WS_F, 0x14000)

def poll1(A, name, voff, soff, t, sd=12, off=0):
    A(f"s_mov_b32 s58, {LIMIT}")
    A(f"{name}:")
    A(f"buffer_load_dword v{t}, v{voff}, s[{sd}:{sd+3}], {soff} offen offset:{off} sc1")
    A("s_waitcnt vmcnt(0)")
    A(f"v_cmpx_ne_u32 vcc, s{SN}, v{t}")
    A("s_sub_u32 s58, s58, 1")
    A(f"s_cbranch_scc1 {name}_X")
    A(f"s_cbranch_execnz {name}")
    A(f"{name}_X:")
    A("s_mov_b64 exec, -1")

def spoll(A, name, soffs, off, sd=8, init=True):
    if init: A(f"s_mov_b32 s58, {LIMIT}")
    A(f"{name}:")
    for i, so in enumerate(soffs):
        A(f"s_buffer_load_dword s{(52, 53, 59)[i]}, s[{sd}:{sd+3}], s{so} offset:{off} glc")
    A("s_sub_u32 s58, s58, 1")
    A(f"s_cbranch_scc1 {name}_X")
    A("s_waitcnt lgkmcnt(0)")
    for i in range(len(soffs)):
        A(f"s_cmp_lg_u32 s{(52, 53, 59)[i]}, s{SN}")
        A(f"s_cbranch_scc1 {name}")
    A(f"{name}_X:")
    A("s_waitcnt lgkmcnt(0)")
    if not init: A("s_max_i32 s58, s58, 0")

def lds_wait(A, name, off, target, t, mask=None):
    A(f"s_mov_b32 s58, {LIMIT*8}")
    A(f"{name}:")
    if "s" in X and name.startswith("X_"): A("s_sleep 16")
    A(f"ds_read_b32 v{t}, v{MB} offset:{off}")
    A("s_waitcnt lgkmcnt(0)")
    A(f"v_readfirstlane_b32 s57, v{t}")
    A("s_sub_u32 s58, s58, 1")
    A(f"s_cbranch_scc1 {name}_X")
    if mask:
        A(f"s_and_b32 s59, s57, {mask:#x}")
    A(f"s_cmp_lt_u32 s{59 if mask else 57}, {target}")
    A(f"s_cbranch_scc1 {name}")
    A(f"{name}_X:")

def lds_signal(A, off, val):
    A("s_mov_b64 exec, 1")
    A(f"ds_add_u32 v{MB}, v{val} offset:{off}")
    A("s_mov_b64 exec, -1")

def flag_store(A, soff, t, n=1):
    A(f"v_mov_b32 v{t}, s{SN}")
    A("s_mov_b64 exec, 1")
    for i in range(n):
        A(f"buffer_store_dword v{t}, off, s[12:15], {soff} offset:{128*i} sc1")
    A("s_mov_b64 exec, -1")

def pi_perm(A, d, n, t):
    A(f"v_and_b32 v{d}, 0x13, v{n}")
    A(f"v_and_b32 v{t}, 4, v{n}")
    A(f"v_lshl_or_b32 v{d}, v{t}, 1, v{d}")
    A(f"v_and_b32 v{t}, 8, v{n}")
    A(f"v_lshrrev_b32 v{t}, 1, v{t}")
    A(f"v_or_b32 v{d}, v{d}, v{t}")

def frag_addrs(A, lane, sbase, t0, t1):
    A(f"v_and_b32 v{t0}, 2, v{lane}")
    A(f"v_lshlrev_b32 v{t0}, 1, v{t0}")
    A(f"v_bfe_u32 v{t1}, v{lane}, 2, 2")
    if M16: A(f"v_and_b32 v{t1}, 2, v{t1}")
    A(f"v_or_b32 v{t0}, v{t0}, v{t1}")
    A(f"v_lshrrev_b32 v{t1}, 5, v{lane}")
    A(f"v_xor_b32 v{t0}, v{t0}, v{t1}")
    A(f"v_and_b32 v{t1}, 31, v{lane}")
    A(f"v_lshlrev_b32 v{t1}, 7, v{t1}")
    A(f"v_lshl_add_u32 v{t0}, v{t0}, 4, v{t1}")
    A(f"v_add_u32 v{KA}, s{sbase}, v{t0}")
    for j in range(1, 4):
        A(f"v_xor_b32 v{KA+j}, {32*j}, v{KA}")
    A(f"v_lshrrev_b32 v{t0}, 5, v{lane}")
    A(f"v_bfe_u32 v{t1}, v{lane}, 2, 2")
    A(f"v_lshl_add_u32 v{VA}, v{t0}, 3, v{t1}")
    A(f"v_lshlrev_b32 v{VA}, 7, v{VA}")
    A(f"v_bfe_u32 v{t1}, v{lane}, 4, 1")
    A(f"v_xor_b32 v{t0}, v{t0}, v{t1}")
    A(f"v_lshl_add_u32 v{VA}, v{t0}, 5, v{VA}")
    A(f"v_bfe_u32 v{t0}, v{lane}, 3, 1")
    A(f"v_lshl_add_u32 v{VA}, v{t0}, 6, v{VA}")
    A(f"v_and_b32 v{t0}, 3, v{lane}")
    A(f"v_lshl_add_u32 v{VA}, v{t0}, 3, v{VA}")
    A(f"v_add_u32 v{VA}, s{sbase}, v{VA}")
    A(f"v_xor_b32 v{VA+1}, {0 if M16 else 16}, v{VA}")
    A(f"v_add_u32 v{VA+1}, 0x200, v{VA+1}")
    A(f"v_xor_b32 v{VA+2}, 64, v{VA}")
    A(f"v_xor_b32 v{VA+3}, 64, v{VA+1}")
    A(f"v_mov_b32 v{IDX}, 0xdddddddd")

def dma_ld(i):
    return f"buffer_load_dwordx4 v{DM+(i&1) if NH else DV}, s[8:11], s37 offen offset:{1024*i}{'' if 'n' in X else ' sc1'} lds"
def dma_addr(A, t):
    if not NH: return
    A(f"v_and_b32 v{t}, 16, v0")
    A(f"v_lshlrev_b32 v{t}, 2, v{t}")
    A(f"v_xor_b32 v{DM}, v{t}, v{DV}")
    if not M16:
        A(f"v_and_b32 v{t}, 32, v0")
        A(f"v_lshrrev_b32 v{t}, 1, v{t}")
        A(f"v_xor_b32 v{DM}, v{t}, v{DM}")
    A(f"v_xor_b32 v{DM+1}, 32, v{DM}")
def kread(j, slot):
    return f"ds_read_b128 {vr(KF+4*j,4)}, v{KA+j} offset:{slot*4096}"
def vread(ks, dh, slot):
    d = VF + 4*(2*ks + dh)
    return [f"ds_read_b64_tr_b16 {vr(d+2*i,2)}, v{VA+2*dh+i} offset:{slot*4096+2048*ks}" for i in range(2)]
def qk(sb, j, t):
    s = S0 + 16*sb
    c = "0" if j == 0 else vr(s, 16)
    return f"v_mfma_f32_32x32x16_bf16 {vr(s,16)}, {vr(KF+4*j,4)}, {vr(Q+16*t+4*j,4)}, {c}"
def pv(sb, t, ks, dh):
    o = O + 32*t + 16*dh
    return f"v_smfmac_f32_32x32x32_bf16 {vr(o,16)}, {vr(VF+4*(2*ks+dh),4)}, {vr(S0+16*sb+8*ks,8)}, v{IDX}"

D2 = KA + 2
def frag16(A, lane, sbase, t0, t1):
    A(f"v_lshrrev_b32 v{t0}, 4, v{lane}")
    A(f"v_and_b32 v{t1}, 15, v{lane}")
    A(f"v_lshlrev_b32 v{D2}, 4, v{t1}")
    A(f"v_lshl_add_u32 v{D2}, v{t0}, 9, v{D2}")
    A(f"v_lshlrev_b32 v{KA}, 7, v{t1}")
    A(f"v_lshl_add_u32 v{KA}, v{t0}, 4, v{KA}")
    A(f"v_and_b32 v{t1}, 2, v{lane}")
    A(f"v_lshlrev_b32 v{t1}, 5, v{t1}")
    A(f"v_xor_b32 v{KA}, v{KA}, v{t1}")
    if DP:
        A(f"v_and_b32 v{t1}, 12, v{lane}")
        A(f"v_lshl_add_u32 v{KA}, v{t1}, 7, v{KA}")
        A(f"v_and_b32 v{t1}, 4, v{lane}")
        A(f"v_lshlrev_b32 v{t1}, 3, v{t1}")
        A(f"v_xor_b32 v{KA}, v{KA}, v{t1}")
    A(f"v_and_b32 v{t1}, 8, v{lane}")
    if not DP:
        A(f"v_lshlrev_b32 v{KA+1}, 2, v{t1}")
        A(f"v_xor_b32 v{KA}, v{KA}, v{KA+1}")
    A(f"v_add_u32 v{KA}, s{sbase}, v{KA}")
    A(f"v_xor_b32 v{KA+1}, 64, v{KA}")
    A(f"v_lshlrev_b32 v{VA}, 3, v{t1}")
    A(f"v_lshl_add_u32 v{VA}, v{t0}, 10, v{VA}")
    A(f"v_and_b32 v{t0}, 1, v{t0}")
    A(f"v_lshl_add_u32 v{VA}, v{t0}, 5, v{VA}")
    A(f"v_bfe_u32 v{t0}, v{lane}, 2, 2")
    A(f"v_lshl_add_u32 v{VA}, v{t0}, 7, v{VA}")
    A(f"v_and_b32 v{t0}, 3, v{lane}")
    A(f"v_lshl_add_u32 v{VA}, v{t0}, 3, v{VA}")
    A(f"v_add_u32 v{VA}, s{sbase}, v{VA}")
    for db in range(1, 4):
        A(f"v_xor_b32 v{VA+db}, {32*db}, v{VA}")
    A(f"v_mov_b32 v{IDX}, 0xdddddddd")
def kread16(j, slot):
    return f"ds_read_b128 {vr(KF+4*j,4)}, v{KA+(j>>1)} offset:{slot*4096+(512 if DP else 2048)*(j&1)}"
def vread16(slot):
    return [f"ds_read_b64_tr_b16 {vr(VF+4*db+2*i,2)}, v{VA+db} offset:{slot*4096+512*i}" for db in range(4) for i in range(2)]
def qk16(sb, t):
    L = []
    for j in range(4):
        for qh in range(2):
            s = S0 + 16*sb + 8*qh + 4*(j & 1)
            L.append(f"v_mfma_f32_16x16x32_bf16 {vr(s,4)}, {vr(KF+4*j,4)}, {vr(Q+16*t+8*qh+4*(j>>1),4)}, {'0' if j < 2 else vr(s,4)}")
    return L
def cvt16(sb, j):
    b = S0 + 16*sb + 8*(j >> 2); j &= 3
    return f"v_cvt_pk_bf16_f32 v{b+j}, v{b+2*j}, v{b+2*j+1}"
def pv16(sb, t, qh, db):
    o = vr(O+32*t+8*db+4*qh,4)
    if DP: return f"v_mfma_f32_16x16x32_bf16 {o}, {vr(VF+4*db,4)}, {vr(S0+16*sb+8*qh,4)}, {o}"
    return f"v_smfmac_f32_16x16x64_bf16 {vr(O+32*t+8*db+4*qh,4)}, {vr(VF+4*db,4)}, {vr(S0+16*sb+8*qh,8)}, v{IDX}"
def unit16(sp, tp, sn, tn, sc, tc):
    return [pv16(sp, tp, 0, 2), pv16(sp, tp, 0, 3)] + [pv16(sp, tp, 1, d) for d in range(4)] + \
           (qk16(sn, tn) if tn is not None else [None]*8) + [pv16(sc, tc, 0, 0), pv16(sc, tc, 0, 1)]
```

```python
import sys, os
sys.path.insert(0, os.path.dirname(os.path.abspath(__file__)))
from fc import *
import fa, fb
from fa import WF, XF, XO, WO, RA
NAME = "gather_scatter__hybrid_graph_tf_graphgps__graph"
NQT = 313

def gen_final(A):
    SL, LA = 36, 37; LR = 38; PR = fb.ER; AF = 112; D = 96; SW_, SR_ = 92, 93; LP = 120; PW, PRD = 246, 247
    def scratch_addrs():
        A(f"s_mul_i32 s42, s{SV}, {RING}")
        A(f"s_lshl_b32 s43, s{SV}, 13")
        A(f"s_add_u32 s43, s43, {STG+8192}")
        A("s_cmp_ge_u32 s3, 4")
        A("s_cselect_b32 s42, s43, s42")
        A(f"v_add_u32 v{SW_}, s42, v{DV}")
    A("FINAL:")
    A(f"s_cmp_ge_u32 s{SW}, {NB}")
    A("s_cbranch_scc1 FIN_X")
    def mm(m, k, b):
        d = vr(D+8*m+4*(k&1), 4)
        A(f"v_mfma_f32_16x16x32_bf16 {d}, {vr(WF+16*m+4*k,4)}, {vr(b+4*(k>>1),4)}, {'0' if k < 2 else d}")
    XE = 128; lo, hi = f2u(2.0**-64), f2u(2.0**100)
    A("s_mov_b64 s[56:57], -1")
    A("s_mov_b32 s48, 0xffff0000")
    A("s_waitcnt vmcnt(0)")
    for i in range(4):
        A(f"v_lshlrev_b32 v{XE+2*i}, 16, v{XF+i}")
        A(f"v_and_b32 v{XE+2*i+1}, s48, v{XF+i}")
    A("F_SYNC:")
    A("s_waitcnt lgkmcnt(0)")
    A("s_barrier")
    st(A, "fs")
    A(f"ds_read_b32 v{LP}, v251 offset:{LE-MISC+256}")
    A(f"ds_read_b32 v{LP+1}, v251 offset:{LE-MISC}")
    A(f"ds_read_b32 v{LP+2}, v249")
    A(f"ds_read_b128 {vr(PR,4)}, v250")
    A(f"ds_read_b128 {vr(PR+4,4)}, v250 offset:2048")
    A(f"ds_read_b128 {vr(AF,4)}, v1")
    A(f"ds_read_b128 {vr(AF+4,4)}, v1 offset:64")
    A("s_waitcnt lgkmcnt(4)")
    A(f"v_cndmask_b32 v{LP+1}, v{LP}, v{LP+1}, s[54:55]")
    A(f"v_rcp_f32 v{LP+2}, v{LP+2}")
    A(f"v_subrev_u32 v{LP}, {lo:#x}, v{LP}")
    A(f"v_subrev_u32 v{LP+1}, {lo:#x}, v{LP+1}")
    A(f"v_max_u32 v{LP}, v{LP}, v{LP+1}")
    A(f"v_cmp_lt_u32 vcc, {hi-lo:#x}, v{LP}")
    A("s_waitcnt lgkmcnt(2)")
    for k in range(4): mm(1, k, PR)
    A("s_waitcnt lgkmcnt(0)")
    for k in range(4): mm(0, k, AF)
    A("s_and_b64 vcc, vcc, s[56:57]")
    A("s_cbranch_scc1 F_FB")
    A("s_nop 5")
    for i in range(4):
        A(f"v_pk_fma_f32 {vr(D+2*i,2)}, {vr(D+8+2*i,2)}, {vr(LP+2,2)}, {vr(D+2*i,2)} op_sel_hi:[1,0,1]")
    for i in range(4):
        A(f"v_cvt_pk_bf16_f32 v{PR+8+i}, v{D+2*i}, v{D+2*i+1}")
    for i in range(4):
        A(f"v_lshlrev_b32 v{PR+2*i}, 16, v{PR+8+i}")
        A(f"v_and_b32 v{PR+2*i+1}, s48, v{PR+8+i}")
    for i in range(4):
        A(f"v_pk_add_f32 {vr(PR+2*i,2)}, {vr(PR+2*i,2)}, {vr(XE+2*i,2)}")
    for i in range(4):
        A(f"v_cvt_pk_bf16_f32 v{PR+8+i}, v{PR+2*i}, v{PR+2*i+1}")
    A(f"buffer_store_dwordx4 {vr(PR+8,4)}, v{XO}, s[24:27], 0 offen {os.environ.get('OS', '')}")
    A("FIN_X:")
    stamp_dump(A, 0, 4, 3, 8)
    A("END:")
    A("s_endpgm")
    MX = 40; CI = S0 + 32; t0, t1 = 41, 42
    A("F_FB:")
    A("s_nop 7")
    A("s_barrier")
    A("s_mov_b64 s[56:57], 0")
    srd(A, 8, 4, WS_G, N * 128)
    A("s_lshr_b32 s42, s3, 2")
    A("s_lshl_b32 s43, s42, 12")
    A(f"s_add_u32 s43, s43, {QX}")
    A(f"v_add_u32 v{t0}, s43, v{DV}")
    for j in range(4):
        A(f"ds_read_b128 {vr(Q+4*j,4)}, v{t0} offset:{1024*j}")
    A("s_lshl_b32 s36, s3, 12")
    frag_addrs(A, 0, 36, t0, t1)
    dma_addr(A, t0)
    A("s_mov_b32 m0, s36")
    A(f"v_mov_b32 v{MX}, 0xff800000")
    A("v_cmp_lt_u32 vcc, 31, v0")
    A("s_waitcnt lgkmcnt(0)")
    A(f"v_and_b32 v{t0}, 0xffff, v{Q+15}")
    A(f"v_cndmask_b32 v{Q+15}, v{Q+15}, v{t0}, vcc")
    for ps in range(2):
        A(f"s_lshl_b32 s37, s{SV}, 12")
        A(f"F_P{ps}:")
        for i in range(4):
            A(dma_ld(i))
        A("s_waitcnt vmcnt(0)")
        for j in range(4):
            A(kread(j, 0))
        if ps:
            for ks in range(2):
                for dh in range(2):
                    A.many(vread(ks, dh, 0))
        A("s_waitcnt lgkmcnt(0)")
        for j in range(4):
            c = ("0" if ps == 0 else vr(CI, 16)) if j == 0 else vr(S0, 16)
            A(f"v_mfma_f32_32x32x16_bf16 {vr(S0,16)}, {vr(KF+4*j,4)}, {vr(Q+4*j,4)}, {c}")
        A("s_nop 7")
        A("s_nop 7")
        A(f"s_cmp_eq_u32 s37, {(NQT-1)*4096}")
        for ks in range(2):
            if ks:
                A(f"s_cbranch_scc1 F_S{ps}")
            if ps == 0:
                for r in range(4):
                    A(f"v_max3_f32 v{MX}, v{MX}, v{S0+8*ks+2*r}, v{S0+8*ks+2*r+1}")
            else:
                for r in range(8):
                    A(f"v_exp_f32 v{S0+8*ks+r}, v{S0+8*ks+r}")
                A("s_nop 2")
                A(pv(0, 0, ks, 0)); A(pv(0, 0, ks, 1))
        A(f"F_S{ps}:")
        A("s_add_u32 s37, s37, 0x4000")
        A(f"s_cmp_lt_u32 s37, {NQT*4096}")
        A(f"s_cbranch_scc1 F_P{ps}")
        if ps == 0:
            A(f"v_mov_b32 v{t0}, v{MX}")
            A(f"v_mov_b32 v{t1}, v{MX}")
            A("s_lshl_b32 s43, s3, 8")
            A("s_add_u32 s43, s43, 0x10000")
            A(f"v_permlane32_swap_b32 v{t0}, v{t1}")
            A("s_nop 1")
            A(f"v_max_f32 v{MX}, v{t0}, v{t1}")
            A(f"v_lshl_add_u32 v{t0}, v0, 2, s43")
            A(f"ds_write_b32 v{t0}, v{MX}")
            A("s_and_b32 s43, s43, 0x10400")
            A(f"v_lshl_add_u32 v{t0}, v0, 2, s43")
            A("s_waitcnt lgkmcnt(0)")
            A("s_barrier")
            for s in range(4):
                A(f"ds_read_b32 v{CI+s}, v{t0} offset:{256*s}")
            for r in range(32):
                A(f"v_mov_b32 v{O+r}, 0")
            A("s_waitcnt lgkmcnt(0)")
            A(f"v_max3_f32 v{MX}, v{CI}, v{CI+1}, v{CI+2}")
            A(f"v_max_f32 v{MX}, v{MX}, v{CI+3}")
            for r in range(16):
                A(f"v_sub_f32 v{CI+r}, 0, v{MX}")
    scratch_addrs()
    A("s_cselect_b32 s42, 0x2000, 0")
    A(f"v_add_u32 v{t0}, s42, v{SW_}")
    A("s_nop 7")
    A("s_nop 7")
    A("s_barrier")
    A.many(fa.dump(0, t0))
    A("s_waitcnt lgkmcnt(0)")
    A("s_barrier")
    A("s_cmp_lt_u32 s3, 4")
    A("s_cbranch_scc1 F_SYNC")
    T = 48
    for k in range(4):
        A(f"ds_read_b128 {vr(T+8*k,4)}, v{fb.RS} offset:{16384+8192*k}")
        A(f"ds_read_b128 {vr(T+8*k+4,4)}, v{fb.RS} offset:{16384+8192*k+1024}")
    A("s_waitcnt lgkmcnt(0)")
    for i in range(4):
        A(f"v_pk_add_f32 {vr(T+2*i,2)}, {vr(T+2*i,2)}, {vr(T+8+2*i,2)}")
        A(f"v_pk_add_f32 {vr(T+16+2*i,2)}, {vr(T+16+2*i,2)}, {vr(T+24+2*i,2)}")
    for i in range(4):
        A(f"v_pk_add_f32 {vr(PR+2*i,2)}, {vr(T+2*i,2)}, {vr(T+16+2*i,2)}")
    fb.put_p(A, 0, "F_LE")
    fb.own_sum(A)
    fb.put_p(A, 1, "F_LO")
    A("s_branch F_SYNC")

def gen(A):
    name = NAME + "_kernel"
    kernel_begin(A, name)
    A("s_cmp_ge_u32 s2, 256")
    A("s_cbranch_scc1 END")
    A("s_load_dwordx2 s[4:5], s[0:1], 88")
    A("v_lshrrev_b32 v1, 6, v0")
    A("v_and_b32 v0, 63, v0")
    A("v_readfirstlane_b32 s3, v1")
    A("s_lshr_b32 s42, s2, 5")
    A("s_lshl_b32 s42, s42, 3")
    A("s_and_b32 s43, s2, 7")
    A("s_add_u32 s42, s42, s43")
    A(f"s_bfe_u32 s{SI}, s2, 0x20003")
    A(f"s_lshl2_add_u32 s{SW}, s42, s{SI}")
    A(f"s_and_b32 s{SHF}, s{SI}, 1")
    A(f"s_lshr_b32 s{SP}, s{SI}, 1")
    A(f"s_and_b32 s{SV}, s3, 3")
    A(f"v_lshlrev_b32 v{DV}, 4, v0")
    A(f"v_mov_b32 v{MB}, {MISC}")
    stamp_init(A)
    A(f"s_cmp_eq_u32 s{SW}, 252")
    A("s_cbranch_scc0 NOTH")
    fb.gen_nonce(A)
    A("NOTH:")
    A(f"s_cmp_gt_u32 s{SW}, 252")
    A("s_cbranch_scc1 END")
    A("s_cmp_ge_u32 s3, 4")
    A("s_cbranch_scc1 B_MAIN")
    A("s_cmp_eq_u32 s3, 3")
    A("s_cbranch_scc1 A3")
    fa.gen_ln_q(A)
    fa.gen_attn(A)
    A("A3:")
    fa.gen_w3(A)
    A("s_branch A_MAIN")
    A("B_MAIN:")
    fb.gen_sort(A)
    fb.gen_gather(A)
    fb.gen_exchange(A)
    gen_final(A)
    fb.gen_handler(A, "X")
    fb.gen_slow(A)
    fb.gen_helper(A)
    if fb.IW:
        L = A.L; a = L.index("X_3:") + 1; b = L.index("FIN_X:")
        out = []; n = 0; k = 0
        for ln in L[a:b]:
            if n <= 0:
                out += [f"PAD{k}:", f"    s_cbranch_execz PAD{k+1}"]; k += 1; n = 7
            out.append(ln)
            if not ln.endswith(":"): n -= 1
        j = max(i for i, x in enumerate(out) if "s_cbranch_execz PAD" in x)
        out[j] = "    s_cbranch_execz PADX"
        A.L = L[:a] + out + L[b:]
    return name

def build(out):
    ref = open(f"cdna_kernels/{NAME}.s.ref").read().split("\n")
    hdr = [l for l in ref if l.startswith(";") and "@launch" not in l and "Override" not in l and "Harness parses" not in l]
    A = Asm()
    name = gen(A)
    txt = "\n".join(hdr) + "\n"
    txt += f"; @launch grid=(256,1,1) block=(512,1,1) lds={LDS}\n"
    txt += '.amdgcn_target "amdgcn-amd-amdhsa--gfx950"\n.text\n' + A.text()
    txt += '.section .rodata,"a"\n'
    txt += descriptor(name, 256, 72)
    open(out, "w").write(txt)
if __name__ == "__main__":
    build(sys.argv[1] if len(sys.argv) > 1 else "f.s")
```

```python
from fc import *
from fa import WL, P8, ln8, ln8_load, WF, XF, XO, WO, RA, final_setup_v, final_setup_s, final_loads

T = 140; RS = 176; PO = 177; EV = 178; PK = 180; EK = 192
TH = 60; MD = 40
GP = int(os.environ.get("GP", "1"))
DG = int(os.environ.get("DG", "6"))
SPL = int(os.environ.get("SPL", "1"))
HF = int(os.environ.get("HF", "1"))
WP = int(os.environ.get("WP", "2"))
LP = int(os.environ.get("LP", "3"))
SP2 = int(os.environ.get("SP2", "0"))
PACE = int(os.environ.get("PACE", "2"))
IW = int(os.environ.get("IW", "0"))
XP = int(os.environ.get("XP", "1"))
IL = int(os.environ.get("IL", "1"))
OW = int(os.environ.get("OW", "0"))
PSH, PSD = (15, 0x4000) if IL else (14, WS_PS - WS_PE)
SE = int(os.environ.get("SE", "1"))
EP = int(os.environ.get("EP", "2"))
def gen_sort(A):
    A("s_load_dwordx4 s[28:31], s[0:1], 8")
    if P8:
        A("s_load_dwordx2 s[16:17], s[0:1], 0")
        A("s_load_dwordx2 s[8:9], s[0:1], 80")
        ln8_load(A)
    A(f"s_lshl_b32 s42, s{SV}, 6")
    A("v_add_u32 v2, s42, v0")
    A("v_lshlrev_b32 v3, 4, v2")
    A("v_lshlrev_b32 v4, 3, v2")
    A(f"s_mul_i32 s50, s{SW}, {CH*4}")
    A("s_add_u32 s43, s50, 0x1000")
    A("s_add_u32 s44, s50, 0x2000")
    A("s_waitcnt lgkmcnt(0)")
    srd(A, 20, 30, 0, E * 4)
    srd(A, 24, 28, 0, E * 4)
    D = 76; S = 28; R = 40; B = 52
    def eloads(base, sd):
        A(f"buffer_load_dwordx4 {vr(base,4)}, v3, {sr(sd,4)}, s50 offen")
        A(f"buffer_load_dwordx4 {vr(base+4,4)}, v3, {sr(sd,4)}, s43 offen")
        A(f"buffer_load_dwordx2 {vr(base+8,2)}, v4, {sr(sd,4)}, s44 offen")
    Z = 64
    A(f"s_mov_b32 s49, {STG}")
    A(f"v_mov_b32 v10, {CELL}")
    A("v_lshrrev_b32 v5, 2, v2")
    A("v_and_b32 v7, 3, v2")
    A(f"v_mad_u32_u24 v73, v5, v10, s49")
    A("v_lshl_add_u32 v73, v7, 4, v73")
    A(f"s_and_b32 s42, s{SW}, 15")
    A("s_lshl_b32 s42, s42, 20")
    A("s_add_u32 s42, s42, 0x1000000")
    A(f"v_lshl_add_u32 v{Z+1}, v7, 18, s42")
    A("v_cmp_eq_u32 vcc, 0, v7")
    for r in range(2, 6):
        A(f"v_mov_b32 v{Z+r}, v{Z+1}")
    A(f"v_addc_co_u32 v{Z}, vcc, 0, v{Z+1}, vcc")
    for it in range(4):
        A(f"ds_write_b128 v73, {vr(Z,4)} offset:{64*CELL*it}")
        A(f"ds_write_b128 v73, {vr(Z+2,4)} offset:{64*CELL*it+64}")
    for r in range(4):
        A(f"v_mov_b32 v{Z+16+r}, -1")
        A(f"v_mov_b32 v{Z+20+r}, 0")
    A(f"v_add_u32 v5, {LL}, v3")
    for i in range(3):
        A(f"ds_write_b128 v5, {vr(Z+16,4)} offset:{4096*i}")
    A("v_mov_b32 v6, 1")
    A(f"v_lshlrev_b32 v5, 2, v0")
    A(f"v_add_u32 v8, {LST}, v5")
    A(f"v_add_u32 v5, {DUM}, v5")
    A(f"v_lshlrev_b32 v9, 8, v0")
    A(f"v_add_u32 v9, {LL}, v9")
    A("ds_write2st64_b32 v8, v9, v5 offset0:0 offset1:1")
    for i in range(3):
        A(f"ds_write_b128 v{MB}, {vr(Z+20,4)} offset:{16*i}")
    srd(A, 28, 4, WS_E, 2 * E2)
    flag_srd(A)
    A("s_mov_b32 s47, 52429")
    A("v_mov_b32 v7, 31")
    if P8:
        srd(A, 52, 4, WS_G, N * 128)
        A("s_movk_i32 s10, 256")
        A("s_mov_b32 s11, 0x20000")
        A("s_mov_b32 vcc_lo, 0x80808080")
        A("s_mov_b32 vcc_hi, vcc_lo")
        A("s_waitcnt lgkmcnt(0)")
        A("s_barrier")
        A("s_waitcnt vmcnt(0)")
        st(A, "bx")
        nl = "buffer_load_dword v5, off, s[8:11], 0 sc1"
        A(nl)
        ln8(A, 52)
        if WL: A("s_barrier")
        if "D" in X: eloads(D, 20)
        A(f"s_mov_b32 s58, {LIMIT}")
        A(f"s_waitcnt vmcnt({3 if 'D' in X else 0})")
        A("N_L:")
        A(f"v_readfirstlane_b32 s{SN}, v5")
        A("s_sub_u32 s58, s58, 1")
        A("s_cbranch_scc1 N_X")
        A(f"s_cmp_lg_u32 s{SN}, 0")
        A("s_cbranch_scc1 N_X")
        A(nl)
        A("s_waitcnt vmcnt(0)")
        A("s_branch N_L")
        A("N_X:")
        st(A, "bd")
        A("s_mov_b64 exec, 1")
        A(f"ds_add_rtn_u32 v72, v{MB}, v6 offset:28")
        A(f"s_or_b32 s{SN}, s{SN}, 1")
        A(f"s_lshl_b32 s42, s{SW}, 7")
        A(f"v_mov_b32 v5, s{SN}")
        A("s_waitcnt lgkmcnt(0)")
        A("v_cmpx_eq_u32 vcc, 3, v72")
        A("s_cbranch_execz N_G")
        A("buffer_store_dword v5, off, s[12:15], s42 sc1")
        A(f"ds_write_b32 v{MB}, v5")
        st(A, "f3")
        A("N_G:")
        A("s_mov_b64 exec, -1")
        if "D" not in X and "g" not in X: eloads(D, 20)
        if "a" in X: eloads(S, 24)
        gather_setup(A)
    else:
        gather_setup(A)
        A("s_barrier")
        if "g" not in X: eloads(D, 20)
        if "a" in X: eloads(S, 24)
        A("s_waitcnt lgkmcnt(0)")
        A("s_barrier")
    if "F" in X:
        lds_wait(A, "B_WN", 0, 1, 5)
        eloads(D, 20)
    if "p" in X: A("s_setprio 2")
    A("s_load_dwordx2 s[6:7], s[0:1], 24")
    A(f"s_cmp_ge_u32 s{SW}, {0 if 'x' in X else NB}")
    A("s_cbranch_scc1 B_3")
    if "g" in X:
        lds_wait(A, "B_WG", 40, 4, 5)
        st(A, "bgo")
        eloads(D, 20); eloads(S, 24)
    A(f"s_waitcnt vmcnt({3 if 'g' in X or 'a' in X else 0}) lgkmcnt(0)")
    if "b" in X: eloads(S, 24)
    st(A, "bld")
    for i in range(10):
        A(f"v_mul_u32_u24 v{B+i}, s47, v{D+i}")
        A(f"v_lshrrev_b32 v72, 21, v{B+i}")
        A(f"v_mad_u32_u24 v{B+i}, v72, v10, s49")
        A(f"ds_add_rtn_u32 v{R+i}, v{B+i}, v6")
        A(f"v_mul_u32_u24 v72, 40, v72")
        A(f"v_sub_u32 v{D+i}, v{D+i}, v72")
    for i in range(10):
        A(f"s_waitcnt lgkmcnt({9-i})")
        A(f"v_min_u32_sdwa v{R+i}, v{R+i}, v7 dst_sel:DWORD dst_unused:UNUSED_PAD src0_sel:WORD_0 src1_sel:DWORD")
        A(f"v_lshl_add_u32 v{B+i}, v{R+i}, 2, v{B+i}")
    if not set("gab") & set(X):
        lds_wait(A, "B_WG", 40, 4, 5)
        st(A, "bgo")
        if SP2: A("s_setprio 2")
        eloads(S, 24)
    A("s_waitcnt vmcnt(0)")
    st(A, "bsrc")
    for i in range(10):
        A(f"v_lshl_or_b32 v{S+i}, v{D+i}, 18, v{S+i}")
        A(f"ds_write_b32 v{B+i}, v{S+i}")
    lds_signal(A, 32, 6)
    A(f"s_lshl_b32 s42, s{SW}, 14")
    A(f"s_add_u32 s43, s42, {E2:#x}")
    lds_wait(A, "B_W1", 32, 4, 5)
    if "G" in X: lds_wait(A, "B_WG", 40, 4, 5)
    st(A, "bsort")
    for it in range(4):
        A(f"ds_read_b128 {vr(16+4*it,4)}, v73 offset:{64*CELL*it}")
    for it in range(4):
        A(f"ds_read_b128 {vr(32+4*it,4)}, v73 offset:{64*CELL*it+64}")
    A("v_mov_b32 v7, 16")
    for it in range(4):
        A(f"s_waitcnt lgkmcnt({7-it})")
        A(f"buffer_store_dwordx4 {vr(16+4*it,4)}, v3, s[28:31], s42 offen sc1")
        A(f"v_mov_b32_dpp v{48+it}, v{16+4*it} quad_perm:[0,0,0,0] row_mask:0xf bank_mask:0xf")
        A("s_add_u32 s42, s42, 0x1000")
    A("s_waitcnt lgkmcnt(0)")
    for it in range(4):
        A(f"v_cmp_gt_u32_sdwa vcc, v{48+it}, v7 src0_sel:WORD_0 src1_sel:DWORD")
        A("s_and_b64 exec, vcc, -1")
        A(f"s_cbranch_scc0 B_O{it}")
        A(f"buffer_store_dwordx4 {vr(32+4*it,4)}, v3, s[28:31], s43 offen sc1")
        A(f"B_O{it}:")
        A("s_mov_b64 exec, -1")
        A("s_add_u32 s43, s43, 0x1000")
    A("B_3:")
    A(f"s_lshl_b32 s42, s{SW}, 7")
    A(f"s_lshl2_add_u32 s42, s{SV}, s42")
    A(f"s_add_u32 s42, s42, {FS}")
    A(f"v_mov_b32 v5, s{SN}")
    A("s_mov_b64 exec, 1")
    A("s_waitcnt lgkmcnt(0)")
    A(f"ds_add_u32 v{MB}, v6 offset:36")
    A("s_waitcnt vmcnt(0)")
    st(A, "bpub")
    A("buffer_store_dword v5, off, s[12:15], s42 sc1")
    A("s_mov_b64 exec, -1")
    A("B_4:")
    if SP2: A("s_setprio 0")

EN = 140; PS = 16; BUF = 48; PR = 88; AC = 108; SA = 128; SX = 132
DI = 228; DO = 231; FO = 232; LR2 = 233; C16 = 234; LBV = 235; TWO = 236; AO = 237; C = 244
t0, t1, t2, t3 = 238, 239, 241, 242
def gather_setup(A):
    A(f"s_lshl_b32 s42, s{SV}, 12")
    A(f"v_add_u32 v{PO}, s42, v{DV}")
    A(f"s_lshl_b32 s42, s{SV}, 11")
    A(f"s_add_u32 s42, s42, {STG}")
    A(f"v_add_u32 v{RS}, s42, v{DV}")
    A(f"s_mov_b32 s{TH}, 4")
    A("s_mov_b32 s61, 0")
    A(f"s_mov_b32 s{MD}, 1")
    A(f"v_mov_b32 v{EV}, 0")
    A(f"v_bfe_u32 v{t0}, v0, 3, 1")
    A(f"v_lshrrev_b32 v{t1}, 5, v0")
    A(f"v_cmp_eq_u32 vcc, v{t0}, v{t1}")
    A(f"v_lshl_add_u32 v{t0}, v{t0}, 1, v{t1}")
    A(f"v_lshlrev_b32 v{DO}, 1, v{t0}")
    A(f"v_and_b32 v{t1}, 1, v0")
    A(f"v_lshlrev_b32 v{t1}, 4, v{t1}")
    A(f"v_mov_b32 v{t2}, {0x3f80 if NH else 0x3c00:#x}")
    A(f"v_lshlrev_b32 v{t1}, v{t1}, v{t2}")
    A(f"v_cndmask_b32 v{t1}, 0, v{t1}, vcc")
    A("s_mov_b32 vcc_lo, 0xf0f0f0f0")
    A("s_mov_b32 vcc_hi, vcc_lo")
    A(f"v_cndmask_b32 v{SA+1}, 0, v{t1}, vcc")
    A(f"v_sub_u32 v{SA}, v{t1}, v{SA+1}")
    A(f"v_mov_b32 v{SA+3}, v{SA+1}")
    A(f"v_mov_b32 v{SA+2}, v{SA}")
    A("s_mov_b32 vcc_lo, 0xcccccccc")
    A("s_mov_b32 vcc_hi, vcc_lo")
    A(f"v_mov_b32 v{t1}, 0xeeeeeeee")
    A(f"v_mov_b32 v{SX}, 0x44444444")
    A(f"v_cndmask_b32 v{SX}, v{SX}, v{t1}, vcc")
    for p in range(3):
        A(f"v_mov_b32 v{DI+p}, 0")
    for r in range(20):
        A(f"v_mov_b32 v{AC+r}, 0")
    A(f"v_and_b32 v{t1}, 7, v0")
    A(f"v_lshlrev_b32 v{PR+1}, 4, v{t1}")
    A(f"v_bfe_u32 v{t2}, v0, 4, 1")
    A(f"v_lshl_add_u32 v{t2}, v{t2}, 3, v{PR+1}")
    A(f"v_mul_u32_u24 v{AO}, {ASTR}, v{t0}")
    A(f"s_mul_i32 s42, s{SV}, {10*ASTR}")
    A(f"s_add_u32 s42, s42, {AL}")
    A(f"v_add3_u32 v{AO}, v{AO}, v{t2}, s42")
    A(f"v_lshl_add_u32 v{t2}, v{t0}, 7, v{t2}")
    for i in range(1, 10):
        A(f"v_mov_b32 v{PR+2*i+1}, v{PR+1}")
    A(f"v_mov_b32 v{LBV}, {LST}")
    A(f"s_mul_i32 s42, s{SV}, 2560")
    A(f"s_add_u32 s42, s42, {LL}")
    A(f"v_lshrrev_b32 v{t0}, 3, v0")
    A(f"v_lshl_add_u32 v{LR2}, v{t0}, 1, s42")
    A(f"v_mov_b32 v{TWO}, 2")
    A(f"v_mov_b32 v{C16}, 16")
    A(f"v_lshlrev_b32 v{FO}, 7, v2")
    A(f"v_lshrrev_b32 v{t3}, 2, v0")
    A(f"v_lshlrev_b32 v{t3}, 14, v{t3}")
    A(f"v_and_b32 v{t1}, 3, v0")
    A(f"v_lshl_add_u32 v{t3}, v{t1}, 4, v{t3}")
    A(f"v_lshlrev_b32 v{EN+12}, 18, v0")
    A(f"v_add_u32 v{EN+12}, 0x1000000, v{EN+12}")
    for r in range(13, 16):
        A(f"v_mov_b32 v{EN+r}, v{EN+12}")
    final_setup_v(A)

def gen_gather(A):
    srd(A, 8, 4, WS_PE, 0x800000)
    for j in range(3):
        A(f"v_mov_b32 v{PK+4*j+3}, s{SN}")
    A(f"s_cmp_ge_u32 s{SW}, {0 if 'y' in X else NB}")
    A("s_cbranch_scc1 B_X")
    srd(A, 16, 4, WS_G if NH else WS_H, N, stride=128)
    srd(A, 48, 6, 0, N * 2)
    A(f"s_mul_i32 s42, s{SW}, 80")
    A(f"s_mul_i32 s43, s{SV}, 20")
    A("s_add_u32 s42, s42, s43")
    for p in range(3):
        A(f"buffer_load_short_d16_hi v{DI+p}, v{DO}, s[48:51], s42 offen offset:{8*p}")
    A(f"s_lshl_b32 s44, s{SV}, 20")
    A(f"s_lshl_b32 s45, s{SW}, 6")
    A("s_add_u32 s44, s44, s45")
    A(f"s_cmp_eq_u32 s{SV}, 3")
    A("s_cselect_b32 s47, 0xff, -1")
    if set("ab") & set(X) and "G" not in X: lds_wait(A, "B_WG", 40, 4, t1)
    if HF:
        A("s_and_b32 s45, s2, 31")
        A(f"s_lshl2_add_u32 s45, s45, s{SV}")
        A("s_lshl_b32 s45, s45, 7")
        spoll(A, "B_PS", [45], FB, 12)
    else:
        A(f"s_mov_b32 s45, {FS}")
        poll1(A, "B_PS", FO, "s45", t1)
    st(A, "bps")
    if LP: A("s_setprio 2")
    if "1" in X: A("s_branch B_X")
    for it in range(4):
        if it == 3: A("s_mov_b32 exec_hi, s47")
        A(f"buffer_load_dwordx4 {vr(EN+4*it,4)}, v{t3}, s[28:31], s44 offen sc1")
        A("s_add_u32 s44, s44, 0x40000")
    A("s_mov_b64 exec, -1")
    A(f"s_add_u32 s44, s44, {E2 - 0x100000:#x}")
    def trip_a(k):
        A(f"v_add_u32_sdwa v{t1}, v{EN+k}, v{LBV} dst_sel:DWORD dst_unused:UNUSED_PAD src0_sel:WORD_1 src1_sel:DWORD")
        A(f"ds_add_rtn_u32 v{PS+k}, v{t1}, v{TWO}")
    A("s_waitcnt vmcnt(0)")
    for it in range(4):
        A(f"v_mov_b32_dpp v{C+it}, v{EN+4*it} quad_perm:[0,0,0,0] row_mask:0xf bank_mask:0xf")
    for it in range(4):
        A(f"v_and_b32 v{C+it}, 0xffff, v{C+it}")
    for it in range(4):
        A(f"v_cmp_gt_u32 s[{52+2*it}:{53+2*it}], v{C+it}, v{C16}")
    A(f"v_max3_u32 v{t1}, v{C}, v{C+1}, v{C+2}")
    A(f"v_max_u32 v{t1}, v{t1}, v{C+3}")
    A(f"v_cmp_lt_u32 vcc, 32, v{t1}")
    A(f"v_mov_b32 v{t1}, 0x101")
    A("s_cbranch_vccnz G_SYNC")
    for it in range(4):
        A(f"s_and_b64 exec, s[{52+2*it}:{53+2*it}], -1")
        A(f"s_cbranch_scc0 G_O{it}")
        A(f"buffer_load_dwordx4 {vr(EN+16+4*it,4)}, v{t3}, s[28:31], s44 offen sc1")
        A(f"G_O{it}:")
        A("s_add_u32 s44, s44, 0x40000")
    A("s_mov_b64 exec, -1")
    if "2" in X:
        A("s_waitcnt vmcnt(0)"); st(A, "bl"); A("s_branch B_X")
    if LP == 3:
        adr = lambda k: A(f"v_add_u32_sdwa v{PS+k}, v{EN+k}, v{LBV} dst_sel:DWORD dst_unused:UNUSED_PAD src0_sel:WORD_1 src1_sel:DWORD")
        atm = lambda k: A(f"ds_add_rtn_u32 v{PS+k}, v{PS+k}, v{TWO}")
        wr = lambda k: A(f"ds_write_b16 v{PS+k}, v{EN+k}")
        for k in range(16): adr(k)
        A(f"v_mov_b32 v{t1}, 1")
        A("s_setprio 0")
        for k in range(0, 16 + PACE, PACE):
            if k: A("s_waitcnt lgkmcnt(0)")
            for j in range(k, min(k + PACE, 16)): atm(j)
            for j in range(max(k - PACE, 0), k): wr(j)
        A("s_waitcnt vmcnt(0)")
        for it in range(4):
            A(f"s_and_b64 exec, s[{52+2*it}:{53+2*it}], -1")
            A(f"s_cbranch_scc0 G_P{it}")
            A("s_setprio 2")
            for k in range(16+4*it, 20+4*it): adr(k)
            A("s_setprio 0")
            for k in range(16+4*it, 20+4*it): atm(k)
            A("s_waitcnt lgkmcnt(0)")
            for k in range(16+4*it, 20+4*it): wr(k)
            A(f"G_P{it}:")
    else:
        for k in range(16):
            trip_a(k)
        for k in range(16):
            if k % 4 == 0: A(f"s_waitcnt lgkmcnt(12)")
            A(f"ds_write_b16 v{PS+k}, v{EN+k}")
        A("s_waitcnt vmcnt(0)")
        for it in range(4):
            A(f"s_and_b64 exec, s[{52+2*it}:{53+2*it}], -1")
            A(f"s_cbranch_scc0 G_P{it}")
            for k in range(16+4*it, 20+4*it): trip_a(k)
            A(f"G_P{it}:")
        A("s_waitcnt lgkmcnt(0)")
        for it in range(4):
            A(f"s_and_b64 exec, s[{52+2*it}:{53+2*it}], -1")
            A(f"s_cbranch_scc0 G_Q{it}")
            for k in range(16+4*it, 20+4*it): A(f"ds_write_b16 v{PS+k}, v{EN+k}")
            A(f"G_Q{it}:")
    A("s_mov_b64 exec, -1")
    if LP != 3: A(f"v_mov_b32 v{t1}, 1")
    A("G_SYNC:")
    A("s_waitcnt vmcnt(0)")
    lds_signal(A, 4, t1)
    lds_wait(A, "G_S1", 4, 4, t1, mask=0xff)
    st(A, "bl")
    A("s_cmp_gt_u32 s57, 0xff")
    A("s_cbranch_scc1 G_SLOW")
    A(f"ds_read_b32 v{t1}, v8")
    for i in range(10):
        A(f"ds_read_u16 v{PR+2*i}, v{LR2} offset:{256*i}")
    A(f"s_mul_i32 s43, s{SV}, 10")
    A("s_bfm_b64 s[52:53], 10, s43")
    A("s_waitcnt lgkmcnt(10)")
    A(f"v_sub_u32 v{t1}, v{t1}, v9")
    A(f"v_cmp_lt_u32 vcc, 0x100, v{t1}")
    A("s_cbranch_vccnz G_SLOW")
    def ld(i, it_off):
        A(f"buffer_load_dwordx4 {vr(BUF+4*i,4)}, {vr(PR+2*i,2)}, s[16:19], 0 idxen offen sc1")
        A(f"ds_read_u16 v{PR+2*i}, v{LR2} offset:{256*i+16*it_off}")
    def acc(p):
        A(f"v_smfmac_f32_16x16x64_{'bf16' if NH else 'f16'} {vr(AC+4*p,4)}, {vr(SA,4)}, {vr(BUF+8*p,8)}, v{SX}")
    for i in range(10):
        A(f"s_waitcnt vmcnt({DG-1}) lgkmcnt(9)")
        ld(i, 1)
    A("s_mov_b32 s56, 16" if "z" not in X else "s_movk_i32 s56, 0x200")
    A("G_LOOP:")
    A(f"v_cmp_lt_u32 vcc, s56, v{t1}")
    A(f"v_readfirstlane_b32 s57, v{EV}")
    A(f"ds_read_b32 v{EV}, v{MB} offset:8")
    A("s_add_u32 s56, s56, 16")
    A("s_and_b64 vcc, vcc, s[52:53]")
    A("s_cbranch_scc0 G_DRAIN")
    A(f"s_cmp_ge_u32 s57, s{TH}")
    A("s_cbranch_scc1 X_H")
    A("G_RET:")
    for p in range(5):
        A(f"s_waitcnt vmcnt({DG-2}) lgkmcnt(8)")
        acc(p)
        ld(2*p, 2); ld(2*p+1, 2)
    A(f"v_add_u32 v{LR2}, 16, v{LR2}")
    A("s_branch G_LOOP")
    A("G_DRAIN:")
    if XP == 2: A("s_setprio 2")
    for p in range(5):
        A(f"s_waitcnt vmcnt({8-2*p})")
        acc(p)
    if SE:
        A(f"s_cmp_eq_u32 s{TH}, 4")
        A("s_cbranch_scc1 G_NS")
        e_offs(A)
        A(f"s_mov_b32 s{MD}, 3")
        fetch_ld(A, 3, BUF)
        A("G_NS:")
    A("s_nop 7")
    for p in range(5):
        for r in range(4):
            x = AC+4*p+r
            A(f"v_add_f32_dpp v{AC+8*(p>>1)+r}, v{x}, v{x} row_ror:8 row_mask:0xf bank_mask:{'0xc' if p & 1 else '0x3'}")
    A("G_FIN:")
    for k in range(3):
        x = AC+8*k
        for r in range(4):
            A(f"v_mul_f32 v{x+r}, v{x+r}, v{DI+k}")
        A(f"v_cvt_pk_bf16_f32 v{x}, v{x}, v{x+1}")
        A(f"v_cvt_pk_bf16_f32 v{x+1}, v{x+2}, v{x+3}")
        if k == 2:
            A("s_mov_b32 exec_lo, 0x00ff00ff")
            A("s_mov_b32 exec_hi, 0x00ff00ff")
        A(f"ds_write_b64 v{AO}, {vr(x,2)} offset:{4*ASTR*k}")
    A("s_mov_b64 exec, -1")
    A("B_X:")

def gen_slow(A):
    A("G_SLOW:")
    A("s_waitcnt vmcnt(0) lgkmcnt(0)")
    lds_signal(A, 16, 6)
    lds_wait(A, "G_S2", 16, 4, t1)
    A(f"v_add_u32 v{t0}, {LL}, v3")
    for r in range(4):
        A(f"v_mov_b32 v{AC+r}, 0")
    for i in range(3):
        A(f"ds_write_b128 v{t0}, {vr(AC,4)} offset:{4096*i}")
    A("s_waitcnt lgkmcnt(0)")
    lds_signal(A, 16, 6)
    lds_wait(A, "G_S3", 16, 8, t1)
    srd(A, 48, 4, WS_G if NH else WS_H, N * 128)
    A(f"v_lshlrev_b32 v{t0}, 2, v0")
    A(f"v_lshlrev_b32 v{t1}, 1, v0")
    A(f"v_add_u32 v{t3}, {LL}, v{t0}")
    A(f"s_mul_i32 s42, s{SW}, 40")
    A("s_mov_b64 s[44:45], 0")
    for it in range(4):
        A(f"v_cmp_lt_u32 vcc, 1, v{C+it}")
        A(f"s_and_b32 vcc_lo, vcc_lo, {0x11111111 << it:#x}")
        A(f"s_and_b32 vcc_hi, vcc_hi, {0x11111111 << it:#x}")
        A("s_or_b64 s[44:45], s[44:45], vcc")
    A("G_SC:")
    A("s_cmp_eq_u64 s[44:45], 0")
    A("s_cbranch_scc1 G_SE")
    A("s_ff1_i32_b64 s43, s[44:45]")
    A("s_bitset0_b64 s[44:45], s43")
    A("s_and_b32 s47, s43, 3")
    A("s_lshr_b32 s43, s43, 2")
    A(f"s_lshl2_add_u32 s47, s{SV}, s47")
    A("s_lshl4_add_u32 s43, s47, s43")
    A(f"s_mul_i32 s43, s43, {CH*4}")
    A(f"s_add_u32 s47, s43, {CH*4}")
    A("G_SS:")
    A(f"buffer_load_dword v{AC}, v{t0}, s[20:23], s43 offen")
    A(f"buffer_load_dword v{AC+1}, v{t0}, s[24:27], s43 offen")
    A("s_waitcnt vmcnt(0)")
    A(f"v_subrev_u32 v{AC}, s42, v{AC}")
    A(f"v_cmp_gt_u32 s[52:53], 40, v{AC}")
    A("G_SI:")
    A("s_cmp_eq_u64 s[52:53], 0")
    A("s_cbranch_scc1 G_SN")
    A("s_ff1_i32_b64 s56, s[52:53]")
    A("s_bitset0_b64 s[52:53], s56")
    A(f"v_readlane_b32 s57, v{AC+1}, s56")
    A(f"v_readlane_b32 s58, v{AC}, s56")
    A("s_lshl_b32 s57, s57, 7")
    A("s_lshl_b32 s58, s58, 8")
    A(f"buffer_load_ushort v{AC+2}, v{t1}, s[48:51], s57 offen sc1")
    A(f"v_add_u32 v{AC+3}, s58, v{t3}")
    A("s_waitcnt vmcnt(0)")
    A(f"v_lshlrev_b32 v{AC+2}, 16, v{AC+2}" if NH else f"v_cvt_f32_f16 v{AC+2}, v{AC+2}")
    A(f"ds_add_f32 v{AC+3}, v{AC+2}")
    A("s_waitcnt lgkmcnt(0)")
    A("s_branch G_SI")
    A("G_SN:")
    A("s_add_u32 s43, s43, 256")
    A("s_cmp_lt_u32 s43, s47")
    A("s_cbranch_scc1 G_SS")
    A("s_branch G_SC")
    A("G_SE:")
    lds_signal(A, 16, 6)
    lds_wait(A, "G_S4", 16, 12, t1)
    A(f"s_mul_i32 s43, s{SV}, 2560")
    A(f"s_add_u32 s43, s43, {LL}")
    A(f"v_lshl_add_u32 v{t0}, v{t2}, 1, s43")
    for k in range(3):
        A(f"ds_read_b128 {vr(AC+8*k,4)}, v{t0} offset:{1024*k}")
    A("s_waitcnt lgkmcnt(0)")
    A("s_branch G_FIN")

def gen_exchange(A):
    st(A, "bg")
    if XP: A("s_setprio 2")
    A("s_load_dwordx2 s[6:7], s[0:1], 0")
    A("s_load_dwordx2 s[28:29], s[0:1], 72")
    if HF:
        A("s_waitcnt lgkmcnt(0)")
    else:
        A("s_load_dwordx2 s[48:49], s[0:1], 80")
        A("s_movk_i32 s50, 256")
        A("s_mov_b32 s51, 0x20000")
        A(f"s_or_b32 s42, s{SW}, s{SV}")
        A("s_waitcnt lgkmcnt(0)")
        A("s_cbranch_scc1 X_Z")
        A(f"v_mov_b32 v{T}, 0")
        A("s_mov_b64 exec, 1")
        A(f"buffer_store_dword v{T}, off, s[48:51], 0 sc1")
        A("s_mov_b64 exec, -1")
        A("X_Z:")
    final_setup_s(A)
    A.many(final_loads())
    if OW: A(f"buffer_load_dword v252, v{XO}, s[24:27], 0 offen")
    A(f"s_lshl_b32 s42, s{SV}, 10")
    A(f"s_add_u32 s42, s42, {MTL}")
    A(f"v_add_u32 v{PW}, s42, v{DV}")
    A(f"v_lshl_add_u32 v{PW+2}, v0, 2, v{MB}")
    if not XP: A("s_setprio 0")
    A("X_D:")
    A(f"s_cmp_lg_u32 s{TH}, 4")
    A("s_cbranch_scc1 X_1")
    if XP: A("s_setprio 0")
    lds_wait(A, "X_WE", 8, 4, T)
    A("s_branch X_H")
    A("X_1:")
    A(f"s_cmp_eq_u32 s{MD}, 2")
    A("s_cbranch_scc1 X_2")
    A(f"ds_read_b32 v{T}, v{MB} offset:8")
    A("s_waitcnt lgkmcnt(0)")
    A(f"v_readfirstlane_b32 s57, v{T}")
    A(f"s_cmp_ge_u32 s57, s{TH}")
    A("s_cbranch_scc1 X_H")
    e_offs(A)
    A(f"s_mov_b32 s58, {LIMIT}")
    A(f"s_cmp_eq_u32 s{MD}, 3")
    A(f"s_mov_b32 s{MD}, 2")
    A("s_cbranch_scc1 X_PE_C")
    A("X_PE_P:")
    A(f"s_lshl_b32 s45, s{SV}, 12")
    for o in range(3): A(f"s_add_u32 s{48+o}, s{42+o}, s45")
    spoll(A, "X_QE", [48, 49, 50], 3068, init=False)
    fetch_ld(A, 3, BUF)
    A("X_PE_C:")
    A(f"s_setprio {EP}")
    fetch_chk(A, 3, BUF)
    A("s_sub_u32 s58, s58, 1")
    A("s_cbranch_scc1 X_PE_X")
    A("s_cbranch_vccnz X_PE_P")
    A("X_PE_X:")
    for i in range(8):
        A(f"v_add_f32 v{BUF+POS[i]}, v{BUF+POS[i]}, v{EK+i}")
        A(f"v_add_f32 v{BUF+12+POS[i]}, v{BUF+12+POS[i]}, v{BUF+24+POS[i]}")
    for i in range(8):
        A(f"v_add_f32 v{ER+i}, v{BUF+POS[i]}, v{BUF+12+POS[i]}")
    put_p(A, 0, "X_LE")
    A("s_setprio 0")
    st(A, "xe")
    if IW:
        A("s_cmp_lg_u32 s3, 4")
        A("s_cbranch_scc1 X_2")
        A("s_mov_b64 exec, 0")
        A("s_branch PAD0")
        A("PADX:")
        A("s_mov_b64 exec, -1")
    A("X_2:")
    A(f"s_cmp_lg_u32 s{TH}, 8")
    A("s_cbranch_scc1 X_3")
    if WP: A(f"s_setprio {WP}")
    lds_wait(A, "X_WS", 8, 8, T)
    A("s_branch X_H")
    A("X_3:")
    A("s_setprio 2")
    A(f"s_xor_b32 s42, s{SW}, 1")
    A(f"s_lshl_b32 s42, s42, {PSH}")
    A(f"s_add_u32 s42, s42, {PSD:#x}")
    st(A, "xs")
    if SPL:
        A(f"s_lshl_b32 s45, s{SV}, 12")
        A("s_add_u32 s48, s42, s45")
        spoll(A, "X_QP", [48], 3068)
    else:
        A("s_mov_b64 exec, 1")
        poll1(A, "X_QP", PO, "s42", T+1, 8, 3068)
    fetch_ld(A, 1, T)
    lds_wait(A, "X_WO", 12, 4, BUF)
    own_sum(A)
    fetch_chk(A, 1, T)
    A("s_cbranch_vccz X_OK")
    fetch(A, "X_PP", 1)
    A("X_OK:")
    st(A, "xp")
    for i in range(8):
        A(f"v_add_f32 v{ER+i}, v{ER+i}, v{T+POS[i]}")
    put_p(A, 1, "X_LO")

PW = 246
def own_sum(A):
    A(f"v_subrev_u32 v{T+12}, {STG}, v{RS}")
    for k in range(4):
        A(f"ds_read_b128 {vr(BUF+8*k,4)}, v{T+12} offset:{RING*k}")
        A(f"ds_read_b128 {vr(BUF+8*k+4,4)}, v{T+12} offset:{RING*k+1024}")
    A("s_waitcnt lgkmcnt(4)")
    for i in range(4):
        A(f"v_pk_add_f32 {vr(BUF+2*i,2)}, {vr(BUF+2*i,2)}, {vr(BUF+8+2*i,2)}")
    A("s_waitcnt lgkmcnt(0)")
    for i in range(4):
        A(f"v_pk_add_f32 {vr(BUF+16+2*i,2)}, {vr(BUF+16+2*i,2)}, {vr(BUF+24+2*i,2)}")
    for i in range(4):
        A(f"v_pk_add_f32 {vr(ER+2*i,2)}, {vr(BUF+2*i,2)}, {vr(BUF+16+2*i,2)}")
def put_p(A, own, name):
    for i in range(4):
        A(f"v_cvt_pk_bf16_f32 v{BUF+i}, v{ER+2*i}, v{ER+2*i+1}")
    A(f"ds_write_b128 v{PW}, {vr(BUF,4)} offset:{4096*own}")
    A("s_cmp_lg_u32 s3, 7")
    A(f"s_cbranch_scc1 {name}")
    A(f"ds_write_b32 v{PW+2}, v{ER+7} offset:{LE-MISC+256*own}")
    A(f"{name}:")

POS = [0, 1, 2, 4, 5, 6, 8, 9]
def e_offs(A):
    for o in range(1, 4):
        A(f"s_xor_b32 s{41+o}, s{SW}, {o}")
        A(f"s_lshl_b32 s{41+o}, s{41+o}, {PSH}")
def fetch_ld(A, n, T):
    for o in range(n):
        for j in range(3):
            A(f"buffer_load_dwordx4 {vr(T+12*o+4*j,4)}, v{PO}, s[8:11], s{42+o} offen offset:{1024*j} sc1")
def fetch_chk(A, n, T):
    A("s_waitcnt vmcnt(0)")
    A(f"v_cmp_ne_u32 vcc, s{SN}, v{T+3}")
    for g in range(1, 3*n):
        A(f"v_cmp_ne_u32 s[56:57], s{SN}, v{T+4*g+3}")
        A("s_or_b64 vcc, vcc, s[56:57]")
def fetch(A, name, n):
    A(f"s_mov_b32 s58, {LIMIT}")
    A(f"{name}:")
    for o in range(n):
        for j in range(3):
            A(f"buffer_load_dwordx4 {vr(T+12*o+4*j,4)}, v{PO}, s[8:11], s{42+o} offen offset:{1024*j} sc1")
    A("s_waitcnt vmcnt(0)")
    A(f"v_cmp_ne_u32 vcc, s{SN}, v{T+3}")
    for g in range(1, 3*n):
        A(f"v_cmp_ne_u32 s[56:57], s{SN}, v{T+4*g+3}")
        A("s_or_b64 vcc, vcc, s[56:57]")
    A("s_sub_u32 s58, s58, 1")
    A(f"s_cbranch_scc1 {name}_X")
    A(f"s_cbranch_vccnz {name}")
    A(f"{name}_X:")

def gen_handler(A, nm):
    A(f"{nm}_H:")
    A("s_setprio 2")
    for k in range(4):
        A(f"ds_read_b128 {vr(T+8*k,4)}, v{RS} offset:{8192*k}")
        A(f"ds_read_b128 {vr(T+8*k+4,4)}, v{RS} offset:{8192*k+1024}")
    lds_signal(A, 20, 6)
    A(f"s_sub_u32 s44, s{TH}, 4")
    A(f"s_lshl_b32 s42, s{SW}, {PSH}")
    A(f"s_mul_i32 s43, s44, {PSD//4:#x}")
    A("s_add_u32 s42, s42, s43")
    A("s_waitcnt lgkmcnt(5)")
    for i in range(8):
        A(f"v_add_f32 v{T+i}, v{T+i}, v{T+8+i}")
    A("s_waitcnt lgkmcnt(1)")
    for i in range(8):
        A(f"v_add_f32 v{T+16+i}, v{T+16+i}, v{T+24+i}")
    for i in range(8):
        A(f"v_add_f32 v{PK+POS[i]}, v{T+i}, v{T+16+i}")
        if i in (2, 5, 7):
            A(f"buffer_store_dwordx4 {vr(PK+4*(i//3),4)}, v{PO}, s[8:11], s42 offen offset:{1024*(i//3)} sc1")
    A(f"s_cmp_lg_u32 s{TH}, 4")
    A(f"s_cbranch_scc1 {nm}_H1")
    for i in range(8):
        A(f"v_mov_b32 v{EK+i}, v{PK+POS[i]}")
    st(A, "wE")
    A(f"{nm}_H1:")
    A(f"s_add_u32 s{TH}, s{TH}, 4")
    A("s_setprio 0")
    A("s_cmp_eq_u32 s61, 0")
    A("s_cbranch_scc1 G_RET")
    A("s_branch X_D")

ER = 40
def put_le(A, t, name="X_LE"):
    A("s_cmp_lg_u32 s3, 7")
    A(f"s_cbranch_scc1 {name}")
    A(f"v_lshl_add_u32 v{t}, v0, 2, v{MB}")
    A(f"ds_write_b32 v{t}, v{ER+7} offset:{LE-MISC}")
    A(f"{name}:")

def gen_nonce(A):
    A("s_load_dwordx2 s[16:17], s[0:1], 80")
    A("s_memrealtime s[44:45]")
    A("s_movk_i32 s18, 256")
    A("s_mov_b32 s19, 0x20000")
    A("s_cmp_lg_u32 s3, 0")
    A("s_cbranch_scc1 HELP")
    A("s_mov_b64 exec, 1")
    A("s_waitcnt lgkmcnt(0)")
    A("s_mul_i32 s45, s45, 0x9e3779b1")
    A("s_xor_b32 s44, s44, s45")
    A(f"s_or_b32 s{SN}, s44, 1")
    A(f"v_mov_b32 v7, s{SN}")
    A("buffer_store_dword v7, off, s[16:19], 0 sc1")
    A(f"ds_write_b32 v{MB}, v7")
    A("s_mov_b64 exec, -1")
    A("s_branch HELP")

def gen_helper(A):
    A("HELP:")
    A("s_load_dwordx2 s[8:9], s[0:1], 32")
    A("s_load_dwordx4 s[28:31], s[0:1], 56")
    A("v_and_b32 v1, 31, v0")
    A("v_lshrrev_b32 v2, 5, v0")
    pi_perm(A, 3, 1, 4)
    A("s_lshr_b32 s36, s3, 2")
    A("s_bfe_u32 s37, s3, 0x10001")
    A("s_and_b32 s38, s3, 1")
    A("s_cmp_eq_u32 s36, 0")
    A("s_cselect_b64 vcc, -1, 0")
    A("s_movk_i32 s39, 8064")
    if not NH: A("s_cselect_b32 s39, 0x10000, s39")
    A("v_cndmask_b32 v4, v1, v3, vcc")
    A("v_lshlrev_b32 v4, 7, v4")
    A("v_lshl_add_u32 v4, v2, 4, v4")
    A("v_lshlrev_b32 v5, 4, v2")
    A("s_lshl_b32 s40, s37, 12")
    A("v_lshlrev_b32 v6, 10, v2")
    A("v_lshl_add_u32 v6, v3, 1, v6")
    A("s_lshl_b32 s41, s38, 6")
    A("s_add_u32 s42, s41, 0x1000")
    A("s_waitcnt lgkmcnt(0)")
    flag_srd(A)
    A("s_cmp_eq_u32 s36, 0")
    A("s_cselect_b32 s48, s8, s28")
    A("s_cselect_b32 s49, s9, s29")
    A("s_mov_b32 s50, 8192")
    A("s_mov_b32 s51, 0x20000")
    srd(A, 20, 30, 0, 8192)
    srd(A, 24, 4, WS_W, 16384)
    AF, A2, BF, D = 16, 32, 48, 64
    for j in range(4):
        A(f"buffer_load_dwordx4 {vr(AF+4*j,4)}, v4, s[48:51], s40 offen offset:{32*j}")
        A(f"buffer_load_dwordx4 {vr(A2+4*j,4)}, v5, s[48:51], s39 offen offset:{32*j}")
    for hi in range(2):
        for j in range(4):
            for k in range(4):
                jj = 2*k + hi
                A(f"buffer_load_ushort v{BF+4*j+k+32*hi}, v6, s[20:23], {'s41' if j < 2 else 's42'} offen offset:{(16*(j&1)+jj)*128}")
    A("s_waitcnt vmcnt(0)")
    st(A, "hn")
    for r in range(16):
        A(f"v_lshl_or_b32 v{BF+r}, v{BF+32+r}, 16, v{BF+r}")
    for r in range(16):
        A(f"v_xor_b32 v{A2+r}, 0x80008000, v{A2+r}")
    A("s_nop 1")
    for j in range(4):
        A(f"v_mfma_f32_32x32x16_bf16 {vr(D,16)}, {vr(AF+4*j,4)}, {vr(BF+4*j,4)}, {'0' if j == 0 else vr(D,16)}")
    for j in range(4):
        A(f"v_mfma_f32_32x32x16_bf16 {vr(D,16)}, {vr(A2+4*j,4)}, {vr(BF+4*j,4)}, {vr(D,16)}")
    A("s_lshl_b32 s43, s36, 13")
    A("s_lshl_b32 s44, s38, 12")
    A("s_add_u32 s43, s43, s44")
    A("s_lshl_b32 s44, s37, 11")
    A("s_add_u32 s43, s43, s44")
    A("s_nop 7")
    A("s_nop 7")
    for r in range(8):
        A(f"v_cvt_pk_bf16_f32 v{AF+r}, v{D+2*r}, v{D+2*r+1}")
    A(f"buffer_store_dwordx4 {vr(AF,4)}, v{DV}, s[24:27], s43 offen sc1")
    A(f"buffer_store_dwordx4 {vr(AF+4,4)}, v{DV}, s[24:27], s43 offen offset:1024 sc1")
    A("s_waitcnt vmcnt(0)")
    st(A, "hw")
    A("s_waitcnt lgkmcnt(0)")
    A("s_barrier")
    if HF:
        A("s_cmp_ge_u32 s3, 4")
        A("s_cbranch_scc1 H_B")
        A(f"ds_read_b32 v16, v{MB}")
        A("v_lshlrev_b32 v17, 7, v0")
        A("s_lshl_b32 s42, s3, 13")
        A(f"s_add_u32 s42, s42, {FS}")
        A("s_waitcnt lgkmcnt(0)")
        A(f"v_readfirstlane_b32 s{SN}, v16")
        A("s_cmp_eq_u32 s3, 3")
        A("s_cselect_b32 exec_hi, 0x0fffffff, -1")
        A(f"s_mov_b32 s58, {LIMIT}")
        A("H_PS:")
        A("buffer_load_dwordx4 v[20:23], v17, s[12:15], s42 offen sc1")
        A("s_waitcnt vmcnt(0)")
        for r in range(20, 24): A(f"v_xor_b32 v{r}, s{SN}, v{r}")
        A("v_or3_b32 v20, v20, v21, v22")
        A("v_or_b32 v20, v20, v23")
        A("v_cmpx_ne_u32 vcc, 0, v20")
        A("s_sub_u32 s58, s58, 1")
        A("s_cbranch_scc1 H_PX")
        A("s_cbranch_execnz H_PS")
        A("H_PX:")
        A("s_mov_b32 exec_lo, -1")
        A("s_mov_b32 exec_hi, 0")
        A("v_lshlrev_b32 v17, 9, v0")
        A("s_lshl_b32 s42, s3, 7")
        A(f"s_add_u32 s42, s42, {FB}")
        A("buffer_store_dword v16, v17, s[12:15], s42 offen sc1")
        A("H_B:")
        A("s_barrier")
        A("s_cmp_lg_u32 s3, 0")
        A("s_cbranch_scc1 FIN_X")
        A("v_mov_b32 v18, 0")
        A("s_mov_b64 exec, 1")
        A("buffer_store_dword v18, off, s[16:19], 0 sc1")
        A("s_mov_b64 exec, -1")
        A("s_branch FIN_X")
        return
    A("s_cmp_lg_u32 s3, 0")
    A("s_cbranch_scc1 FIN_X")
    A(f"s_mov_b32 s43, {FS+252*128}")
    flag_store(A, "s43", 17, 4)
    A("s_branch FIN_X")
```

```python
from fc import *
WF = Q + 16
XF = S0 + 16
ONE = 240
XO, WO, RA = 12, 13, 14

def xhalf_sum(A, x, t0, t1):
    A(f"v_mov_b32 v{t0}, v{x}")
    A(f"v_mov_b32 v{t1}, v{x}")
    A("s_nop 1")
    A(f"v_permlane32_swap_b32 v{t0}, v{t1}")
    A("s_nop 1")
    A(f"v_add_f32 v{x}, v{t0}, v{t1}")
def bfround(A, x):
    A(f"v_cvt_pk_bf16_f32 v{x}, v{x}, v{x}")
    A(f"v_lshlrev_b32 v{x}, 16, v{x}")

P8 = int(os.environ.get("P8", "1"))
E4 = int(os.environ.get("E4", "0"))
WL = int(os.environ.get("WL", "0"))
PF = int(os.environ.get("PF", "0"))
N0 = int(os.environ.get("N0", "2"))
Q79 = int(os.environ.get("Q79", "1"))
QT_ = 79 if Q79 else 80
WD = int(os.environ.get("WD", "1"))
LX = (200, 140)
def ln8_load(A):
    A(f"s_mul_i32 s42, s{SW}, {40*128}")
    A(f"s_lshl_b32 s43, s{SV}, 8")
    A("s_lshl2_add_u32 s44, s43, s42")
    A("s_add_u32 s43, s43, s42")
    A("s_add_u32 s43, s43, 0x1000")
    A(f"v_add_u32 v{LX[0]+12}, s44, v{DV}")
    A(f"v_add_u32 v{LX[1]+12}, s43, v{DV}")
    A(f"s_mov_b32 s18, {N*128}")
    A("s_mov_b32 s19, 0x20000")
    A("s_waitcnt lgkmcnt(0)")
    A(f"buffer_load_dwordx4 {vr(LX[0],4)}, v{LX[0]+12}, s[16:19], 0 offen")
    A("s_mov_b64 exec, 0xffff")
    A(f"buffer_load_dwordx4 {vr(LX[1],4)}, v{LX[1]+12}, s[16:19], 0 offen")
    A("s_mov_b64 exec, -1")
def ln8(A, sd):
    def one(L):
        A = Asm(); F = L + 4; T0 = L + 14
        p0, p1 = vr(T0, 2), vr(T0+2, 2)
        def red():
            A(f"v_pk_add_f32 {p0}, {p0}, {p1}")
            A(f"v_add_f32 v{T0}, v{T0}, v{T0+1}")
            for m in ("quad_perm:[1,0,3,2]", "quad_perm:[2,3,0,1]", "row_half_mirror"):
                A("s_nop 0")
                A(f"v_add_f32_dpp v{T0}, v{T0}, v{T0} {m} row_mask:0xf bank_mask:0xf")
        for i in range(4):
            A(f"v_lshlrev_b32 v{F+2*i}, 16, v{L+i}")
            A(f"v_and_b32 v{F+2*i+1}, 0xffff0000, v{L+i}")
        A(f"v_pk_add_f32 {p0}, {vr(F,2)}, {vr(F+2,2)}")
        A(f"v_pk_add_f32 {p1}, {vr(F+4,2)}, {vr(F+6,2)}")
        red()
        A(f"v_mul_f32 v{T0}, {f2u(-1.0/64):#x}, v{T0}")
        for i in range(4):
            A(f"v_pk_add_f32 {vr(F+2*i,2)}, {vr(F+2*i,2)}, {p0} op_sel_hi:[1,0]")
        A(f"v_pk_mul_f32 {p0}, {vr(F,2)}, {vr(F,2)}")
        A(f"v_pk_mul_f32 {p1}, {vr(F+2,2)}, {vr(F+2,2)}")
        A(f"v_pk_fma_f32 {p0}, {vr(F+4,2)}, {vr(F+4,2)}, {p0}")
        A(f"v_pk_fma_f32 {p1}, {vr(F+6,2)}, {vr(F+6,2)}, {p1}")
        red()
        A(f"v_mul_f32 v{T0}, {f2u(1.0/64):#x}, v{T0}")
        bfround(A, T0)
        A(f"v_add_f32 v{T0}, {f2u(1e-5):#x}, v{T0}")
        bfround(A, T0)
        A(f"v_sqrt_f32 v{T0}, v{T0}")
        A("s_nop 0")
        bfround(A, T0)
        A(f"v_rcp_f32 v{T0}, v{T0}")
        A("s_nop 0")
        for i in range(4):
            A(f"v_pk_mul_f32 {vr(F+2*i,2)}, {vr(F+2*i,2)}, {p0} op_sel_hi:[1,0]")
        A(f"v_cndmask_b32 v{F+7}, v{F+7}, 1.0, vcc")
        for i in range(4):
            A(f"v_cvt_pk_bf16_f32 v{L+i}, v{F+2*i}, v{F+2*i+1}")
        return [x.strip() for x in A.L]
    for x, y in zip(one(LX[0]), one(LX[1])):
        A(x)
        if not x.startswith("s_nop"): A(y)
    A(f"buffer_store_dwordx4 {vr(LX[0],4)}, v{LX[0]+12}, s[{sd}:{sd+3}], 0 offen sc1")
    A("s_mov_b64 exec, 0xffff")
    A(f"buffer_store_dwordx4 {vr(LX[1],4)}, v{LX[1]+12}, s[{sd}:{sd+3}], 0 offen sc1")
    A("s_mov_b64 exec, -1")

def gen_ln_q(A):
    A("s_load_dwordx2 s[16:17], s[0:1], 0")
    A("v_and_b32 v3, 31, v0")
    A("v_lshrrev_b32 v4, 5, v0")
    A(f"s_lshr_b32 s42, s3, 1")
    A(f"s_xor_b32 s42, s{SW}, s42")
    A("s_mul_i32 s42, s42, 40")
    A(f"s_and_b32 s43, s{SW}, -4")
    A("s_mul_i32 s43, s43, 40")
    A("s_add_u32 s43, s43, 32")
    A("v_lshrrev_b32 v7, 3, v3")
    A("v_and_b32 v8, 7, v3")
    A("v_mad_u32_u24 v8, v7, 40, v8")
    A("s_cmp_eq_u32 s3, 1")
    A("s_cselect_b32 s42, s43, s42")
    A("s_cselect_b64 vcc, -1, 0")
    A("v_cndmask_b32 v8, v3, v8, vcc")
    A("v_add_u32 v8, s42, v8")
    A("v_lshlrev_b32 v5, 7, v8")
    A("v_lshl_add_u32 v5, v4, 4, v5")
    A(f"s_mov_b32 s18, {N*128}")
    A("s_mov_b32 s19, 0x20000")
    Xr = 208; F = 96; HB = 192; MT = 32; QT = 64
    A("s_waitcnt lgkmcnt(0)")
    for j in range(4):
        A(f"buffer_load_dwordx4 {vr(Xr+4*j,4)}, v5, s[16:19], 0 offen offset:{32*j}")
    st(A, "lni")
    A("v_cmp_eq_u32 s[30:31], 1, v4")
    A("s_mov_b32 s32, 0xffff0000")
    A(f"s_lshl_b32 s42, s3, 12")
    A(f"s_add_u32 s42, s42, {QX}")
    A(f"v_add_u32 v245, s42, v{DV}")
    A(f"v_add_u32 v244, {MTL}, v{DV}")
    attn_setup(A)
    for r in range(O + 32, O + 96, 2):
        A(f"v_mov_b64 {vr(r,2)}, 0")
    A("s_barrier")
    A("s_waitcnt vmcnt(0)")
    st(A, "lnx")
    T0 = 228
    for i in range(16):
        A(f"v_lshlrev_b32 v{F+2*i}, 16, v{Xr+i}")
        A(f"v_and_b32 v{F+2*i+1}, s32, v{Xr+i}")
    p0, p1 = vr(T0, 2), vr(T0+2, 2)
    A(f"v_pk_add_f32 {p0}, {vr(F,2)}, {vr(F+2,2)}")
    A(f"v_pk_add_f32 {p1}, {vr(F+4,2)}, {vr(F+6,2)}")
    for i in range(4, 16, 2):
        A(f"v_pk_add_f32 {p0}, {p0}, {vr(F+2*i,2)}")
        A(f"v_pk_add_f32 {p1}, {p1}, {vr(F+2*i+2,2)}")
    A(f"v_pk_add_f32 {p0}, {p0}, {p1}")
    A(f"v_add_f32 v{T0}, v{T0}, v{T0+1}")
    xhalf_sum(A, T0, T0+2, T0+3)
    A(f"v_mul_f32 v{T0}, {f2u(-1.0/64):#x}, v{T0}")
    A(f"v_mov_b32 v{T0+1}, v{T0}")
    for i in range(16):
        A(f"v_pk_add_f32 {vr(F+2*i,2)}, {vr(F+2*i,2)}, {p0}")
    def sumsq(B):
        A(f"v_pk_mul_f32 {p0}, {vr(B,2)}, {vr(B,2)}")
        A(f"v_pk_mul_f32 {p1}, {vr(B+2,2)}, {vr(B+2,2)}")
        for i in range(2, 16, 2):
            A(f"v_pk_fma_f32 {p0}, {vr(B+2*i,2)}, {vr(B+2*i,2)}, {p0}")
            A(f"v_pk_fma_f32 {p1}, {vr(B+2*i+2,2)}, {vr(B+2*i+2,2)}, {p1}")
        A(f"v_pk_add_f32 {p0}, {p0}, {p1}")
        A(f"v_add_f32 v{T0}, v{T0}, v{T0+1}")
        xhalf_sum(A, T0, T0+2, T0+3)
    sumsq(F)
    A(f"v_mul_f32 v{T0}, {f2u(1.0/64):#x}, v{T0}")
    bfround(A, T0)
    A(f"v_add_f32 v{T0}, {f2u(1e-5):#x}, v{T0}")
    bfround(A, T0)
    A(f"v_sqrt_f32 v{T0}, v{T0}")
    A("s_nop 0")
    bfround(A, T0)
    A(f"v_rcp_f32 v{T0}, v{T0}")
    A("s_nop 0")
    A(f"v_mov_b32 v{T0+1}, v{T0}")
    for i in range(16):
        A(f"v_pk_mul_f32 {vr(F+2*i,2)}, {vr(F+2*i,2)}, {p0}")
    for i in range(16):
        A(f"v_cvt_pk_bf16_f32 v{HB+i}, v{F+2*i}, v{F+2*i+1}")
    for r in range(O, O + 32, 2):
        A(f"v_mov_b64 {vr(r,2)}, 0")
    st(A, "lnv")
    if WL: A("s_barrier")
    lds_wait(A, "L_WM", 44, 1, T0)
    for q in range(8):
        A(f"ds_read_b128 {vr(MT+4*q,4)}, v244 offset:{1024*q}")
    A("s_waitcnt lgkmcnt(0)")
    st(A, "lnw")
    for b in range(2):
        for j in range(4):
            c = "0" if j == 0 else vr(QT+16*b, 16)
            A(f"v_mfma_f32_32x32x16_bf16 {vr(QT+16*b,16)}, {vr(MT+16*b+4*j,4)}, {vr(HB+4*j,4)}, {c}")
    A("s_nop 3")
    A("s_nop 7")
    sumsq(QT)
    A(f"v_sqrt_f32 v{T0}, v{T0}")
    A(f"v_mov_b32 v{T0+2}, v{QT+31}")
    A(f"v_mov_b32 v{T0+3}, v{QT+31}")
    A(f"s_mov_b32 s42, {f2u(LOG2E/8):#x}")
    A(f"s_mov_b32 s43, {f2u(LOG2E/8):#x}")
    A(f"v_permlane32_swap_b32 v{T0+2}, v{T0+3}")
    A(f"v_mul_f32 v{T0}, {f2u(-LOG2E):#x}, v{T0}")
    A(f"v_add_f32 v{T0}, {f2u(64.0):#x}, v{T0}")
    A(f"v_mul_f32 v{T0+2}, {f2u(-LOG2E/8):#x}, v{T0+3}")
    A(f"v_mov_b32 v{T0+3}, v{T0+2}")
    for i in range(16):
        A(f"v_pk_fma_f32 {vr(QT+2*i,2)}, {vr(QT+2*i,2)}, s[42:43], {p1}")
    A(f"v_cndmask_b32 v{QT+31}, v{QT+31}, v{T0}, s[30:31]")
    for i in range(16):
        A(f"v_cvt_pk_bf16_f32 v{Xr+i}, v{QT+2*i}, v{QT+2*i+1}")
    for j in range(4):
        A(f"ds_write_b128 v245, {vr(Xr+4*j,4)} offset:{1024*j}")
    lds_signal(A, 24, ONE)
    st(A, "lnc")
    if not NH:
        A("s_waitcnt vmcnt(0)")
        lds_signal(A, 36, ONE)
    st(A, "lnq")

def gen_w3(A):
    A("s_load_dwordx4 s[28:31], s[0:1], 40")
    A("v_and_b32 v3, 31, v0")
    A("v_lshrrev_b32 v4, 5, v0")
    pi_perm(A, 6, 3, 7)
    A("v_lshlrev_b32 v6, 7, v6")
    A("v_lshl_add_u32 v6, v4, 4, v6")
    A(f"v_add_u32 v244, {MTL}, v{DV}")
    A("s_waitcnt lgkmcnt(0)")
    if PF:
        A("s_bfe_u32 s42, s2, 0x50003")
        A("s_lshl_b32 s42, s42, 8")
        for i in range(2):
            A(f"s_load_dword s{56+i}, s[28:29], s42 offset:{128*i}")
            A(f"s_load_dword s{58+i}, s[30:31], s42 offset:{128*i}")
    A("s_mov_b64 s[64:65], s[28:29]" if not PROF else "s_mov_b64 s[80:81], s[28:29]")
    A("v_mov_b32 v245, v6")
    attn_setup(A)
    for r in range(O, O + 32, 2):
        A(f"v_mov_b64 {vr(r,2)}, 0")
    WS0 = 80 if PROF else 64
    A(f"s_movk_i32 s{WS0+2}, 0x2000")
    A(f"s_mov_b32 s{WS0+3}, 0x20000")
    srd(A, 56, 30, 0, 8192)
    A("s_movk_i32 s43, 0x1000")
    A("s_barrier")
    if WL: A("s_barrier")
    WQ = 32; WK = 64; M = 128; MT = 192
    if WD:
        A("v_lshrrev_b32 v16, 3, v0")
        A("v_lshlrev_b32 v16, 4, v16")
        A(f"v_xor_b32 v16, v16, v{DV}")
        for m, sd in enumerate((WS0, 56)):
            for a in range(2):
                A(f"s_mov_b32 m0, s{48+2*m+a}")
                A("s_nop 0")
                for i in range(4):
                    A(f"buffer_load_dwordx4 v16, s[{sd}:{sd+3}], {'0' if a == 0 else 's43'} offen offset:{1024*i} lds")
        A("v_bfe_u32 v16, v245, 7, 3")
        A("v_lshlrev_b32 v16, 4, v16")
        A("v_xor_b32 v16, v16, v245")
        A("v_add_u32 v16, s36, v16")
        for j in range(1, 4): A(f"v_xor_b32 v{16+j}, {32*j}, v16")
        A("s_waitcnt vmcnt(0)")
        for j in range(4):
            for m in range(4):
                A(f"ds_read_b128 {vr(WQ+16*m+4*j,4)}, v{16+j} offset:{4096*m}")
        A("s_waitcnt lgkmcnt(0)")
    else:
        for a in range(2):
            so = "0" if a == 0 else "s43"
            for j in range(4):
                A(f"buffer_load_dwordx4 {vr(WQ+16*a+4*j,4)}, v245, s[{WS0}:{WS0+3}], {so} offen offset:{32*j}")
            for j in range(4):
                A(f"buffer_load_dwordx4 {vr(WK+16*a+4*j,4)}, v245, s[56:59], {so} offen offset:{32*j}")
        A("s_waitcnt vmcnt(0)")
    st(A, "x3")
    for j in range(4):
        for a in range(2):
            for b in range(2):
                d = M + 32*b + 16*a
                c = "0" if j == 0 else vr(d, 16)
                A(f"v_mfma_f32_32x32x16_bf16 {vr(d,16)}, {vr(WQ+16*a+4*j,4)}, {vr(WK+16*b+4*j,4)}, {c}")
    A("s_nop 7")
    A("s_nop 3")
    for a in range(2):
        for b in range(2):
            for j in range(2*a, 2*a+2):
                s = M + 32*b + 16*a + 8*(j & 1)
                for k in range(4):
                    A(f"v_cvt_pk_bf16_f32 v{MT+16*b+4*j+k}, v{s+2*k}, v{s+2*k+1}")
                A(f"ds_write_b128 v244, {vr(MT+16*b+4*j,4)} offset:{1024*(4*b+j)}")
    lds_signal(A, 44, ONE)
    st(A, "m3")
    for r in range(O + 32, O + 96, 2):
        A(f"v_mov_b64 {vr(r,2)}, 0")

DS = int(os.environ.get("DS", "0"))
def emit_step(A, M, pre, post, sb):
    for g in range(8):
        A.many(pre[g])
        if M[g]: A(M[g])
        A.many(post[g])
        s = S0 + 16*sb + 2*g
        A(f"v_exp_f32 v{s}, v{s}")
        if g == 7: A.many(pre[8])
        A(f"v_exp_f32 v{s+1}, v{s+1}")

def gen_loop(A, tl, iters, name):
    T = len(tl)
    A(f"s_mov_b32 s38, {iters-1}")
    A(".p2align 6")
    A(f"{name}:")
    if PROF:
        for it in range(1, iters):
            A(f"s_cmp_lg_u32 s38, {iters-1-it}")
            A(f"s_cbranch_scc1 {name}_s{it}")
            st(A, f"i{T}{it}")
            A(f"{name}_s{it}:")
    U = 5*T
    for u in range(U):
        k, t = divmod(u, T)
        tp = tl[(u - 1) % T]; tn = tl[(u + 1) % T]; tc = tl[t]
        M = [pv(tp, tp, 0, 1), pv(tp, tp, 1, 0), pv(tp, tp, 1, 1)] + [qk(tn, j, tn) for j in range(4)] + [pv(tc, tc, 0, 0)]
        pre = [[] for _ in range(9)]
        post = [[] for _ in range(8)]
        if t == 0:
            vs = vread(0, 0, k)[1:] + vread(0, 1, k) + vread(1, 0, k) + vread(1, 1, k)
            for g in range(7):
                post[g].append(vs[g])
            pre[7].append(f"s_waitcnt lgkmcnt({2 if T > 2 else 5})")
        if t == 1:
            pre[2].append("s_waitcnt vmcnt(12) lgkmcnt(0)" if T == 3 else "s_waitcnt lgkmcnt(0)")
            pre[(1 if DS else 3) if T == 2 else 5].append(f"s_mov_b32 m0, s{48+k}")
            if k == 3 and T == 3: post[0].append(f"ds_read_b32 v{ONE+1}, v{MB} offset:36")
        if t == T - 2:
            if T == 2:
                pre[3].append(f"s_waitcnt vmcnt({11 if DS else 12})")
            for j in range(4):
                post[3+j].append(kread(j, (k + 1) % 5))
        if t == T - 1:
            if T == 3:
                pre[3].append("s_waitcnt lgkmcnt(0)")
            for j in range(0 if DS else 4):
                post[3+j].append(dma_ld(j))
            if not DS: pre[7].append("s_add_u32 s37, s37, s45")
            post[7] += vread(0, 0, (k + 1) % 5)[:1]
        if DS:
            pos = [(1, 7), (2, 5), (0, 3), (1, 1)] if T == 3 else [(1, 2), (1, 6), (0, 2), (0, 7)]
            for j, (a, b) in enumerate(pos):
                if a == t: post[b].append(dma_ld(j))
            if t == 1: (post[2] if T == 3 else post[0]).append("s_add_u32 s37, s37, s45")
        if u == U - 1:
            pre[8].append("s_sub_u32 s38, s38, 1")
        if "w" in X:
            pre = [[x.replace("vmcnt(12)", "vmcnt(63)") for x in p] for p in pre]
        if "l" in X:
            import re
            pre = [[re.sub(r"lgkmcnt\(\d+\)", "lgkmcnt(15)", x) for x in p] for p in pre]
        emit_step(A, M, pre, post, tc)
    A(f"s_cbranch_scc0 {name}")

W2 = int(os.environ.get("W2", "1"))
ORD = int(os.environ.get("ORD", "0"))
PK2 = int(os.environ.get("PK2", "3"))
def gen_loop16(A, tl, iters, name):
    T = len(tl)
    A(f"s_mov_b32 s38, {iters-1}")
    A(".p2align 6")
    A(f"{name}:")
    U = 5*T
    for u in range(U):
        k, t = divmod(u, T)
        tp = tl[(u - 1) % T]; tn = tl[(u + 1) % T]; tc = tl[t]
        M = unit16(tp, tp, tn, tn, tc, tc)
        pre = [[] for _ in range(17)]
        post = [[] for _ in range(16)]
        kk = 4 if T == 2 else 0
        if t == 0:
            for i, v in enumerate(vread16(k)): post[2+i].append(v)
            pre[14].append(f"s_waitcnt lgkmcnt({kk + 4*W2})")
        if t == 1:
            if W2: pre[0].append(f"s_waitcnt lgkmcnt({kk})")
            post[1].append(f"s_mov_b32 m0, s{48+k}")
            if k == 3 and T == 3: post[0].append(f"ds_read_b32 v{ONE+1}, v{MB} offset:36")
        if t == T - 2:
            post[9].append("s_waitcnt vmcnt(12)")
            for j in range(4):
                post[10+j].append(kread16(j, (k + 1) % 5))
        if t == T - 1:
            pre[6].append("s_waitcnt lgkmcnt(0)")
            for j in range(4):
                post[7+2*j].append(dma_ld(j))
            post[14].append("s_add_u32 s37, s37, s45")
        if u == U - 1:
            post[15].append("s_sub_u32 s38, s38, 1")
        if PK2 >= 3:
            pre = [[] for _ in range(17)]; post = [[] for _ in range(16)]
            if t == 0:
                for i, v in enumerate(vread16(k)): post[2 + (i >> 1)].append(v)
                post[13].append("s_waitcnt lgkmcnt(0)" if T == 3 else "s_waitcnt vmcnt(12) lgkmcnt(0)")
            if t == 1:
                post[0].append(f"s_mov_b32 m0, s{48+k}")
                if k == 3 and T == 3: post[0].append(f"ds_read_b32 v{ONE+1}, v{MB} offset:36")
                for j in range(4): post[(1 + j) if PK2 == 3 else (1 + 2*(j >> 1))].append(dma_ld(j))
                post[5].append(f"s_add_u32 s37, s37, s{44 if Q79 and T == 2 and k == 3 else 45}")
                if T == 3: post[5].append("s_waitcnt vmcnt(16)")
            if Q79 and T == 2 and u == 0:
                post[0].append("s_cmp_eq_u32 s38, 0"); post[1].append("s_cselect_b32 s44, s47, s45")
            if Q79 and T == 3 and k == 4 and t == 0:
                post[0].append("s_cmp_eq_u32 s38, s53"); post[1] += ["s_cbranch_scc1 A_KE", "A_KR:"]
            if t == T - 2:
                for j in range(4): post[14 + (j >> 1)].append(kread16(j, (k + 1) % 5))
            if t == T - 1: post[5].append("s_waitcnt lgkmcnt(0)")
            if u == U - 1: post[14].append("s_sub_u32 s38, s38, 1")
        elif PK2:
            pre = [[] for _ in range(17)]; post = [[] for _ in range(16)]
            if t == 0:
                for i, v in enumerate(vread16(k)): post[2 + PK2*(i >> 1)].append(v)
                post[13].append(f"s_waitcnt lgkmcnt({kk})")
            if t == 1 and k == 3 and T == 3: post[0].append(f"ds_read_b32 v{ONE+1}, v{MB} offset:36")
            if t == T - 2:
                kr = [kread16(j, (k + 1) % 5) for j in range(4)]
                post[9] = ["s_waitcnt vmcnt(12)", kr[0]]
                post[11] = kr[1:3]
                post[13] = [kr[3]] + post[13]
                if T == 3: post[13].append(f"s_mov_b32 m0, s{48+k}")
            if t == T - 1:
                post[5] = ["s_waitcnt lgkmcnt(0)"] + ([f"s_mov_b32 m0, s{48+k}"] if T == 2 else [dma_ld(0)])
                post[7] = [dma_ld(1), dma_ld(2)]
                post[9] = [dma_ld(3)] + ([dma_ld(0)] if T == 2 else ["s_add_u32 s37, s37, s45"])
                if T == 2: post[11] = ["s_add_u32 s37, s37, s45"]
            if u == U - 1: post[11].append("s_sub_u32 s38, s38, 1")
        if "d" in X: post = [[x for x in p if "buffer_load" not in x] for p in post]
        if "r" in X: post = [[x for x in p if "ds_read_b" not in x or "b32" in x] for p in post]
        for h in range(16):
            r = S0 + 16*tc + h
            ex = f"v_exp_f32{'_e64' if 'e' in X else ''} v{r}, v{r}"
            if ORD == 0:
                cv = [] if not DP or h & 1 else [cvt16(tp, 7) if h == 0 else cvt16(tc, h//2 - 1)]
                A.many(pre[h]); A(M[h]); A.many(post[h])
                if DP == 1: A.many(cv)
                A(ex)
                if DP == 2: A.many(cv)
            elif ORD == 1:
                A.many(pre[h]); A(M[h]); A(ex); A.many(post[h])
            elif h & 1:
                A.many(pre[h-1] + pre[h]); A(M[h-1]); A.many(post[h-1]); A(M[h]); A.many(post[h])
                A(ex.replace(f"v{r}", f"v{r-1}")); A(ex)
    A(f"s_cbranch_scc0 {name}")

def dump16(t):
    return [f"ds_write_b128 v{RA}, {vr(O+32*t+4*q,4)} offset:{2048*(q>>1)+256*(q&1)}" for q in range(8)]

def gen_t16(A):
    seq = [(int(w[1:]), 0 if w[0] == "O" else 2) for w in SEQS[os.environ.get("SEQ", "3" if Q79 else "2")].split()]
    n = len(seq); P = [a for a, _ in seq]; last = max(P)
    ms = max(i for i in range(n) if seq[i][1] == 2)
    assert P[0] == 35 and P[1] == 35
    L = []
    def ins(s, tag=None): L.append((s, tag))
    def wait(l=None, v=None): L.append(("WAIT", (l, v)))
    pre_v = [f"D{k}" for k in (36, 37, 38, 39) for _ in range(4)]
    if not Q79: ins("s_add_u32 s37, s37, s47")
    dl = dump16(2); fl = final_loads()
    if PK2 >= 3: dl = dl[0::2] + dl[1::2]
    newv = lambda i: i == 0 or P[i] != P[i-1]
    nd = 40
    for i in range(n):
        sb = 0 if i % 2 == 0 else 2; so = 2 - sb
        tp = 2 if i == 0 else seq[i-1][1]
        M = unit16(so, tp, so, seq[i+1][1] if i + 1 < n else None, sb, seq[i][1])
        vs = vread16(P[i] % 5)
        rk = i + 2 < n and P[i+2] != P[i+1]
        free = nd <= last and all(not (P[j] == nd - 5 and newv(j)) for j in range(i, n))
        for h in range(16):
            if PK2 >= 3:
                if M[h]: ins(M[h])
                if h == 0 and free: ins(f"s_mov_b32 m0, s{48+nd%5}")
                if 2 <= h < 6 and newv(i): ins(vs[2*h-4], f"W{i}"); ins(vs[2*h-3], f"W{i}")
                if 1 <= h <= 4 and free: ins(dma_ld(h-1), f"D{nd}")
                if h == 5 and free: ins("s_add_u32 s37, s37, s45")
                if h == 5 and i + 1 < n: wait(l=[f"K{i+1}", f"C{i-1}"])
                if h == 13 and (rk or newv(i)): wait(l=[f"W{i}"] if newv(i) else None, v=[f"D{P[i+2]}"] if rk else None)
                if h >= 14 and rk:
                    for j in (2*h-28, 2*h-27): ins(kread16(j, P[i+2] % 5), f"K{i+2}")
                if i >= ms + 1 and h in (0, 1) and fl:
                    ins(fl.pop(0), "F")
                    if fl: ins(fl.pop(0), "F")
                if i == ms and h == 0: ins(f"ds_read_b32 v{ONE+1}, v{MB} offset:20", f"C{i}")
                if i == ms and h == 6: wait(l=[f"C{i}"]); ins(f"v_readfirstlane_b32 s57, v{ONE+1}")
                if i == ms and h == 8:
                    ins("s_cmp_lt_u32 s57, 4"); ins("s_cbranch_scc1 A_WC"); ins("A_WR:")
                if dl and (i, h) >= (ms + 1, 6):
                    ins(dl.pop(0), "X")
                    if not dl:
                        ins("s_mov_b64 exec, 1"); ins(f"ds_add_u32 v{MB}, v{ONE} offset:8", "X"); ins("s_mov_b64 exec, -1")
            else:
                if h == 0 and i and newv(i-1): wait(l=[f"W{i-1}"])
                if h == 6 and i + 1 < n: wait(l=[f"K{i+1}", f"C{i-1}"])
                if h == 14 and newv(i): wait(l=[f"V{i}"])
                if M[h]: ins(M[h])
                if h == 0 and free: ins(f"s_mov_b32 m0, s{48+nd%5}")
                if 2 <= h < 10 and newv(i): ins(vs[h-2], f"V{i}" if h < 6 else f"W{i}")
                if h == 9 and rk: wait(v=[f"D{P[i+2]}"])
                if 10 <= h < 14 and rk: ins(kread16(h-10, P[i+2] % 5), f"K{i+2}")
                if h in (1, 3, 5, 7) and free: ins(dma_ld(h//2), f"D{nd}")
                if h == 8 and free: ins("s_add_u32 s37, s37, s45")
                if i == ms + 3 and h in (0, 1, 14, 15): ins(fl.pop(0), "F")
                if i == ms + 4 and h == 0: ins(fl.pop(0), "F")
                if i == ms and h == 0: ins(f"ds_read_b32 v{ONE+1}, v{MB} offset:20", f"C{i}")
                if i == ms + 1 and h == 6: ins(f"v_readfirstlane_b32 s57, v{ONE+1}")
                if i == ms + 1 and h == 8:
                    ins("s_cmp_lt_u32 s57, 4"); ins("s_cbranch_scc1 A_WC"); ins("A_WR:")
                if dl and (i, h) >= (ms + 1, 9):
                    ins(dl.pop(0), "X")
                    if not dl:
                        ins("s_mov_b64 exec, 1"); ins(f"ds_add_u32 v{MB}, v{ONE} offset:8", "X"); ins("s_mov_b64 exec, -1")
            r = S0 + 16*sb + h
            cv = None if not DP or h & 1 else cvt16(so, 7) if h == 0 else cvt16(sb, h//2 - 1)
            if cv and DP == 1:
                if not M[h]: ins("s_nop 0")
                ins(cv)
            ins(f"v_exp_f32 v{r}, v{r}")
            if cv and DP == 2: ins(cv)
        if free: nd += 1
    assert not dl and not fl and nd == last + 1
    wait(l=[f"W{n-1}"])
    if DP: ins(cvt16(sb, 7))
    for m in unit16(sb, 0, 0, None, 0, 0)[:6]: ins(m)
    T = Track(); T.q["v"] = pre_v
    for s_, tag in L:
        if s_ == "WAIT":
            l, v = tag; w = "s_waitcnt"
            if v: w += f" vmcnt({T.cnt('v', v)})"
            if l: w += f" lgkmcnt({T.cnt('l', l)})"
            A(w)
        else:
            if tag: T.add(s_, tag)
            A(s_)

def dump(t, a=None):
    return [f"ds_write_b128 v{RA if a is None else a}, {vr(O+32*t+4*q,4)} offset:{1024*q}" for q in range(8)]

def final_loads():
    L = []
    for m in range(2):
        for k in range(4):
            L.append(f"buffer_load_dwordx4 {vr(WF+16*m+4*k,4)}, v{WO}, s[20:23], {'0' if m == 0 else 's62'} offen offset:{2048*(k>>1)+128*(k&1)} sc1")
    L.append(f"buffer_load_dwordx4 {vr(XF,4)}, v{XO}, s[16:19], 0 offen")
    return L

def final_setup_v(A):
    A("v_and_b32 v16, 15, v0")
    A("v_and_b32 v17, 48, v0")
    A(f"s_lshr_b32 s42, s{SV}, 1")
    A("v_lshl_add_u32 v19, s42, 4, v16")
    A("s_cmp_ge_u32 s3, 4")
    A("s_cselect_b32 s54, 0, 256")
    A("s_lshl_b32 s55, s54, 4")
    A(f"s_add_u32 s54, s54, {LE+128}")
    A(f"s_add_u32 s55, s55, {MTL}")
    A("v_lshl_add_u32 v249, v19, 2, s54")
    A("v_lshl_add_u32 v250, v19, 4, s55")
    A("v_lshl_add_u32 v250, v17, 5, v250")
    A("v_or_b32 v251, 32, v0")
    A(f"v_lshl_add_u32 v251, v251, 2, v{MB}")
    A("v_and_b32 v18, 7, v16")
    A(f"v_and_b32 v{WO}, 8, v16")
    A(f"v_lshl_add_u32 v{WO}, v{WO}, 1, v18")
    A(f"v_lshl_add_u32 v{WO}, v17, 1, v{WO}")
    A(f"v_lshlrev_b32 v{WO}, 4, v{WO}")
    A("v_add_u32 v18, 32, v18")
    A("s_cmp_ge_u32 s3, 4")
    A("s_cselect_b64 vcc, -1, 0")
    A("v_cndmask_b32 v16, v19, v18, vcc")
    A("v_lshrrev_b32 v19, 3, v19")
    A(f"v_cmp_eq_u32 s[54:55], s{SI}, v19")
    A(f"v_mul_u32_u24 v1, {ASTR}, v16")
    A("v_add_u32 v1, v1, v17")
    A(f"v_add_u32 v1, {AL}, v1")
    A(f"v_lshl_add_u32 v{XO}, v16, 7, v17")
    A("s_andn2_b64 vcc, vcc, s[54:55]")
    A(f"s_and_b32 s54, s{SV}, 1")
    A(f"s_mul_i32 s42, s{SW}, 80")
    A("s_add_u32 s42, s42, s54")
    A("s_lshl_b32 s42, s42, 6")
    A(f"v_add_u32 v{XO}, s42, v{XO}")
    A("v_mov_b32 v18, 0x70000000")
    A(f"v_cndmask_b32 v{XO}, v{XO}, v18, vcc")
    A("s_lshl_b32 s42, s54, 12")
    A(f"v_add_u32 v{WO}, s42, v{WO}")
    A(f"s_lshl_b32 s42, s{SV}, 13")
    A(f"s_add_u32 s42, s42, {STG}")
    A(f"v_add_u32 v{RA}, s42, v{DV}")

def final_setup_s(A):
    A(f"s_lshl_b32 s54, s{SI}, 3")
    A("s_lshl_b32 s54, 0xff, s54")
    A("s_mov_b32 s55, s54")
    srd(A, 16, 6, 0, N * 128)
    srd(A, 20, 4, WS_W, 16384)
    srd(A, 24, 28, 0, N * 128)
    A("s_movk_i32 s61, 0x1000")
    A("s_movk_i32 s62, 0x2000")
    A("s_movk_i32 s63, 0x3000")

class Track:
    def __init__(self): self.q = {"l": [], "v": []}
    def add(self, ins, tag):
        self.q["l" if ins.startswith("ds_") else "v"].append(tag); return ins
    def cnt(self, c, tags):
        q = self.q[c]; last = max([i for i, t in enumerate(q) if t in tags], default=-1)
        return min(len(q) - 1 - last, 15 if c == "l" else 63)

SEQS = {
 "2": "O35 S35 S36 S37 S38 O36 O37 O38 O39 O40",
 "3": "O35 S35 S36 S37 S38 O36 O37 O38 O39",
 "4": "O35 S35 O36 S36 S37 O37 O38 O39 O40 O41",
 "4b": "O35 S35 S36 S37 O36 O37 O38 O39 O40 O41",
 "6": "O35 S35 S36 O36 O37 O38 O39 O40 O41 O42",
 "8": "O35 S35 O36 O37 O38 O39 O40 O41 O42 O43",
}
def gen_t1(A):
    seq = [(int(w[1:]), 0 if w[0] == "O" else 2) for w in SEQS[os.environ.get("SEQ", "2")].split()]
    n = len(seq); P = [a for a, _ in seq]; last = max(P)
    ms = max(i for i in range(n) if seq[i][1] == 2)
    assert P[0] == 35 and P[1] == 35
    L = []
    def ins(s, tag=None): L.append((s, tag))
    def wait(l=None, v=None): L.append(("WAIT", (l, v)))
    pre_l = ["V0"]; pre_v = [f"D{k}" for k in (36, 37, 38, 39) for _ in range(4)]
    if DS: pre_v = pre_v[:-2]
    else: ins("s_add_u32 s37, s37, s47")
    dl = dump(2); fl = final_loads()
    newv = lambda i: i == 0 or P[i] != P[i-1]
    nd = 40
    for i in range(n):
        sb = 0 if i % 2 == 0 else 2; so = 2 - sb
        tp = 2 if i == 0 else seq[i-1][1]
        M = [pv(so, tp, 0, 1), pv(so, tp, 1, 0), pv(so, tp, 1, 1)] + [qk(so, j, seq[i+1][1]) if i + 1 < n else None for j in range(4)] + [pv(sb, seq[i][1], 0, 0)]
        k = P[i] % 5
        vs = vread(0, 0, k)[1:] + vread(0, 1, k) + vread(1, 0, k) + vread(1, 1, k)
        vt = [f"V{i}"]*5 + [f"W{i}"]*2
        rk = i + 2 < n and P[i+2] != P[i+1]
        free = nd <= last and all(not (P[j] == nd - 5 and newv(j)) for j in range(i, n))
        for g in range(8):
            if g == 2:
                wait(l=[f"W{i-1}", f"K{i+1}"], v=[f"D{P[i+2]}"] if rk else None)
                if free: ins(f"s_mov_b32 m0, s{48+nd%5}")
            if g == 7 and newv(i): wait(l=[f"V{i}"])
            if M[g]: ins(M[g])
            if g < 7 and newv(i): ins(vs[g], vt[g])
            if 3 <= g <= 6 and rk: ins(kread(g-3, P[i+2] % 5), f"K{i+2}")
            if DS and i == 0 and g in (2, 7): ins(dma_ld(2 if g == 2 else 3), "D39")
            if DS and i == 1 and g < 2: ins(f"s_add_u32 s37, s37, s{45+2*g}")
            if 2 <= g <= 5 and free: ins(dma_ld(g-2), f"D{nd}")
            if g == 6 and free: ins("s_add_u32 s37, s37, s45")
            if g == 7 and i + 1 < n and newv(i+1): ins(vread(0, 0, P[i+1] % 5)[0], f"V{i+1}")
            if i == ms + 3 and g in (0, 1, 6, 7): ins(fl.pop(0), "F")
            if i == ms + 4 and g == 0: ins(fl.pop(0), "F")
            if i == ms and g == 0: ins(f"ds_read_b32 v{ONE+1}, v{MB} offset:20", f"W{i}")
            if i == ms + 1 and g == 2: ins(f"v_readfirstlane_b32 s57, v{ONE+1}")
            if i == ms + 1 and g == 4:
                ins("s_cmp_lt_u32 s57, 4"); ins("s_cbranch_scc1 A_WC"); ins("A_WR:")
            if dl and (i, g) >= (ms + 1, 5):
                ins(dl.pop(0), "X"); ins(dl.pop(0), "X")
                if not dl:
                    ins("s_mov_b64 exec, 1"); ins(f"ds_add_u32 v{MB}, v{ONE} offset:8", "X"); ins("s_mov_b64 exec, -1")
            r = S0 + 16*sb + 2*g
            ins(f"v_exp_f32 v{r}, v{r}"); ins(f"v_exp_f32 v{r+1}, v{r+1}")
        if free: nd += 1
    assert not dl and not fl and nd == last + 1
    wait(l=[f"W{n-1}"])
    ins(pv(2, 0, 0, 1)); ins("s_nop 0"); ins(pv(2, 0, 1, 0)); ins(pv(2, 0, 1, 1))
    T = Track(); T.q["l"] = pre_l; T.q["v"] = pre_v
    for s_, tag in L:
        if s_ == "WAIT":
            l, v = tag; w = "s_waitcnt"
            if v: w += f" vmcnt({T.cnt('v', v)})"
            if l: w += f" lgkmcnt({T.cnt('l', l)})"
            A(w)
        else:
            if tag: T.add(s_, tag)
            A(s_)

def attn_setup(A):
    flag_srd(A)
    A(f"v_mov_b32 v{ONE}, 1")
    A("s_load_dwordx2 s[6:7], s[0:1], 0")
    A("s_load_dwordx2 s[28:29], s[0:1], 72")
    A(f"s_mul_i32 s42, s{SV}, {QT_*4096}")
    A(f"s_sub_u32 s10, {N*128}, s42")
    A(f"s_min_u32 s10, s10, {QT_*4096}")
    A("s_mov_b32 s11, 0x20000")
    A("s_add_u32 s8, s4, s42")
    A("s_addc_u32 s9, s5, 0")
    A(f"s_mul_i32 s36, s{SV}, {RING}")
    for k in range(5):
        A(f"s_add_u32 s{48+k}, s36, {4096*k}")
    A(f"s_lshl_b32 s45, s{SHF}, 13")
    A("s_sub_u32 s45, 0x1000, s45")
    A(f"s_mul_i32 s37, s{SHF}, {(QT_-1)*4096}")
    A(f"s_lshl_b32 s42, s{SHF}, 12")
    A(f"s_sub_u32 s42, {(QT_-40)*4096}, s42")
    A("s_mul_i32 s47, s45, -80")
    A(f"s_cmp_eq_u32 s{SP}, 0")
    A("s_cselect_b32 s37, s37, s42")
    A("s_cselect_b32 s47, 0, s47")
    if Q79:
        A(f"s_cmp_eq_u32 s{SI}, 3")
        A(f"s_cselect_b32 s47, {78*4096}, s45")
        A("s_cselect_b32 s53, 0, -1")
    (frag16 if M16 else frag_addrs)(A, 0, 36, 18, 19)
    dma_addr(A, 18)
    A("s_waitcnt lgkmcnt(0)")
    final_setup_v(A)
    if M16: A(f"v_add_u32 v{RA}, s42, v{D2}")
    final_setup_s(A)

def gen_attn(A):
    A("A_MAIN:")
    for r in list(range(S0+32, S0+48, 2)) + list(range(VF+(0 if M16 else 4), VF+16, 2)):
        A(f"v_mov_b64 {vr(r,2)}, 0")
    A("v_lshlrev_b32 v17, 7, v0")
    A(f"s_mul_i32 s42, s{SV}, {128*(63 if Q79 else 64)}")
    lds_wait(A, "A_WQ", 24, 3, 16)
    if P8:
        lds_wait(A, "A_WF", 0, 1, 16)
        A(f"s_mov_b32 s{SN}, s57")
    else:
        lds_wait(A, "A_WF", 28, 2, 16)
    st(A, "fg")
    def pg(nm, mask):
        A("s_cmp_eq_u32 s3, 3")
        A(f"s_cselect_b32 exec_hi, {0x1fffffff if Q79 else 0x03ffffff:#x}, -1")
        if mask:
            A(f"s_and_b64 exec, exec, {mask}")
            A(f"s_cbranch_scc0 {nm}_X")
        poll1(A, nm, 17, "s42", 16)
    if E4:
        A("s_lshr_b32 s43, s37, 12")
        A("s_mul_i32 s43, s43, 205")
        A("s_lshr_b32 s43, s43, 10")
        A("s_lshl_b32 s43, s43, 2")
        A("s_bfm_b64 s[56:57], 4, s43")
    pg("A_PG", "s[56:57]" if E4 else None)
    st(A, "a3")
    A("s_setprio 1")
    def pre(ks):
        for k in ks:
            A(f"s_mov_b32 m0, s{48+k}")
            A("s_nop 0")
            for i in range(4): A(dma_ld(i))
            A("s_add_u32 s37, s37, s45")
    pre(range(N0))
    if N0 == 5: lds_signal(A, 40, ONE)
    A(f"v_add_u32 v18, {QX}, v{D2 if M16 else DV}")
    for q in range(12):
        A(f"ds_read_b128 {vr(Q+4*q,4)}, v18 offset:{4096*(q>>2)+2048*(q&1)+256*((q>>1)&1) if M16 else 1024*q}")
    if E4:
        pg("A_PH", None)
        lds_signal(A, 40, ONE)
        st(A, "go")
    A(f"s_waitcnt vmcnt({4*N0-4})")
    if M16:
        for j in range(4): A(kread16(j, 0))
        pre(range(N0, 5))
        if N0 < 5: lds_signal(A, 40, ONE)
        A("s_waitcnt lgkmcnt(0)")
        A.many(qk16(0, 0))
    else:
        for j in range(4): A(kread(j, 0))
        A(vread(0, 0, 0)[0])
        A("s_waitcnt lgkmcnt(1)")
        for j in range(4): A(qk(0, j, 0))
    A("s_nop 7")
    st(A, "a4")
    (gen_loop16 if M16 else gen_loop)(A, [0, 1, 2], 4, "A_L3")
    st(A, "l3")
    A(f"v_readfirstlane_b32 s57, v{ONE+1}")
    A(f"s_cmp_lt_u32 s57, {4 if NH else 7}")
    A("s_cbranch_scc1 A_WP")
    A("A_WPR:")
    A.many(dump16(1) if M16 else dump(1))
    A("s_mov_b64 exec, 1")
    A(f"ds_add_u32 v{MB}, v{ONE} offset:8")
    A("s_mov_b64 exec, -1")
    (gen_loop16 if M16 else gen_loop)(A, [0, 2], 3, "A_L2")
    st(A, "l2")
    (gen_t16 if M16 else gen_t1)(A)
    st(A, "a5")
    A(f"v_add_u32 v{RA}, s36, v{D2 if M16 else DV}")
    if M16:
        dl = dump16(0)
        A("s_nop 1")
        A.many(dl[0::2]); A.many(dl[1::2][:3]); A("s_nop 0"); A(dl[7])
        lds_signal(A, 12, ONE)
    else:
        A("s_nop 7")
        A("s_nop 2")
        A.many(dump(0))
    A("s_branch FINAL")
    A("A_WC:")
    lds_wait(A, "A_WC1", 20, 4, ONE+1)
    A("s_branch A_WR")

    A("A_KE:")
    A("s_mov_b32 exec_lo, 0")
    A("s_mov_b32 exec_hi, 0xffff0000")
    A(f"v_mov_b32 v{Q+16+7}, 0xff7f0000")
    A(f"v_mov_b32 v{Q+16+15}, 0xff7f0000")
    A("s_mov_b64 exec, -1")
    A("s_branch A_KR" if Q79 else "s_endpgm")
    A("A_WP:")
    lds_wait(A, "A_WP1", 36, 4 if NH else 7, ONE+1)
    A("s_branch A_WPR")
```
